```python
import torch

def _softmax(x, axis=-1):
    return torch.softmax(x, dim=axis)
def _gelu(x):
    return torch.nn.functional.gelu(x, approximate="tanh")
def _silu(x):
    return torch.nn.functional.silu(x)
def _sigmoid(x):
    return torch.sigmoid(x)
def _layernorm(x, axis=-1, eps=1e-5):
    m = x.mean(dim=axis, keepdim=True)
    v = x.var(dim=axis, keepdim=True, unbiased=False)
    return (x - m) / torch.sqrt(v + eps)
def _scatter_add(tgt, idx, src, axis=0):
    return tgt.clone().index_add_(axis, idx, src)
def _segment_sum(src, seg, n):
    out = torch.zeros((n,) + src.shape[1:], dtype=src.dtype)
    return out.index_add_(0, seg, src)
def _pad(x, pw):
    flat = tuple(v for pair in reversed(pw) for v in pair)
    return torch.nn.functional.pad(x, flat)

kernel_name = 'standalone__mha_block_cached__near_ridge'

def setup_inputs():

    _w = (lambda a: (lambda t: t.to(torch.bfloat16) if t.is_floating_point() else t)(torch.as_tensor(a)))
    B, Sq, D = 32, 160, 640
    H, Sk, Dh = 32, 512, 128
    return {
        "x": _w((lambda *s: torch.randn(*s, dtype=torch.bfloat16) * 0.8)(B, Sq, D)),
        "k_cache": _w((lambda *s: torch.randn(*s, dtype=torch.bfloat16) * 0.8)(B, H, Sk, Dh)),
        "v_cache": _w((lambda *s: torch.randn(*s, dtype=torch.bfloat16) * 0.05)(B, H, Sk, Dh)),
        "wq": _w((lambda *s: torch.randn(*s, dtype=torch.bfloat16) * 0.8)(D, H * Dh) * (D ** -0.5)),
        "wo": _w((lambda *s: torch.randn(*s, dtype=torch.bfloat16) * 0.05)(H * Dh, D) * ((H * Dh) ** -0.5)),
    }

def reference(x, k_cache, v_cache, wq, wo):
    B, Sq, D = x.shape
    H, Dh = 32, 128
    q = (lambda x, *d: x.permute(*d))((x @ wq).reshape(B, Sq, H, Dh), 0, 2, 1, 3)
    scores = torch.einsum("bhqd,bhkd->bhqk", q, k_cache) * (Dh ** -0.5)
    p = _softmax(scores, axis=-1)
    o = torch.einsum("bhqk,bhkd->bhqd", p, v_cache)
    return (lambda x, *d: x.permute(*d))(o, 0, 2, 1, 3).reshape(B, Sq, H * Dh) @ wo
```

```python
import re

def _regs(tok):
    tok = tok.strip()
    tok = tok.lstrip('-')
    m = re.fullmatch(r'abs\((.*)\)', tok)
    if m: tok = m.group(1)
    m = re.fullmatch(r'([vsa])\[(\d+):(\d+)\]', tok)
    if m: return [(m.group(1), i) for i in range(int(m.group(2)), int(m.group(3)) + 1)]
    m = re.fullmatch(r'([vsa])(\d+)', tok)
    if m: return [(m.group(1), int(m.group(2)))]
    if tok in ('vcc', 'vcc_lo', 'vcc_hi'): return [('s', 'vcc')]
    if tok == 'm0': return [('s', 'm0')]
    if tok in ('exec', 'exec_lo', 'exec_hi'): return [('s', 'exec')]
    return []

TRANS = ('v_exp_f32', 'v_log_f32', 'v_rcp_f32', 'v_rsq_f32', 'v_sqrt_f32', 'v_sin_f32', 'v_cos_f32')

class Ins:
    __slots__ = ('text', 'op', 'kind', 'rd', 'wr', 'ws', 'label', 'target', 'srcc', 'srcab', 'passes', 'uncond', 'end', 'wide_store')
    def __init__(self, text):
        self.text = text
        self.label = None; self.target = None; self.uncond = False; self.end = False
        self.rd = set(); self.wr = set(); self.srcc = set(); self.srcab = set(); self.passes = 0
        self.ws = 1; self.kind = 'other'; self.wide_store = set()
        t = text.split(';')[0].strip()
        if t.endswith(':'):
            self.label = t[:-1]; self.ws = 0; self.op = ''; self.kind = 'label'; return
        if t.startswith('.') or not t:
            self.ws = 0; self.op = ''; self.kind = 'dir'; return
        parts = t.split(None, 1)
        op = parts[0]; self.op = op
        rest = parts[1] if len(parts) > 1 else ''
        rest = re.sub(r'\s+\w+:\[[^\]]*\]', '', rest)
        ops = [o.strip() for o in rest.split(',')]
        if ops and ops[-1]:
            last = ops[-1].split()
            mods = last[1:]; ops[-1] = last[0]
        else:
            mods = []; ops = []
        R = lambda i: set(_regs(ops[i])) if i < len(ops) else set()
        if op == 's_nop':
            self.ws = int(ops[0], 0) + 1; self.kind = 'nop'
        elif op.startswith('v_mfma'):
            self.kind = 'mfma'
            self.wr = R(0); self.srcab = R(1) | R(2); self.srcc = R(3); self.rd = self.srcab | self.srcc
            self.passes = 8 if '32x32x16' in op else 4
        elif op.startswith('v_'):
            self.kind = 'trans' if op.replace('_e32', '').replace('_e64', '') in TRANS else 'valu'
            self.wr = R(0)
            for i in range(1, len(ops)): self.rd |= R(i)
            if op.startswith('v_permlane'):
                self.kind = 'permlane'; self.wr = R(0) | R(1); self.rd = R(0) | R(1)
            if op.startswith('v_fmac') or op.startswith('v_dot2c'): self.rd |= R(0)
            if op.startswith('v_readfirstlane') or op.startswith('v_readlane'): self.kind = 'readlane'
            if op.startswith('v_add_co') or op.startswith('v_addc_co'): self.wr |= R(1)
        elif op.startswith('ds_read') or op.startswith('ds_bpermute') or op.startswith('ds_swizzle') or '_rtn_' in op:
            self.kind = 'ds'; self.wr = R(0)
            for i in range(1, len(ops)): self.rd |= R(i)
        elif op.startswith('ds_'):
            self.kind = 'ds'
            for i in range(len(ops)): self.rd |= R(i)
        elif op.startswith('buffer_load') or op.startswith('global_load'):
            self.kind = 'vmem'
            if 'lds' in mods or '_lds_' in op:
                self.kind = 'dma'
                for i in range(len(ops)): self.rd |= R(i)
                self.rd.add(('s', 'm0'))
            else:
                self.wr = R(0)
                for i in range(1, len(ops)): self.rd |= R(i)
        elif op.startswith('buffer_store') or op.startswith('global_store') or op.startswith('buffer_atomic') or op.startswith('global_atomic'):
            self.kind = 'vmem'
            for i in range(len(ops)): self.rd |= R(i)
            if op.endswith('x4') or op.endswith('x3'):
                self.wide_store = R(0) if op.startswith('buffer') else R(1)
            if 'atomic' in op and 'sc0' in mods: self.wr = R(0)
        elif op.startswith('s_cbranch') or op == 's_branch':
            self.kind = 'branch'; self.target = ops[0]; self.uncond = (op == 's_branch')
        elif op == 's_endpgm':
            self.end = True
        elif op.startswith('s_'):
            self.kind = 'salu'
            if op.startswith('s_cmp') or op in ('s_waitcnt', 's_barrier', 's_setprio', 's_sleep'):
                for i in range(len(ops)): self.rd |= R(i)
            else:
                self.wr = R(0)
                for i in range(1, len(ops)): self.rd |= R(i)

VALU_KINDS = ('valu', 'trans', 'permlane', 'readlane')

def need(p, c):
    n = 0
    vw = {r for r in p.wr if r[0] in 'va'}
    sw = {r for r in p.wr if r[0] == 's'}
    if p.kind in VALU_KINDS:
        if c.kind == 'mfma' and (vw & c.rd): n = max(n, 2)
        if c.kind == 'permlane' and (vw & c.rd): n = max(n, 2)
        if c.op.endswith('_dpp') and (vw & c.rd): n = max(n, 2)
        if c.kind == 'readlane' and (vw & c.rd): n = max(n, 1)
        if p.kind == 'trans' and c.kind in VALU_KINDS and c.kind != 'trans' and (vw & c.rd): n = max(n, 1)
        if p.kind == 'trans' and c.kind in ('ds', 'vmem', 'dma') and (vw & c.rd): n = max(n, 1)
        if sw:
            if c.kind in VALU_KINDS and (sw & c.rd): n = max(n, 2)
            if c.kind in ('vmem', 'dma') and (sw & c.rd): n = max(n, 5)
            if c.kind == 'salu' and (sw & c.rd): n = max(n, 2)
            if ('s', 'exec') in sw and c.kind == 'mfma': n = max(n, 4)
    if p.kind == 'mfma':
        big = {8: 12, 4: 8}[p.passes]; part = {8: 10, 4: 6}[p.passes]; war = {8: 7, 4: 3}[p.passes]
        if c.kind == 'mfma':
            if vw & c.srcab: n = max(n, big)
            if vw & c.srcc:
                if not (vw == c.srcc and p.passes == c.passes): n = max(n, part)
            elif vw & c.wr:
                n = max(n, part)
        elif c.kind in VALU_KINDS or c.kind in ('ds', 'vmem', 'dma'):
            if vw & (c.rd | c.wr): n = max(n, big)
            if c.kind in VALU_KINDS and (p.srcc & c.wr): n = max(n, war)
    if p.kind == 'salu' and ('s', 'm0') in p.wr and c.kind == 'dma': n = max(n, 1)
    if p.wide_store and (p.wide_store & c.wr): n = max(n, 2)
    return n

MAXW = 12

class Prog:
    def __init__(self):
        self.ins = []
    def __call__(self, text):
        for line in text.split('\n'):
            if line.strip(): self.ins.append(Ins(line.strip()))
    def fix_hazards(self, verbose=False):
        total = 0
        while True:
            ins = self.ins
            labels = {x.label: i for i, x in enumerate(ins) if x.label}
            preds = [[] for _ in ins]
            for i, x in enumerate(ins):
                if x.target is not None:
                    preds[labels[x.target]].append(i)
                if i + 1 < len(ins) and not x.uncond and not x.end:
                    preds[i + 1].append(i)
            inserts = []
            for i, c in enumerate(ins):
                if c.kind in ('label', 'dir', 'nop', 'branch', 'other'): continue
                worst = 0; why = None
                stack = [(p, 0) for p in preds[i]]
                seen = {}
                while stack:
                    j, d = stack.pop()
                    if j in seen and seen[j] <= d: continue
                    seen[j] = d
                    p = ins[j]
                    n = need(p, c) if p.ws else 0
                    if n - d > worst: worst = n - d; why = p.text
                    d2 = d + p.ws
                    if d2 < MAXW:
                        for q in preds[j]: stack.append((q, d2))
                if worst > 0:
                    inserts.append((i, worst, why))
                    break_after = True
            if not inserts: break
            last = -100; todo = []
            for i, w, why in inserts:
                if i - last > MAXW + 2:
                    todo.append((i, w, why)); last = i
            for i, w, why in reversed(todo):
                if verbose: print(f"nop {w} before [{ins[i].text}] due to [{why}]")
                ins.insert(i, Ins(f"s_nop {w-1}"))
                total += w
        return total
    def text(self):
        out = []
        for x in self.ins:
            out.append(x.text if x.kind in ('label', 'dir') else '    ' + x.text)
        return '\n'.join(out) + '\n'

class Q:
    def __init__(self, prog, name, maxn):
        self.p = prog; self.name = name; self.maxn = maxn; self.n = 0; self.done = 0
    def issue(self, k=1):
        self.n += k; return self.n
    def wait(self, tok):
        if tok <= self.done: return
        left = self.n - tok
        left = min(left, self.maxn)
        self.p(f"s_waitcnt {self.name}({left})")
        self.done = self.n - left
    def room(self, k):
        if self.n - self.done + k > self.maxn:
            self.wait(self.n + k - self.maxn)
    def drain(self):
        self.p(f"s_waitcnt {self.name}(0)"); self.done = self.n
```

```python
import sys, math
sys.path.insert(0, 'dev')
from asmlib import Prog, Q, Ins

KN = "standalone__mha_block_cached__near_ridge_kernel"
K2 = "reduce_kernel"

SLOT = 8448; PCS = 1056
WR = 0; NW = 4
QS = WR + NW * SLOT
O3 = QS + 4 * SLOT
KR = O3 + 8192
NKV = 5
VR = KR + NKV * SLOT
LDS_BYTES = VR + NKV * SLOT
SLAB = 204800

O = 0; SA = 64; SB = 80; QR = 96; SV = [128, 160, 192]; F = 224
vKl, vTl, vKa, vVa, vDk, vDv, vM, vNmc, vThr, vL, vFac, t0, t1, t2, vLin, vDum = range(240, 256)
ACC = 0; XB = [128, 160]
vX, vQw, vWq, vWo = vKl, vKa, vDk, vDv

sK, sV, sWQ, sWO, sX, sPO = 4, 8, 12, 16, 20, 24
sWave, sB, sHG, sIt, sPrev, sCur, sNext, sNext2 = 28, 29, 30, 31, 32, 33, 34, 35
sFlag, sT, sC, sMK, sMV, sLim, sT2, sT3 = 38, 39, 40, 41, 42, 43, 44, 45
sCol, sX2, sSt0, sSt1, sColN, sGB, sHS, sGBn = 46, 47, 48, 49, 50, 51, 52, 53
sT4 = 54

SCALE = math.log2(math.e) / math.sqrt(128.0)
THR_RAW = 8.0 / SCALE
import struct
def f2u(x): return struct.unpack('<I', struct.pack('<f', x))[0]

def vr(b, n): return f"v[{b}:{b+n-1}]"
def srd(b): return f"s[{b}:{b+3}]"

def mfma(p, d, a, b, czero=False):
    p(f"v_mfma_f32_32x32x16_bf16 {vr(d,16)}, {vr(a,4)}, {vr(b,4)}, {'0' if czero else vr(d,16)}")

def gen(opts):
    p = Prog()
    nt_kv = " nt" if opts.get('nt', 1) else ""
    p(f"{KN}:")
    p("s_cmp_ge_u32 s2, 256")
    p("s_cbranch_scc1 L_exit")
    p("s_load_dwordx8 s[56:63], s[0:1], 0")
    p("s_load_dwordx2 s[64:65], s[0:1], 32")
    p("s_load_dwordx2 s[66:67], s[0:1], 56")
    p(f"v_lshrrev_b32 v1, 6, v0")
    p(f"v_and_b32 v0, 63, v0")
    p(f"v_readfirstlane_b32 s{sWave}, v1")
    bx = opts.get('bx', 8)
    hx = 32 // bx
    lhx = int(math.log2(hx)); lng = int(math.log2(8 // hx))
    p(f"s_and_b32 s{sT}, s2, 7")
    p(f"s_lshr_b32 s{sT2}, s2, 3")
    p(f"s_lshr_b32 s{sB}, s{sT}, {lng}")
    p(f"s_mul_i32 s{sB}, s{sB}, {bx}")
    p(f"s_lshr_b32 s{sT3}, s{sT2}, {lhx}")
    p(f"s_add_u32 s{sB}, s{sB}, s{sT3}")
    p(f"s_and_b32 s{sHG}, s{sT}, {(8//hx)-1}")
    p(f"s_lshl_b32 s{sHG}, s{sHG}, {lhx}")
    p(f"s_and_b32 s{sT3}, s{sT2}, {hx-1}")
    p(f"s_add_u32 s{sHG}, s{sHG}, s{sT3}")
    p(f"s_lshl_b32 s{sT}, s{sB}, 3")
    p(f"s_add_u32 s{sT}, s{sT}, s{sHG}")
    p(f"v_lshlrev_b32 v{vLin}, 4, v0")
    p("v_bfe_u32 v1, v0, 2, 2")
    p("v_lshlrev_b32 v1, 1, v1")
    p("v_lshrrev_b32 v2, 5, v0")
    p("v_add_u32 v1, v1, v2")
    p(f"v_mul_u32_u24 v{vTl}, {PCS}, v1")
    p("v_bfe_u32 v1, v0, 4, 1")
    p(f"v_lshl_add_u32 v{vTl}, v1, 5, v{vTl}")
    p("v_and_b32 v1, 1, v0")
    p(f"v_lshl_add_u32 v{vTl}, v1, 4, v{vTl}")
    p("v_bfe_u32 v1, v0, 1, 1")
    p(f"v_lshl_add_u32 v{vTl}, v1, 3, v{vTl}")
    p("s_waitcnt lgkmcnt(0)")
    p(f"s_lshl_b32 s{sT2}, s{sT}, 19")
    p(f"s_add_u32 s{sK}, s58, s{sT2}\ns_addc_u32 s{sK+1}, s59, 0\ns_mov_b32 s{sK+2}, 524288\ns_mov_b32 s{sK+3}, 0x20000")
    p(f"s_add_u32 s{sV}, s60, s{sT2}\ns_addc_u32 s{sV+1}, s61, 0\ns_mov_b32 s{sV+2}, 524288\ns_mov_b32 s{sV+3}, 0x20000")
    p(f"s_lshl_b32 s{sT2}, s{sHG}, 10")
    p(f"s_add_u32 s{sWQ}, s62, s{sT2}\ns_addc_u32 s{sWQ+1}, s63, 0\ns_sub_u32 s{sWQ+2}, 5242880, s{sT2}\ns_mov_b32 s{sWQ+3}, 0x20000")
    p(f"s_mul_i32 s{sT2}, s{sHG}, {512*1280}")
    p(f"s_add_u32 s{sWO}, s64, s{sT2}\ns_addc_u32 s{sWO+1}, s65, 0\ns_mov_b32 s{sWO+2}, {512*1280}\ns_mov_b32 s{sWO+3}, 0x20000")
    p(f"s_mul_i32 s{sT2}, s{sB}, 204800")
    p(f"s_add_u32 s{sX}, s56, s{sT2}\ns_addc_u32 s{sX+1}, s57, 0\ns_mov_b32 s{sX+2}, 204800\ns_mov_b32 s{sX+3}, 0x20000")
    p(f"s_mul_i32 s{sT2}, s{sT}, {SLAB}")
    p(f"s_add_u32 s{sPO}, s66, s{sT2}\ns_addc_u32 s{sPO+1}, s67, 0\ns_mov_b32 s{sPO+2}, {SLAB}\ns_mov_b32 s{sPO+3}, 0x20000")
    p(f"s_cmp_ge_u32 s{sWave}, 5")
    p("s_cbranch_scc1 L_P")

    p("v_lshrrev_b32 v1, 1, v0")
    p("v_lshlrev_b32 v1, 13, v1")
    p("v_and_b32 v2, 1, v0")
    p(f"v_lshl_add_u32 v3, v2, 7, v1")
    p(f"s_lshl_b32 s{sT}, s{sWave}, 18")
    p("v_lshlrev_b32 v4, 7, v0")
    p(f"s_lshl_b32 s{sT2}, s{sWave}, 13")
    for i in range(4):
        p(f"buffer_load_dword v{vDum}, v3, {srd(sWQ)}, s{sT} offen")
        p(f"buffer_load_dword v{vDum}, v4, {srd(sX)}, s{sT2} offen")
        p(f"s_add_u32 s{sT}, s{sT}, {5<<18}")
        p(f"s_add_u32 s{sT2}, s{sT2}, {5<<13}")
    p(f"buffer_load_dword v{vDum}, v4, {srd(sX)}, s{sT2} offen")
    p("v_and_b32 v1, 3, v0")
    p("v_lshlrev_b32 v1, 1, v1")
    p("v_bfe_u32 v2, v0, 2, 1")
    p("v_add_u32 v1, v1, v2")
    p(f"v_mul_u32_u24 v{vKl}, {PCS}, v1")
    p("v_bfe_u32 v1, v0, 3, 2")
    p(f"v_lshl_add_u32 v{vKl}, v1, 8, v{vKl}")
    p("v_bfe_u32 v1, v0, 3, 1")
    p("v_lshrrev_b32 v2, 5, v0")
    p("v_xor_b32 v1, v1, v2")
    p(f"v_lshl_add_u32 v{vKl}, v1, 4, v{vKl}")
    p(f"v_add_u32 v{vKl}, {KR}, v{vKl}")
    p(f"s_lshl_b32 s{sT}, s{sWave}, 11")
    p(f"v_add_u32 v{vDv}, s{sT}, v{vLin}")
    p("v_and_b32 v1, 16, v0")
    p(f"v_xor_b32 v{vDk}, v1, v{vDv}")
    p(f"s_mul_i32 s{sMK}, s{sWave}, {2*PCS}")
    p(f"s_add_u32 s{sMV}, s{sMK}, {VR}")
    p(f"s_add_u32 s{sMK}, s{sMK}, {KR}")
    p(f"s_mov_b32 s{sC}, {f2u(SCALE)}")
    p(f"s_mov_b32 s{sFlag}, 0")
    p(f"s_mov_b32 s{sLim}, 63")
    p(f"v_mov_b32 v{vL}, 1.0")
    p(f"v_mov_b32 v{vM}, 0")
    p(f"v_mov_b32 v{vNmc}, 0")
    p(f"v_mov_b32 v{vThr}, 0")
    def dma_k(slot_expr):
        p(f"s_add_u32 m0, s{sMK}, {slot_expr}")
        p("s_nop 0")
        p(f"buffer_load_dwordx4 v{vDk}, {srd(sK)}, 0 offen{nt_kv} lds")
        p("s_add_u32 m0, m0, 32")
        p("s_nop 0")
        p(f"buffer_load_dwordx4 v{vDk}, {srd(sK)}, 0 offen offset:1024{nt_kv} lds")
        p(f"v_add_u32 v{vDk}, 0x2000, v{vDk}")
    def dma_v(slot_expr):
        p(f"s_add_u32 m0, s{sMV}, {slot_expr}")
        p("s_nop 0")
        p(f"buffer_load_dwordx4 v{vDv}, {srd(sV)}, 0 offen{nt_kv} lds")
        p("s_add_u32 m0, m0, 32")
        p("s_nop 0")
        p(f"buffer_load_dwordx4 v{vDv}, {srd(sV)}, 0 offen offset:1024{nt_kv} lds")
        p(f"v_add_u32 v{vDv}, 0x2000, v{vDv}")
    p(f"s_cmp_eq_u32 s{sWave}, 4")
    p("s_cbranch_scc1 L_A4init")
    dma_k(0)
    for i in range(1, 4):
        dma_k(i * SLOT); dma_v((i - 1) * SLOT)
    p("s_branch L_Aidle")
    p("L_A4init:")
    p(f"v_mov_b32 v{vDk}, v3")
    p(f"s_mov_b32 s{sLim}, 0")
    p("L_Aidle:")
    def touch(gexpr_reg, add, lbl):
        p(f"s_add_u32 s{sT}, s{gexpr_reg}, {add}")
        p(f"s_sub_u32 s{sT2}, s{sT}, 16")
        p(f"s_cmp_ge_u32 s{sT2}, 48")
        p(f"s_cbranch_scc1 {lbl}")
        p(f"s_and_b32 s{sT2}, s{sT}, 15")
        p(f"s_mul_i32 s{sT2}, s{sT2}, {40*8192}")
        p(f"s_lshr_b32 s{sT}, s{sT}, 4")
        p(f"s_lshl_b32 s{sT}, s{sT}, 8")
        p(f"s_add_u32 s{sT}, s{sT}, s{sT2}")
        p(f"buffer_load_dword v{vDum}, v{vDk}, {srd(sWQ)}, s{sT} offen")
        p(f"s_add_u32 s{sT}, s{sT}, {8*8192}")
        p(f"buffer_load_dword v{vDum}, v{vDk}, {srd(sWQ)}, s{sT} offen")
    TD = opts.get('td', 8)
    p(f"s_mov_b32 s{sT4}, 0")
    p("s_barrier")
    p("L_Aidle_loop:")
    p(f"s_cmp_lg_u32 s{sWave}, 4")
    p("s_cbranch_scc1 L_Aidle_nt")
    touch(sT4, TD, "L_Aidle_nt")
    p("L_Aidle_nt:")
    p(f"s_add_u32 s{sT4}, s{sT4}, 1")
    p(f"s_cmp_lt_u32 s{sT4}, 17")
    p("s_cbranch_scc0 L_Aidle_done")
    p("s_barrier")
    p("s_branch L_Aidle_loop")
    p("L_Aidle_done:")
    p("s_waitcnt vmcnt(10)")
    p("s_barrier")
    p(f"s_mov_b32 s{sIt}, 0")
    p(f"s_mov_b32 s{sPrev}, {3*SLOT}\ns_mov_b32 s{sCur}, {4*SLOT}\ns_mov_b32 s{sNext}, 0\ns_mov_b32 s{sNext2}, {SLOT}")
    p(f"v_mov_b32 v{vKa}, v{vKl}")
    for f in range(4):
        p(f"ds_read_b128 {vr(F+4*f,4)}, v{vKa} offset:{32*f}")
    p("s_branch L_A_body1")

    side = Prog()
    def abody(par):
        cur = [SA, SB][par]; nxt = [SA, SB][par ^ 1]
        lg = Q(p, "lgkmcnt", 15)
        tok = {}
        for f in range(4): tok[f] = lg.issue()
        p(f"L_A_body{par}:")
        if par == 1:
            p(f"s_and_b32 s{sT}, s{sIt}, 15")
            p("s_cbranch_scc0 L_qload")
            p("L_qload_back:")
        p(f"s_cmp_ge_u32 s{sIt}, s{sLim}")
        p(f"s_cbranch_scc1 L_alt{par}")
        dma_k(f"s{sCur}"); dma_v(f"s{sPrev}")
        p(f"L_alt_back{par}:")
        p(f"s_cmp_lg_u32 s{sFlag}, 0")
        p(f"s_cbranch_scc1 L_pt2_{par}")
        p(f"L_pt2_back{par}:")
        p(f"s_add_u32 s{sT}, s{sCur}, {VR}")
        p(f"v_add_u32 v{vVa}, s{sT}, v{vTl}")
        fma = lambda base, r: f"v_fma_f32 v{base+r}, v{base+r}, s{sC}, v{vNmc}"
        exp = lambda base, r: f"v_exp_f32 v{base+r}, v{base+r}"
        add = lambda base, r: f"v_add_f32 v{vL}, v{vL}, v{base+r}"
        cvt = lambda base, i: f"v_cvt_pk_bf16_f32 v{base+i}, v{base+2*i}, v{base+2*i+1}"
        c = cur; n = nxt
        gaps = {
            -1: [fma(c, 8)],
            0: [fma(c, 9), exp(c, 8), cvt(c, 0)],
            1: [fma(c, 10), exp(c, 9), add(c, 8), cvt(c, 1)],
            2: [fma(c, 11), exp(c, 10), add(c, 9), cvt(c, 2)],
            3: [fma(c, 12), exp(c, 11), add(c, 10), cvt(c, 3), f"v_add_u32 v{vKa}, s{sNext2}, v{vKl}"],
            4: [fma(c, 13), exp(c, 12), add(c, 11), cvt(c + 8, 0)],
            5: [fma(c, 14), exp(c, 13), add(c, 12), cvt(c + 8, 1)],
            6: [fma(c, 15), exp(c, 14), add(c, 13)],
            7: [exp(c, 15), add(c, 14), cvt(c + 8, 2)],
            8: [add(c, 15), cvt(c + 8, 3)],
            9: [f"v_max3_f32 v{t0}, v{n}, v{n+1}, v{n+2}", f"v_max3_f32 v{t1}, v{n+7}, v{n+8}, v{n+9}",
                f"v_max3_f32 v{t0}, v{t0}, v{n+3}, v{n+4}", f"v_max3_f32 v{t1}, v{t1}, v{n+10}, v{n+11}"],
            10: [f"v_max3_f32 v{t0}, v{t0}, v{n+5}, v{n+6}", f"v_max3_f32 v{t1}, v{t1}, v{n+12}, v{n+13}",
                 f"v_max3_f32 v{t0}, v{t0}, v{n+14}, v{n+15}", f"v_max_f32 v{t0}, v{t0}, v{t1}", "CHECK",
                 fma(n, 0), fma(n, 1)],
            11: [exp(n, 0), fma(n, 2), exp(n, 1), add(n, 0), fma(n, 3)],
            12: [exp(n, 2), add(n, 1), exp(n, 3), add(n, 2), fma(n, 4)],
            13: [exp(n, 4), add(n, 3), fma(n, 5), fma(n, 6)],
            14: [exp(n, 5), add(n, 4), exp(n, 6), add(n, 5), fma(n, 7)],
            15: [exp(n, 7), add(n, 6), "ROT", add(n, 7)],
        }
        def emit_gap(g):
            for x in gaps[g]:
                if x == "CHECK":
                    if par == 1:
                        p(f"s_and_b32 s{sT}, s{sIt}, 15")
                        p("s_cbranch_scc0 L_newhead")
                    p(f"v_cmp_gt_f32 vcc, v{t0}, v{vThr}")
                    p(f"s_cbranch_vccnz L_rare{par}")
                    p(f"L_rare_back{par}:")
                elif x == "ROT":
                    p(f"s_mov_b32 s{sPrev}, s{sCur}\ns_mov_b32 s{sCur}, s{sNext}\ns_mov_b32 s{sNext}, s{sNext2}")
                    p(f"s_add_u32 s{sNext2}, s{sNext2}, {SLOT}")
                    p(f"s_cmp_ge_u32 s{sNext2}, {NKV*SLOT}")
                    p(f"s_cselect_b32 s{sNext2}, 0, s{sNext2}")
                    p(f"s_add_u32 s{sIt}, s{sIt}, 1")
                else:
                    p(x)
        def read(f):
            b = F + 4 * (f & 3)
            if f < 8 or f >= 16:
                p(f"ds_read_b128 {vr(b,4)}, v{vKa} offset:{32*(f&7)}")
                tok[f] = lg.issue()
            else:
                s = (f - 8) >> 2; dt = (f - 8) & 3
                for e in range(2):
                    p(f"ds_read_b64_tr_b16 {vr(b+2*e,2)}, v{vVa} offset:{(2*s+e)*256+dt*64}")
                tok[f] = lg.issue(2)
        emit_gap(-1)
        for f in range(16):
            lg.wait(tok[f])
            b = F + 4 * (f & 3)
            if f < 8: mfma(p, nxt, b, QR + 4 * f, czero=(f == 0))
            else:
                s = (f - 8) >> 2; dt = (f - 8) & 3
                mfma(p, O + 16 * dt, b, cur + 8 * s)
            read(f + 4)
            emit_gap(f)
        p("s_waitcnt vmcnt(10)")
        p("s_barrier")
        q = side
        q(f"L_alt{par}:")
        q(f"s_cmp_eq_u32 s{sWave}, 4")
        q(f"s_cbranch_scc1 L_alt4_{par}")
        q("s_waitcnt vmcnt(0)")
        q(f"s_branch L_alt_back{par}")
        q(f"L_alt4_{par}:")
        q(f"s_add_u32 s{sT}, s{sIt}, {17+TD}")
        q(f"s_cmp_ge_u32 s{sT}, 64")
        q(f"s_cbranch_scc1 L_alt_back{par}")
        q(f"s_and_b32 s{sT2}, s{sT}, 15")
        q(f"s_mul_i32 s{sT2}, s{sT2}, {40*8192}")
        q(f"s_lshr_b32 s{sT}, s{sT}, 4")
        q(f"s_lshl_b32 s{sT}, s{sT}, 8")
        q(f"s_add_u32 s{sT}, s{sT}, s{sT2}")
        q(f"buffer_load_dword v{vDum}, v{vDk}, {srd(sWQ)}, s{sT} offen")
        q(f"s_add_u32 s{sT}, s{sT}, {8*8192}")
        q(f"buffer_load_dword v{vDum}, v{vDk}, {srd(sWQ)}, s{sT} offen")
        q(f"s_branch L_alt_back{par}")
        def fullmax():
            q(f"v_mov_b32 v{t1}, v{t0}")
            q(f"v_permlane32_swap_b32 v{t0}, v{t1}")
            q(f"v_max_f32 v{t0}, v{t0}, v{t1}")
        def setm():
            q(f"v_mov_b32 v{vM}, v{t0}")
            q(f"v_mul_f32 v{vNmc}, s{sC}, v{t0}")
            q(f"v_sub_f32 v{vNmc}, 0, v{vNmc}")
            q(f"v_add_f32 v{vThr}, {hex(f2u(THR_RAW))}, v{t0}")
        q(f"L_rare{par}:")
        fullmax()
        q(f"v_max_f32 v{t0}, v{t0}, v{vM}")
        q(f"v_sub_f32 v{t1}, v{vM}, v{t0}")
        q(f"v_mul_f32 v{t1}, s{sC}, v{t1}")
        q(f"v_exp_f32 v{vFac}, v{t1}")
        setm()
        q(f"v_mul_f32 v{vL}, v{vL}, v{vFac}")
        q(f"s_mov_b32 s{sFlag}, 1")
        q(f"s_branch L_rare_back{par}")
        if par == 1:
            q("L_newhead:")
            fullmax()
            q(f"v_mov_b32 v{t1}, v{vL}")
            q(f"v_permlane32_swap_b32 v{vL}, v{t1}")
            q(f"v_add_f32 v{t1}, v{vL}, v{t1}")
            q(f"v_rcp_f32 v{vFac}, v{t1}")
            q(f"v_mov_b32 v{vL}, 0")
            setm()
            q(f"s_mov_b32 s{sFlag}, 2")
            q(f"s_branch L_rare_back{par}")
            q("L_qload:")
            q(f"s_lshl_b32 s{sT}, s{sWave}, 13")
            q(f"v_add_u32 v{t2}, s{sT}, v{vLin}")
            for j in range(8):
                q(f"ds_read_b128 {vr(QR+4*j,4)}, v{t2} offset:{QS+1024*j}")
            q("s_waitcnt lgkmcnt(0)")
            q("s_branch L_qload_back")
        q(f"L_pt2_{par}:")
        if par == 0:
            q(f"s_cmp_eq_u32 s{sFlag}, 2")
            q("s_cbranch_scc1 L_final")
        q(f"s_mov_b32 s{sFlag}, 0")
        for r in range(64):
            q(f"v_mul_f32 v{O+r}, v{O+r}, v{vFac}")
        q(f"s_branch L_pt2_back{par}")
    def final_into(q, dst, zero=True):
        for r in range(0, 64, 2):
            q(f"v_mul_f32 v{O+r}, v{O+r}, v{vFac}")
            q(f"v_mul_f32 v{O+r+1}, v{O+r+1}, v{vFac}")
            q(f"v_cvt_pk_bf16_f32 v{dst+r//2}, v{O+r}, v{O+r+1}")
    abody(0)
    abody(1)
    p(f"s_cmp_lt_u32 s{sIt}, 65")
    p("s_cbranch_scc1 L_A_body0")
    q = side
    q("L_final:")
    q(f"s_mov_b32 s{sFlag}, 0")
    q(f"s_cmp_eq_u32 s{sIt}, 17")
    q("s_cbranch_scc1 L_final0")
    q(f"s_cmp_eq_u32 s{sIt}, 33")
    q("s_cbranch_scc1 L_final1")
    q(f"s_cmp_eq_u32 s{sIt}, 49")
    q("s_cbranch_scc1 L_final2")
    q("L_final_zero:")
    for r in range(64): q(f"v_mov_b32 v{O+r}, 0")
    q("s_branch L_pt2_back0")
    for h in range(3):
        q(f"L_final{h}:")
        final_into(q, SV[h])
        if h == 2:
            q(f"s_cmp_lg_u32 s{sWave}, 4")
            q("s_cbranch_scc1 L_final_zero")
            for j in range(24):
                q(f"ds_write_b128 v{vLin}, {vr(SV[0]+4*j,4)} offset:{QS+1024*j}")
                if j % 8 == 7: q("s_waitcnt lgkmcnt(0)")
        q("s_branch L_final_zero")
    p("s_waitcnt lgkmcnt(0)")
    final_into(p, QR)
    p(f"s_cmp_eq_u32 s{sWave}, 4")
    p("s_cbranch_scc1 L_A4_tail")

    BREG = [SV[0], SV[1], SV[2], QR]
    def taddr(qd):
        return [(vTl, WR), (vTl, QS), (vKa, 0), (vVa, 0)][qd]
    p(f"v_add_u32 v{vKa}, {KR}, v{vTl}")
    p(f"v_add_u32 v{vVa}, {VR}, v{vTl}")
    p(f"s_mul_i32 s{sT}, s{sWave}, 40960")
    p(f"v_add_u32 v{t2}, s{sT}, v{vLin}")
    p(f"s_mov_b32 s{sIt}, 0")
    p(f"s_mov_b32 s{sSt0}, 0\ns_mov_b32 s{sSt1}, 4096")
    TF = [F, F + 4, F + 8, F + 12, SA, SA + 4, SA + 8, SA + 12]
    lg = Q(p, "lgkmcnt", 15); tok = {}
    NB = 7
    def tread(f):
        ff = f & 127
        kk = ff >> 2; nt = ff & 3; qd = kk >> 3; ts = (kk >> 1) & 3; s = kk & 1
        a, im = taddr(qd); b = TF[f & 7]
        for e in range(2):
            p(f"ds_read_b64_tr_b16 {vr(b+2*e,2)}, v{a} offset:{im+ts*SLOT+(2*s+e)*256+nt*64}")
        tok[f] = lg.issue(2)
    def tstore(pp, acc, tmp, nt, vo):
        for i in range(8):
            pp(f"v_cvt_pk_bf16_f32 v{tmp+i}, v{acc+2*i}, v{acc+2*i+1}")
        so = sSt0 if nt < 2 else sSt1
        for s in range(2):
            pp(f"buffer_store_dwordx4 {vr(tmp+4*s,4)}, v{vo}, {srd(sPO)}, s{so} offen offset:{(nt&1)*2048+s*1024}")
    for f in range(NB): tread(f)
    p("L_T_loop:")
    for f in range(128):
        kk = f >> 2; nt = f & 3; qd = kk >> 3
        if kk == 0:
            p(f"s_cmp_eq_u32 s{sIt}, 0")
            p(f"s_cbranch_scc1 L_T_skip{nt}")
            tstore(p, O + 16 * nt, SB + 8 * (nt & 1), nt, t2)
            if nt == 3:
                p(f"s_add_u32 s{sSt0}, s{sSt0}, 8192\ns_add_u32 s{sSt1}, s{sSt1}, 8192")
            p(f"L_T_skip{nt}:")
        lg.wait(tok[f])
        mfma(p, O + 16 * nt, TF[f & 7], BREG[qd] + 4 * (kk & 7), czero=(kk == 0))
        tread(f + NB)
        if (f & 31) == 31:
            if f == 127:
                p(f"s_add_u32 s{sIt}, s{sIt}, 1")
                p(f"s_cmp_ge_u32 s{sIt}, 5")
                p("s_cbranch_scc1 L_T_done")
            p("s_barrier")
    p("s_branch L_T_loop")
    p("L_T_done:")
    for nt in range(4):
        tstore(p, O + 16 * nt, SB + 8 * (nt & 1), nt, t2)
    p("s_endpgm")

    p("L_P:")
    p(f"s_sub_u32 s{sT}, s{sWave}, 5")
    p(f"s_mul_i32 s{sT2}, s{sT}, 81920")
    p("v_and_b32 v1, 31, v0")
    p(f"v_mul_u32_u24 v{vX}, 1280, v1")
    p("v_lshrrev_b32 v1, 5, v0")
    p(f"v_lshl_add_u32 v{vX}, v1, 4, v{vX}")
    p(f"v_add_u32 v{vX}, s{sT2}, v{vX}")
    p(f"s_mov_b32 s{sX2}, 40960")
    p(f"s_lshl_b32 s{sT2}, s{sT}, 14")
    p(f"v_add_u32 v{vQw}, s{sT2}, v{vLin}")
    def wvoff(dst, stride):
        p(f"v_lshrrev_b32 v{t0}, 9, v{vLin}")
        p(f"v_lshlrev_b32 v{t0}, 2, v{t0}")
        p(f"v_bfe_u32 v{t1}, v{vLin}, 8, 1")
        p(f"v_add_u32 v{t0}, v{t0}, v{t1}")
        p(f"v_mul_u32_u24 v{t0}, {4*stride}, v{t0}")
        p(f"v_and_b32 v{t1}, 0xf0, v{vLin}")
        p(f"v_add_u32 v{dst}, v{t0}, v{t1}")
    wvoff(vWq, 8192)
    wvoff(vWo, 1280)
    p(f"s_mov_b32 s{sIt}, 0")
    p(f"s_mov_b32 s{sCol}, 0\ns_mov_b32 s{sColN}, 256")
    p(f"s_cmp_eq_u32 s{sWave}, 7")
    p("s_cbranch_scc1 L_P2")

    def pwave(nq, dma, tag):
        vm = Q(p, "vmcnt", 63); lg = Q(p, "lgkmcnt", 15)
        xt = {}; wt = {}; ft = {}
        def xload(gi):
            b = XB[gi & 1]
            for ks in range(4):
                for tq in range(nq):
                    so = "0" if tq == 0 else f"s{sX2}"
                    p(f"buffer_load_dwordx4 {vr(b+(ks*2+tq)*4,4)}, v{vX}, {srd(sX)}, {so} offen offset:{((gi%10)*4+ks)*32}")
                xt[(gi, ks)] = vm.issue(nq)
        def wdma(tj):
            col = sCol if tj < 20 else sColN
            for pc in range(8):
                i = pc >> 1; h = pc & 1
                p(f"s_mov_b32 m0, {WR+(tj%NW)*SLOT+pc*PCS}")
                p(f"s_add_u32 s{sT}, s{col}, {((tj%20)*32+8*h+i)*8192}")
                p(f"buffer_load_dwordx4 v{vWq}, {srd(sWQ)}, s{sT} offen lds")
            wt[tj] = vm.issue(8)
        def fread(f):
            ff = f % 160
            tj = ff >> 3; s = (ff >> 2) & 1; nt = ff & 3; b = F + 4 * (f & 3)
            lg.room(2)
            for e in range(2):
                p(f"ds_read_b64_tr_b16 {vr(b+2*e,2)}, v{vTl} offset:{WR+(tj%NW)*SLOT+(2*s+e)*256+nt*64}")
            ft[f] = lg.issue(2)
        def handoff(nt):
            for tq in range(nq):
                a = ACC + 16 * (tq * 4 + nt)
                for s in range(2):
                    for i in range(4):
                        p(f"v_cvt_pk_bf16_f32 v{a+8*s+i}, v{a+8*s+2*i}, v{a+8*s+2*i+1}")
                    lg.room(1)
                    p(f"ds_write_b128 v{vQw}, {vr(a+8*s,4)} offset:{QS+tq*8192+(2*nt+s)*1024}")
                    lg.issue()
        I_first = lambda tj: (8 * tj - 4) // 10
        I_rel = lambda tj: (8 * tj + 7) // 10
        issue_at = {}
        for tj in range(NW, NW + 20): issue_at.setdefault(I_rel(tj - NW) + 1, []).append(tj)
        if 16 in issue_at:
            issue_at.setdefault(0, []).extend(t - 20 for t in issue_at.pop(16))
        wait_at = {}
        for iv, l in issue_at.items():
            for tj in l:
                w = I_first(tj) - 1
                assert w >= iv, (tj, iv, w)
                if w >= 16: w, tj = w - 16, tj - 20
                wait_at.setdefault(w, []).append(tj)
        pre = sorted(set(range(NW)) - set(issue_at.get(0, [])))
        if dma:
            for tj in pre: wdma(tj)
        xload(0); xload(1)
        vm.drain()
        p("s_barrier")
        for f in range(4): fread(f)
        def period():
            for f in range(160):
                iv = f // 10
                if f % 10 == 0 and dma:
                    for tj in issue_at.get(iv, []): wdma(tj)
                j = f >> 2; nt = f & 3; gi = j >> 2; ks = j & 3
                if j == 0: handoff(nt)
                if nt == 0: vm.wait(xt[(gi, ks)])
                lg.wait(ft[f])
                for tq in range(nq):
                    mfma(p, ACC + 16 * (tq * 4 + nt), F + 4 * (f & 3), XB[gi & 1] + (ks * 2 + tq) * 4, czero=(j == 0))
                fread(f + 4)
                if f % 16 == 15: xload(gi + 2)
                if f % 10 == 9:
                    if dma:
                        for tj in wait_at.get(iv, []): vm.wait(wt[tj])
                    if f == 159:
                        p(f"s_mov_b32 s{sCol}, s{sColN}")
                        p(f"s_add_u32 s{sColN}, s{sColN}, 256")
                        p(f"s_min_u32 s{sColN}, s{sColN}, 768")
                        p(f"s_add_u32 s{sIt}, s{sIt}, 1")
                        p(f"s_cmp_lt_u32 s{sIt}, 4")
                    p("s_barrier")
            for ks in range(4):
                xt[(0, ks)] = xt[(10, ks)]; xt[(1, ks)] = xt[(11, ks)]
            for tj in range(20, 20 + NW):
                if tj in wt: wt[tj - 20] = wt[tj]
            for f in range(4): ft[f] = ft[160 + f]
        mark = len(p.ins)
        period()
        del p.ins[mark:]
        p(f"L_P_loop{tag}:")
        period()
        p(f"s_cbranch_scc1 L_P_loop{tag}")
        for nt in range(4): handoff(nt)
        p("s_waitcnt vmcnt(0) lgkmcnt(0)")
        p("s_barrier")
    pwave(2, False, "a")
    p("s_branch L_Pidle")
    p("L_P2:")
    pwave(1, True, "b")
    p("L_Pidle:")
    REG = [WR, QS, KR, VR]
    p(f"s_sub_u32 s{sT}, s{sWave}, 4")
    p(f"s_mul_i32 s{sHS}, s{sT}, {SLOT}")
    p(f"s_mul_i32 s{sGB}, s{sT}, {32*1280}")
    def wo_dma(qd, lds_s, glob_s):
        for pc in range(8):
            i = pc >> 1; h = pc & 1
            p(f"s_add_u32 m0, {lds_s}, {REG[qd]+pc*PCS}")
            p(f"s_add_u32 s{sT}, {glob_s}, {(128*qd+8*h+i)*1280}")
            p(f"buffer_load_dwordx4 v{vWo}, {srd(sWO)}, s{sT} offen lds")
    def wo_both(qd):
        wo_dma(qd, f"s{sHS}", f"s{sGB}"); wo_dma(qd, "0", "0")
    wo_both(0)
    p("s_barrier")
    p("s_barrier")
    for j in range(24):
        p(f"ds_read_b128 {vr(SV[0]+4*j,4)}, v{vLin} offset:{QS+1024*j}")
        if j % 8 == 7: p("s_waitcnt lgkmcnt(0)")
    p("s_barrier")
    wo_both(1)
    p("s_barrier")
    p(f"v_lshlrev_b32 v{t2}, 3, v{vLin}")
    p(f"s_sub_u32 s{sT2}, s{sWave}, 5")
    p(f"s_lshl_b32 s{sT2}, s{sT2}, 13")
    p(f"v_add_u32 v{t2}, s{sT2}, v{t2}")
    p(f"s_mov_b32 s{sIt}, 69")
    p("L_Pidle_loop:")
    for i in range(3):
        p(f"buffer_load_dword v{vDum}, v{t2}, {srd(sWO)}, 0 offen")
        p(f"v_add_u32 v{t2}, {3*8192}, v{t2}")
    p(f"s_add_u32 s{sIt}, s{sIt}, 1")
    p(f"s_cmp_lt_u32 s{sIt}, 81")
    p("s_barrier")
    p("s_cbranch_scc1 L_Pidle_loop")
    p("s_waitcnt vmcnt(0)")
    wo_both(2)
    p("s_barrier")
    p("s_branch L_H")
    p("L_A4_tail:")
    p(f"v_add_u32 v{t2}, {O3}, v{vLin}")
    for j in range(8):
        p(f"ds_write_b128 v{t2}, {vr(QR+4*j,4)} offset:{1024*j}")
    wvoff(vWo, 1280)
    p(f"s_mov_b32 s{sHS}, 0\ns_mov_b32 s{sGB}, 0")
    p("s_waitcnt vmcnt(0) lgkmcnt(0)")
    p("L_H:")
    p(f"s_sub_u32 s{sT}, s{sWave}, 4")
    p(f"s_lshl_b32 s{sT2}, s{sT}, 6")
    p(f"v_add_u32 v{vTl}, s{sT2}, v{vTl}")
    p(f"v_add_u32 v{vKa}, {KR}, v{vTl}")
    p(f"v_add_u32 v{vVa}, {VR}, v{vTl}")
    p(f"s_lshl_b32 s{sT2}, s{sT}, 11")
    p(f"s_add_u32 s{sT2}, s{sT2}, {4*40960}")
    p(f"v_add_u32 v{t2}, s{sT2}, v{vLin}")
    p(f"v_add_u32 v{t1}, {O3}, v{vLin}")
    p(f"s_mov_b32 s{sIt}, 0")
    p(f"s_mov_b32 s{sSt0}, 0")
    p(f"s_add_u32 s{sGBn}, s{sGB}, 256")
    lg = Q(p, "lgkmcnt", 15); tok = {}
    def hread(k):
        kk = k & 31; qd = kk >> 3; ts = (kk >> 1) & 3; s = kk & 1
        a, im = taddr(qd); b = F + 4 * (k & 3)
        for e in range(2):
            p(f"ds_read_b64_tr_b16 {vr(b+2*e,2)}, v{a} offset:{im+ts*SLOT+(2*s+e)*256}")
        tok[k] = lg.issue(2)
    for k in range(4): hread(k)
    p("L_H_loop:")
    for kk in range(32):
        qd = kk >> 3
        if kk == 0:
            p(f"s_cmp_eq_u32 s{sIt}, 0")
            p("s_cbranch_scc1 L_H_skip")
            tstore(p, O, SB, 0, t2)
            p(f"s_add_u32 s{sSt0}, s{sSt0}, 8192")
            p("L_H_skip:")
        if (kk & 7) == 0:
            wo_dma((qd + 3) & 3, f"s{sHS}", f"s{sGB}" if qd == 0 else f"s{sGBn}")
        if kk == 8:
            p(f"s_cmp_lg_u32 s{sIt}, 0")
            p("s_cbranch_scc1 L_H_noq")
            p("s_waitcnt lgkmcnt(0)")
            for j in range(8):
                p(f"ds_read_b128 {vr(QR+4*j,4)}, v{t1} offset:{1024*j}")
            p("s_waitcnt lgkmcnt(0)")
            p("L_H_noq:")
        lg.wait(tok[kk])
        mfma(p, O, F + 4 * (kk & 3), BREG[qd] + 4 * (kk & 7), czero=(kk == 0))
        hread(kk + 4)
        if (kk & 7) == 7:
            if kk == 31:
                p(f"s_add_u32 s{sIt}, s{sIt}, 1")
                p(f"s_cmp_ge_u32 s{sIt}, 5")
                p("s_cbranch_scc1 L_H_done")
                p(f"s_mov_b32 s{sGB}, s{sGBn}")
                p(f"s_cmp_lt_u32 s{sIt}, 4")
                p(f"s_cselect_b32 s{sT}, 256, 0")
                p(f"s_add_u32 s{sGBn}, s{sGBn}, s{sT}")
            p("s_waitcnt vmcnt(8)")
            p("s_barrier")
    p("s_branch L_H_loop")
    p("L_H_done:")
    tstore(p, O, SB, 0, t2)
    p("L_exit:")
    p("s_endpgm")
    p.ins += side.ins
    n = p.fix_hazards(verbose=opts.get('verbose', False))
    print("hazard nops inserted:", n, "instrs:", len(p.ins), file=sys.stderr)

    r = Prog()
    r(f"{K2}:")
    r("s_cmp_ge_u32 s2, 1600")
    r("s_cbranch_scc1 L_r_exit")
    r("s_load_dwordx2 s[4:5], s[0:1], 40")
    r("s_load_dwordx2 s[6:7], s[0:1], 56")
    r(f"s_mul_hi_u32 s16, s2, {(2**32+49)//50}")
    r("s_mul_i32 s17, s16, 50")
    r("s_sub_u32 s17, s2, s17")
    r("s_lshl_b32 s17, s17, 8")
    r("v_add_u32 v1, s17, v0")
    r("v_lshlrev_b32 v2, 4, v1")
    r("s_waitcnt lgkmcnt(0)")
    r(f"s_mul_i32 s18, s16, {8*SLAB}")
    r(f"s_add_u32 s8, s6, s18\ns_addc_u32 s9, s7, 0\ns_mov_b32 s10, {8*SLAB}\ns_mov_b32 s11, 0x20000")
    r("s_mul_i32 s18, s16, 204800")
    r("s_add_u32 s12, s4, s18\ns_addc_u32 s13, s5, 0\ns_mov_b32 s14, 204800\ns_mov_b32 s15, 0x20000")
    r("s_mov_b32 s19, 0")
    for i in range(8):
        r(f"buffer_load_dwordx4 {vr(8+4*i,4)}, v2, s[8:11], s19 offen")
        if i < 7: r(f"s_add_u32 s19, s19, {SLAB}")
    r("v_lshrrev_b32 v3, 6, v1")
    r("v_mul_u32_u24 v4, 1639, v3")
    r("v_lshrrev_b32 v4, 16, v4")
    r("v_mul_u32_u24 v5, 40, v4")
    r("v_sub_u32 v5, v3, v5")
    r("v_and_b32 v6, 31, v1")
    r("v_lshl_add_u32 v6, v4, 5, v6")
    r("v_mul_u32_u24 v6, 1280, v6")
    r("v_lshl_add_u32 v6, v5, 5, v6")
    r("v_bfe_u32 v7, v1, 5, 1")
    r("v_lshl_add_u32 v6, v7, 4, v6")
    for i in range(8):
        r(f"s_waitcnt vmcnt({7-i})")
        for d in range(4):
            src = 8 + 4 * i + d
            if i == 0:
                r(f"v_lshlrev_b32 v{40+2*d}, 16, v{src}")
                r(f"v_and_b32 v{41+2*d}, 0xffff0000, v{src}")
            else:
                r(f"v_lshlrev_b32 v48, 16, v{src}")
                r(f"v_and_b32 v49, 0xffff0000, v{src}")
                r(f"v_add_f32 v{40+2*d}, v{40+2*d}, v48")
                r(f"v_add_f32 v{41+2*d}, v{41+2*d}, v49")
    for d in range(4):
        r(f"v_cvt_pk_bf16_f32 v{52+d}, v{40+2*d}, v{41+2*d}")
    r("buffer_store_dwordx4 v[52:55], v6, s[12:15], 0 offen")
    r("L_r_exit:")
    r("s_endpgm")
    r.fix_hazards()

    hdr = open('standalone__mha_block_cached__near_ridge.s.ref').read().split('\n')
    hdr = [l for l in hdr if l.startswith(';') and '@launch' not in l and not l.startswith('; Override') and not l.startswith('; grid=ceil')]
    out = "\n".join(hdr) + "\n"
    out += f"; @launch kernel={KN} grid=(256,1,1) block=(512,1,1) lds={LDS_BYTES}\n"
    out += f"; @launch kernel={K2} grid=(1600,1,1) block=(256,1,1) lds=0\n"
    out += '.amdgcn_target "amdgcn-amd-amdhsa--gfx950"\n.text\n'
    out += f".globl {KN}\n.p2align 8\n.type {KN},@function\n" + p.text()
    out += f".globl {K2}\n.p2align 8\n.type {K2},@function\n" + r.text()
    out += '.section .rodata,"a"\n'
    for name, nv, ns in ((KN, 256, 72), (K2, 56, 24)):
        out += f""".p2align 6
.amdhsa_kernel {name}
  .amdhsa_next_free_vgpr {nv}
  .amdhsa_next_free_sgpr {ns}
  .amdhsa_accum_offset {nv}
  .amdhsa_group_segment_fixed_size 0
  .amdhsa_kernarg_size 64
  .amdhsa_user_sgpr_count 2
  .amdhsa_user_sgpr_kernarg_segment_ptr 1
  .amdhsa_system_sgpr_workgroup_id_x 1
.end_amdhsa_kernel
"""
    return out

if __name__ == "__main__":
    opts = {}
    path = sys.argv[1]
    for a in sys.argv[2:]:
        k, v = a.split('='); opts[k] = int(v)
    open(path, 'w').write(gen(opts))
```

```python
import sys, math, struct
sys.path.insert(0, 'dev')
from asmlib import Prog, Q, Ins

KN = "standalone__mha_block_cached__near_ridge_kernel"
K2 = "reduce_kernel"

SLOT = 8448; PCS = 1056
WR = 0; NW = 5
KR = WR + NW * SLOT
VR = KR + 4 * SLOT
QS = VR + 4 * SLOT
O3 = QS + 4 * SLOT
Q40 = QS + 5 * SLOT
XL = QS + 40960
LDS_BYTES = XL + 3 * 4160
SLAB = 204800
FLG = 256 * SLAB
LCN = XL + 8192

O = 0; SA = 64; SB = 80; QR = 96; SV = [128, 160, 192]; F = 224
vKa, vTl, vVa, vT1, vDk, vDv, vM, vNmc, vThr, vL, vFac, t0, t1, t2, vLin, vDum = range(240, 256)
vX, vQw, vWq, vWo, vWqN, vWarm, vXw, vXr = vKa, vVa, vDk, vDv, vM, vNmc, vThr, vL
sXo = [None, 43, 46, 47]

sK, sV, sWQ, sWO, sX, sPO, sPA, sOUT, sDBG, sFL = 4, 8, 12, 16, 20, 24, 60, 72, 76, 68
sWave, sB, sHG, sIt = 28, 29, 30, 31
sMK, sMV = 32, 33
sCh = [34, 35, 36, 37, 38]
sT, sC, sBL, sHi, sT2, sT3 = 39, 40, 41, 42, 44, 45
sSt0, sSt1, sGB, sHS, sGBn, sT4 = 48, 49, 51, 52, 53, 54
sWc = [55, 56, 57, 58, 59]
sXc = [43, 46, 47, 50, 64]

SCALE = math.log2(math.e) / math.sqrt(128.0)
THR_RAW = 8.0 / SCALE
def f2u(x): return struct.unpack('<I', struct.pack('<f', x))[0]
def vr(b, n): return f"v[{b}:{b+n-1}]"
def srd(b): return f"s[{b}:{b+3}]"
def mfma(p, d, a, b, czero=False):
    p(f"v_mfma_f32_32x32x16_bf16 {vr(d,16)}, {vr(a,4)}, {vr(b,4)}, {'0' if czero else vr(d,16)}")

def gen(opts):
    p = Prog()
    PROF = opts.get('prof', 0)
    def stamp(pp, i, pst=0):
        if PROF and (opts.get('pst', 0) == int(pst) or i in (0, 9)):
            pp(f"{'s_memrealtime' if opts.get('rt') else 's_memtime'} s[{80+2*i}:{81+2*i}]")
            pp("s_waitcnt lgkmcnt(0)")
    def dump_stamps(pp):
        if PROF:
            pp("s_waitcnt vmcnt(0)\ns_mov_b32 s96, s65")
            stamp(pp, 9)
            pp("s_memrealtime s[100:101]\ns_waitcnt lgkmcnt(0)")
            pp(f"s_lshl_b32 s{sT}, s2, 3\ns_add_u32 s{sT}, s{sT}, s{sWave}\ns_lshl_b32 s{sT}, s{sT}, 6")
            pp(f"s_add_u32 s4, s66, 0x4000000\ns_addc_u32 s5, s67, 0\ns_mov_b32 s6, 0x100000\ns_mov_b32 s7, 0x20000")
            pp(f"v_mov_b32 v{t0}, s{sT}")
            for i in range(11):
                pp(f"v_mov_b32 v{t1}, s{80+2*i}")
                pp(f"buffer_store_dword v{t1}, v{t0}, s[4:7], 0 offen offset:{4*i}")
    p(f"{KN}:")
    p("s_cmp_ge_u32 s2, 256")
    p("s_cbranch_scc1 L_exit")
    p("s_load_dwordx8 s[56:63], s[0:1], 0")
    p("s_load_dwordx2 s[64:65], s[0:1], 32")
    p("s_load_dwordx2 s[66:67], s[0:1], 56")
    p("s_load_dwordx4 s[68:71], s[0:1], 40")
    if PROF:
        for i in range(10): p(f"s_mov_b32 s{80+2*i}, 0")
        p("s_memrealtime s[100:101]")
    stamp(p, 0)
    p("v_lshrrev_b32 v1, 6, v0\nv_and_b32 v0, 63, v0")
    p(f"v_readfirstlane_b32 s{sWave}, v1")
    bx = opts.get('bx', 8); hx = 32 // bx
    lhx = int(math.log2(hx)); lng = int(math.log2(8 // hx))
    p(f"s_and_b32 s{sT}, s2, 7\ns_lshr_b32 s{sT2}, s2, 3")
    p(f"s_lshr_b32 s{sB}, s{sT}, {lng}\ns_mul_i32 s{sB}, s{sB}, {bx}")
    p(f"s_lshr_b32 s{sBL}, s{sT2}, {lhx}\ns_add_u32 s{sB}, s{sB}, s{sBL}")
    p(f"s_and_b32 s{sHG}, s{sT}, {(8//hx)-1}\ns_lshl_b32 s{sHG}, s{sHG}, {lhx}")
    p(f"s_and_b32 s{sT3}, s{sT2}, {hx-1}\ns_add_u32 s{sHG}, s{sHG}, s{sT3}")
    if opts.get('rot', 1):
        p(f"s_add_u32 s{sT3}, s{sT3}, s{sBL}")
        p(f"s_mul_i32 s{sT2}, s{sT3}, 205\ns_lshr_b32 s{sT2}, s{sT2}, 10\ns_mul_i32 s{sT2}, s{sT2}, 5\ns_sub_u32 s{sCh[0]}, s{sT3}, s{sT2}")
    else:
        p(f"s_mov_b32 s{sCh[0]}, 0")
    for c in range(1, 5):
        p(f"s_add_u32 s{sCh[c]}, s{sCh[c-1]}, 1\ns_cmp_ge_u32 s{sCh[c]}, 5\ns_cselect_b32 s{sCh[c]}, 0, s{sCh[c]}")
    p(f"s_lshl_b32 s{sT}, s{sB}, 3\ns_add_u32 s{sT}, s{sT}, s{sHG}")
    p(f"s_and_b32 s{sHi}, s{sWave}, 3")
    p(f"v_lshlrev_b32 v{vLin}, 4, v0")
    p("v_bfe_u32 v1, v0, 2, 2\nv_lshlrev_b32 v1, 1, v1\nv_lshrrev_b32 v2, 5, v0\nv_add_u32 v1, v1, v2")
    p(f"v_mul_u32_u24 v{vTl}, {PCS}, v1")
    p(f"v_bfe_u32 v1, v0, 4, 1\nv_lshl_add_u32 v{vTl}, v1, 5, v{vTl}")
    p(f"v_and_b32 v1, 1, v0\nv_lshl_add_u32 v{vTl}, v1, 4, v{vTl}")
    p(f"v_bfe_u32 v1, v0, 1, 1\nv_lshl_add_u32 v{vTl}, v1, 3, v{vTl}")
    vKl = vFac
    p("v_and_b32 v1, 3, v0\nv_lshlrev_b32 v1, 1, v1\nv_bfe_u32 v2, v0, 2, 1\nv_add_u32 v1, v1, v2")
    p(f"v_mul_u32_u24 v{vKl}, {PCS}, v1")
    p(f"v_bfe_u32 v1, v0, 3, 2\nv_lshl_add_u32 v{vKl}, v1, 8, v{vKl}")
    p(f"v_bfe_u32 v1, v0, 3, 1\nv_lshrrev_b32 v2, 5, v0\nv_xor_b32 v1, v1, v2\nv_lshl_add_u32 v{vKl}, v1, 4, v{vKl}")
    p("s_waitcnt lgkmcnt(0)")
    p(f"s_lshl_b32 s{sT2}, s{sT}, 19")
    p(f"s_add_u32 s{sK}, s58, s{sT2}\ns_addc_u32 s{sK+1}, s59, 0\ns_mov_b32 s{sK+2}, 524288\ns_mov_b32 s{sK+3}, 0x20000")
    p(f"s_add_u32 s{sV}, s60, s{sT2}\ns_addc_u32 s{sV+1}, s61, 0\ns_mov_b32 s{sV+2}, 524288\ns_mov_b32 s{sV+3}, 0x20000")
    p(f"s_lshl_b32 s{sT2}, s{sHG}, 10")
    p(f"s_add_u32 s{sWQ}, s62, s{sT2}\ns_addc_u32 s{sWQ+1}, s63, 0\ns_sub_u32 s{sWQ+2}, 5242880, s{sT2}\ns_mov_b32 s{sWQ+3}, 0x20000")
    p(f"s_mul_i32 s{sT2}, s{sHG}, {512*1280}")
    p(f"s_add_u32 s{sWO}, s64, s{sT2}\ns_addc_u32 s{sWO+1}, s65, 0\ns_mov_b32 s{sWO+2}, {512*1280}\ns_mov_b32 s{sWO+3}, 0x20000")
    p(f"s_mul_i32 s{sT2}, s{sB}, 204800")
    p(f"s_add_u32 s{sX}, s56, s{sT2}\ns_addc_u32 s{sX+1}, s57, 0\ns_mov_b32 s{sX+2}, 204800\ns_mov_b32 s{sX+3}, 0x20000")
    p(f"s_add_u32 s{sOUT}, s68, s{sT2}\ns_addc_u32 s{sOUT+1}, s69, 0\ns_mov_b32 s{sOUT+2}, 204800\ns_mov_b32 s{sOUT+3}, 0x20000")
    p(f"s_mov_b32 s{sDBG}, s70\ns_mov_b32 s{sDBG+1}, s71\ns_mov_b32 s{sDBG+2}, 256\ns_mov_b32 s{sDBG+3}, 0x20000")
    p(f"s_lshl_b32 s{sT2}, s{sT2}, 3")
    p(f"s_add_u32 s{sPA}, s66, s{sT2}\ns_addc_u32 s{sPA+1}, s67, 0\ns_mov_b32 s{sPA+2}, {8*SLAB}\ns_mov_b32 s{sPA+3}, 0x20000")
    p(f"s_lshl_b32 s{sT2}, s{sB}, 10\ns_add_u32 s{sT2}, s{sT2}, {FLG}")
    p(f"s_add_u32 s{sFL}, s66, s{sT2}\ns_addc_u32 s{sFL+1}, s67, 0\ns_mov_b32 s{sFL+2}, 1024\ns_mov_b32 s{sFL+3}, 0x20000")
    if PROF: p("s_mov_b32 s65, s100")
    p(f"s_mul_i32 s{sT2}, s{sT}, {SLAB}")
    p(f"s_add_u32 s{sPO}, s66, s{sT2}\ns_addc_u32 s{sPO+1}, s67, 0\ns_mov_b32 s{sPO+2}, {SLAB}\ns_mov_b32 s{sPO+3}, 0x20000")
    for c in range(5):
        p(f"s_lshl_b32 s{sWc[c]}, s{sCh[c]}, 20")
    def tvoff(dst, stride):
        p(f"v_lshrrev_b32 v{t0}, 9, v{vLin}\nv_lshlrev_b32 v{t0}, 2, v{t0}\nv_bfe_u32 v{t1}, v{vLin}, 8, 1\nv_add_u32 v{t0}, v{t0}, v{t1}")
        p(f"v_mul_u32_u24 v{t0}, {4*stride}, v{t0}\nv_and_b32 v{t1}, 0xf0, v{vLin}\nv_add_u32 v{dst}, v{t0}, v{t1}")
    p(f"s_cmp_ge_u32 s{sWave}, 4")
    p("s_cbranch_scc1 L_PH")

    dist = [int(c) for c in str(opts.get('dist', 40040)).zfill(5)]
    assert sum(dist) == 8 and max(dist) <= 4 and dist[4] == 0
    NP = {'N': 0, 'B': 1, 'E': 2, 'D': 3, 'G': 4}
    VN = {v: k for k, v in NP.items()}
    def dma_tile(isk, slot):
        base, vo, sr = (sMK, vDk, sK) if isk else (sMV, vDv, sV)
        ops = [(f"s_add_u32 m0, s{base}, {slot*SLOT+32*j}",
                f"buffer_load_dwordx4 v{vo}, {srd(sr)}, 0 offen offset:{1024*j} nt lds") for j in range(4)]
        return ops, f"v_add_u32 v{vo}, 0x2000, v{vo}"
    WREG = [VR, KR, QS] * 4
    TF = [F, F + 4, F + 8, F + 12, SA, SA + 4, SA + 8, SA + 12]

    p(f"s_mov_b32 s{sT}, 0")
    acc = 0
    for w in range(4):
        p(f"s_cmp_eq_u32 s{sWave}, {w}\ns_cselect_b32 s{sT}, {acc}, s{sT}")
        acc += dist[w]
    p(f"s_lshl_b32 s{sT2}, s{sT}, 10")
    p(f"v_add_u32 v{vDv}, s{sT2}, v{vLin}")
    p(f"v_and_b32 v1, 16, v0\nv_xor_b32 v{vDk}, v1, v{vDv}")
    p(f"s_mul_i32 s{sMK}, s{sT}, {PCS}\ns_add_u32 s{sMV}, s{sMK}, {VR}\ns_add_u32 s{sMK}, s{sMK}, {KR}")
    p(f"s_mov_b32 s{sT4}, 0")
    for w in range(4):
        p(f"s_cmp_eq_u32 s{sWave}, {w}\ns_cselect_b32 s{sT4}, {dist[w]}, s{sT4}")
    def prefill(tiles, tag):
        for ti, (isk, slot) in enumerate(tiles):
            ops, adv = dma_tile(isk, slot)
            for j in range(max(dist)):
                p(f"s_cmp_le_u32 s{sT4}, {j}")
                p(f"s_cbranch_scc1 L_pf{tag}_{ti}")
                p(ops[j][0]); p(ops[j][1])
            p(f"L_pf{tag}_{ti}:")
            p(adv)
    tK, tV, tQ, xA, vSt = vM, vVa, vT1, vNmc, t2
    tb = {KR: tK, VR: tV, QS: tQ}
    p(f"v_add_u32 v{tK}, {KR}, v{vTl}\nv_add_u32 v{tV}, {VR}, v{vTl}\nv_add_u32 v{tQ}, {QS}, v{vTl}")
    p(f"s_mul_i32 s{sT}, s{sWave}, {SLOT}\nv_add_u32 v{xA}, s{sT}, v{vKl}")
    p(f"s_lshl_b32 s{sT}, s{sHG}, 3\ns_add_u32 s{sT}, s{sT}, s{sWave}\ns_cmp_lg_u32 s{sT}, 1\ns_cbranch_scc1 L_nfi")
    p(f"v_mov_b64 v[4:5], 0\nv_mov_b64 v[6:7], 0")
    p(f"buffer_store_dwordx4 v[4:7], v{vLin}, {srd(sFL)}, 0 offen sc1")
    p("s_waitcnt vmcnt(0)")
    p(f"s_lshl_b32 s{sT}, s{sB}, 3\nv_mov_b32 v1, s{sT}\nv_mov_b32 v2, 1\ns_mov_b64 exec, 1")
    p(f"buffer_atomic_add v2, v1, {srd(sDBG)}, 0 offen sc1")
    p("s_mov_b64 exec, -1")
    p("L_nfi:")
    lg = Q(p, "lgkmcnt", 15)
    ACCM = [O, SV[1]]
    tok = {}; bt = {}
    def pread(F_):
        u = F_ >> 5; f = F_ & 31
        ks = f >> 2; nt = f & 3; b = TF[F_ & 7]
        lg.room(2)
        for e in range(2):
            p(f"ds_read_b64_tr_b16 {vr(b+2*e,2)}, v{tb[WREG[u]]} offset:{(ks>>1)*SLOT+(2*(ks&1)+e)*256+nt*64}")
        tok[F_] = lg.issue(2)
    nxt = 0
    for u in range(10):
        c = u >> 1; h = u & 1
        p("s_barrier")
        if u == 0: stamp(p, 1)
        if u % 2 == 0: stamp(p, 1 + c, True)
        B = [SV[0], QR][c & 1]
        if h == 0:
            def bread(j):
                lg.room(1)
                p(f"ds_read_b128 {vr(B+4*j,4)}, v{xA} offset:{32*j}")
                bt[j] = lg.issue()
            bread(0)
            while nxt < 32 * u + 3: pread(nxt); nxt += 1
            for j in range(1, 8): bread(j)
        else:
            while nxt < 32 * u + 3: pread(nxt); nxt += 1
        if u == 8: prefill([(True, 0), (True, 1), (True, 2)], 'k')
        lim = 32 * (u + 1) + (4 if 1 <= u < 9 and opts.get('xb', 1) else 0)
        for f in range(32):
            F_ = 32 * u + f
            ks = f >> 2; nt = f & 3
            lg.wait(max(tok[F_], bt[ks]))
            mfma(p, ACCM[h] + 16 * nt, TF[F_ & 7], B + 4 * ks, czero=(c == 0 and ks == 0))
            k = 0
            while nxt < lim and nxt <= F_ + 6 and k < 2 and (nxt <= F_ + 3 or f >= 3 or h == 1):
                pread(nxt); nxt += 1; k += 1
            if h == 0 and f == 5:
                lg.wait(bt[7]); p("s_barrier")
            if u == 9 and 8 <= f < 24:
                for r in (2 * (f - 8), 2 * (f - 8) + 1):
                    p(f"v_cvt_pk_bf16_f32 v{QR+r}, v{O+2*r}, v{O+2*r+1}")
        if u == 9: p("s_waitcnt vmcnt(0)")
    p("s_barrier")
    stamp(p, 6, True)
    prefill([(False, 0)], 'v')
    p(f"s_lshl_b32 s{sT}, s{sWave}, 13\ns_add_u32 s{sT}, s{sT}, {QS}\nv_add_u32 v{t2}, s{sT}, v{vLin}")
    for nt in range(4):
        for s in range(2):
            a = ACCM[1] + 16 * nt + 8 * s
            for i in range(4): p(f"v_cvt_pk_bf16_f32 v{a+i}, v{a+2*i}, v{a+2*i+1}")
            p(f"ds_write_b128 v{t2}, {vr(a,4)} offset:{(2*nt+s)*1024}")
    p("L_Ainit:")
    p(f"v_add_u32 v{vKa}, {KR}, v{vKl}\nv_add_u32 v{vVa}, {VR}, v{vTl}")
    p(f"s_mov_b32 s{sC}, {f2u(SCALE)}")
    p(f"v_mov_b32 v{vL}, 1.0\nv_mov_b32 v{vM}, 0\nv_mov_b32 v{vNmc}, 0\nv_mov_b32 v{vThr}, 0")
    p(f"s_mov_b32 s{sIt}, 0")
    p("s_mov_b64 vcc, 0")
    if opts.get('prioa'): p(f"s_setprio {opts['prioa']}")
    p("s_waitcnt lgkmcnt(0)")
    stamp(p, 2)
    stamp(p, 7, True)
    for w in range(4):
        if dist[w]:
            p(f"s_cmp_eq_u32 s{sWave}, {w}\ns_cbranch_scc1 L_A_{VN[dist[w]]}2")
    p("s_branch L_A_N2")
    p("L_Astart:")
    side = Prog()

    def sm_ops(b):
        Fm = lambda r: (f"v_fma_f32 v{b+r}, v{b+r}, s{sC}, v{vNmc}", 1)
        Ex = lambda r: (f"v_exp_f32 v{b+r}, v{b+r}", 2)
        Ad = lambda r: (f"v_add_f32 v{vL}, v{vL}, v{b+r}", 1)
        Cv = lambda i: (f"v_cvt_pk_bf16_f32 v{b+8*(i>>2)+(i&3)}, v{b+2*i}, v{b+2*i+1}", 1)
        seq = [Fm(0)]
        for k in range(18):
            if k + 1 < 16: seq.append(Fm(k + 1))
            if k < 16: seq.append(Ex(k))
            if 1 <= k <= 16: seq.append(Ad(k - 1))
            if k >= 3 and k % 2 == 1: seq.append(Cv((k - 3) // 2))
        return seq
    gap_order = list(range(5, 16)) + [0, 1, 2]
    def split_ops(seq):
        tot = sum(c for _, c in seq); out = {g: [] for g in gap_order}; acc = 0
        for op, c in seq:
            gi = min(int((acc + c * 0.5) * len(gap_order) / tot), len(gap_order) - 1)
            out[gap_order[gi]].append(op); acc += c
        return out

    def abody(var, nm):
        Sn = [SA, SB][nm & 1]; Sn1 = [SA, SB][(nm + 1) & 1]
        tag = f"{var}{nm}"
        lg = Q(p, "lgkmcnt", 15); tok = {0: 0, 1: 0}
        p(f"L_A_{tag}:")
        vslot = nm; kslot = (nm + 2) & 3
        def read(m):
            b = F + 4 * (m & 3)
            if 2 <= m < 10:
                s = (m - 2) >> 2; dt = (m - 2) & 3
                for e in range(2):
                    p(f"ds_read_b64_tr_b16 {vr(b+2*e,2)}, v{vVa} offset:{vslot*SLOT+(2*s+e)*256+dt*64}")
                tok[m] = lg.issue(2)
            elif m < 18:
                p(f"ds_read_b128 {vr(b,4)}, v{vKa} offset:{kslot*SLOT+32*(m-10)}")
                tok[m] = lg.issue()
        head = split_ops(sm_ops(Sn1)); tail = split_ops(sm_ops(Sn))
        n = Sn1
        gaps = {g: list(head[g]) for g in range(5, 16)}
        for g in (0, 1, 2): gaps[g] = list(tail[g])
        gaps[3] = [f"v_max3_f32 v{t0}, v{n}, v{n+1}, v{n+2}", f"v_max3_f32 v{t1}, v{n+7}, v{n+8}, v{n+9}",
                   f"v_max3_f32 v{t0}, v{t0}, v{n+3}, v{n+4}", f"v_max3_f32 v{t1}, v{t1}, v{n+10}, v{n+11}"]
        gaps[4] = [f"v_max3_f32 v{t0}, v{t0}, v{n+5}, v{n+6}", f"v_max3_f32 v{t1}, v{t1}, v{n+12}, v{n+13}",
                   f"v_max3_f32 v{t0}, v{t0}, v{n+14}, v{n+15}", f"v_max_f32 v{t0}, v{t0}, v{t1}", "CHECK"]
        gaps[11] = ["PT2"] + gaps[11]
        if nm == 2: gaps[1] = gaps[1] + ["QLOAD"]
        dm = []
        if NP[var]:
            for isk, slot in ((True, (nm + 1) & 3), (False, (nm + 3) & 3)):
                ops, adv = dma_tile(isk, slot)
                for a, b in ops[:NP[var]]: dm.append([a, b])
                dm[-1].append(adv)
        dpos = opts.get('dpos', 0); dstep = opts.get('dstep', 2)
        read(2); read(3)
        for m in range(16):
            lg.wait(tok[m])
            b = F + 4 * (m & 3)
            if m < 2: mfma(p, Sn1, b, QR + 4 * (6 + m))
            elif m < 10:
                s = (m - 2) >> 2; dt = (m - 2) & 3
                mfma(p, O + 16 * dt, b, Sn + 8 * s)
            else: mfma(p, Sn, b, QR + 4 * (m - 10), czero=(m == 10))
            d = dm[(m - dpos) // dstep] if (m - dpos) % dstep == 0 and 0 <= (m - dpos) // dstep < len(dm) else None
            if d: p(d[0])
            read(m + 4)
            if d:
                for x in d[1:]: p(x)
            for x in gaps[m]:
                if x == "CHECK":
                    if nm == 3:
                        p(f"s_and_b32 s{sT}, s{sIt}, 3\ns_cbranch_scc0 L_newhead{var}")
                    p(f"v_cmp_gt_f32 vcc, v{t0}, v{vThr}\ns_cbranch_vccnz L_rare{tag}")
                    p(f"L_rare_back{tag}:")
                elif x == "PT2":
                    p(f"s_cbranch_vccnz L_pt2_{tag}")
                    p(f"L_pt2_back{tag}:")
                elif x == "QLOAD":
                    p(f"s_and_b32 s{sT}, s{sIt}, 3\ns_cbranch_scc0 L_qload{var}")
                    p(f"L_qload_back{var}:")
                else: p(x)
        p(f"s_waitcnt vmcnt({4*NP[var]}) lgkmcnt(0)")
        q = side
        def fullmax():
            q(f"v_mov_b32 v{t1}, v{t0}\nv_permlane32_swap_b32 v{t0}, v{t1}\nv_max_f32 v{t0}, v{t0}, v{t1}")
        def setm():
            q(f"v_mov_b32 v{vM}, v{t0}\nv_mul_f32 v{vNmc}, s{sC}, v{t0}\nv_sub_f32 v{vNmc}, 0, v{vNmc}")
            q(f"v_add_f32 v{vThr}, {hex(f2u(THR_RAW))}, v{t0}")
        q(f"L_rare{tag}:")
        fullmax()
        q(f"v_max_f32 v{t0}, v{t0}, v{vM}\nv_sub_f32 v{t1}, v{vM}, v{t0}\nv_mul_f32 v{t1}, s{sC}, v{t1}\nv_exp_f32 v{vFac}, v{t1}")
        setm()
        q(f"v_mul_f32 v{vL}, v{vL}, v{vFac}")
        q(f"s_branch L_rare_back{tag}")
        q(f"L_pt2_{tag}:")
        if nm == 3:
            q(f"s_and_b32 s{sT}, s{sIt}, 3\ns_cbranch_scc0 L_final{var}")
        for r in range(64): q(f"v_mul_f32 v{O+r}, v{O+r}, v{vFac}")
        q(f"s_branch L_pt2_back{tag}")
        if nm == 3:
            q(f"L_newhead{var}:")
            fullmax()
            q(f"v_mov_b32 v{t1}, v{vL}\nv_permlane32_swap_b32 v{vL}, v{t1}\nv_add_f32 v{t1}, v{vL}, v{t1}\nv_rcp_f32 v{vFac}, v{t1}\nv_mov_b32 v{vL}, 0")
            setm()
            q("s_mov_b64 vcc, exec")
            q(f"s_branch L_rare_back{tag}")
            q(f"L_final{var}:")
            for h in range(4):
                q(f"s_cmp_eq_u32 s{sIt}, {4*h+4}\ns_cbranch_scc1 L_final{var}{h}")
            q(f"L_final_zero{var}:")
            for r in range(0, 64, 2): q(f"v_mov_b64 {vr(O+r,2)}, 0")
            q(f"s_branch L_pt2_back{tag}")
            for h in range(4):
                if h == 3 and var != 'N':
                    q(f"L_final{var}{h}:"); q(f"s_branch L_final_zero{var}"); continue
                q(f"L_final{var}{h}:")
                stamp(q, 3 + h)
                dst = (SV + [QR])[h]
                for r in range(0, 64, 2):
                    q(f"v_mul_f32 v{O+r}, v{O+r}, v{vFac}\nv_mul_f32 v{O+r+1}, v{O+r+1}, v{vFac}")
                    q(f"v_cvt_pk_bf16_f32 v{dst+r//2}, v{O+r}, v{O+r+1}")
                if h == 3:
                    q("s_waitcnt vmcnt(0) lgkmcnt(0)\ns_branch L_A_end")
                    continue
                if h == 2 and var == 'N':
                    q(f"s_cmp_lg_u32 s{sWave}, 4\ns_cbranch_scc1 L_final_zero{var}")
                    q(f"v_add_u32 v{t2}, {QS}, v{vLin}\ns_waitcnt lgkmcnt(0)")
                    for j in range(24):
                        q(f"ds_write_b128 v{t2}, {vr(SV[0]+4*j,4)} offset:{1024*j}")
                        if j % 8 == 7: q("s_waitcnt lgkmcnt(0)")
                q(f"s_branch L_final_zero{var}")
        if nm == 2:
            q(f"L_qload{var}:")
            q(f"s_cmp_eq_u32 s{sIt}, 0\ns_cbranch_scc1 L_qload_back{var}")
            q(f"s_lshl_b32 s{sT}, s{sWave}, 13\ns_add_u32 s{sT}, s{sT}, {QS}\nv_add_u32 v{t2}, s{sT}, v{vLin}")
            q("s_waitcnt lgkmcnt(0)")
            for j in range(8): q(f"ds_read_b128 {vr(QR+4*j,4)}, v{t2} offset:{1024*j}")
            q("s_waitcnt lgkmcnt(0)")
            q(f"s_branch L_qload_back{var}")

    def avariant(var):
        for nm in (1, 2, 3, 0):
            abody(var, nm)
            if nm == 0:
                p(f"s_add_u32 s{sIt}, s{sIt}, 1")
                if var != 'N': p(f"s_cmp_lt_u32 s{sIt}, 16")
            p("s_barrier")
        if var != 'N': p(f"s_cbranch_scc1 L_A_{var}1")
        p("s_branch L_A_N1")
    for v in sorted(set(dist) - {0}): avariant(VN[v])
    avariant('N')
    p("L_A_end:")
    p("s_barrier")
    p(f"s_cmp_eq_u32 s{sWave}, 4")
    p("s_cbranch_scc1 L_A4_tail")

    BREG = [SV[0], SV[1], SV[2], QR]
    REG = [WR, QS, KR, VR]
    TB = [vTl, vT1, vKa, vVa]
    def tbases():
        p(f"v_add_u32 v{vT1}, {QS}, v{vTl}\nv_add_u32 v{vKa}, {KR}, v{vTl}\nv_add_u32 v{vVa}, {VR}, v{vTl}")
    vFlg, vPol, vOne, vOfs, vOfo = vM, vThr, vL, vFac, vDum
    PW = opts.get('pw', 7)
    def wowarm_off():
        p(f"v_lshrrev_b32 v{t0}, 8, v{vLin}\nv_mul_u32_u24 v{t0}, 1280, v{t0}\nv_and_b32 v{t1}, 0xf0, v{vLin}\nv_add_u32 v{vWarm}, v{t0}, v{t1}")
        p(f"s_lshl_b32 s{sT2}, s{sBL}, 2\ns_add_u32 s{sT2}, s{sT2}, s{sHi}\ns_mul_i32 s{sT2}, s{sT2}, {4*1280}\nv_add_u32 v{vWarm}, s{sT2}, v{vWarm}")
    def red_setup():
        p(f"s_lshr_b32 s{sT}, s{sHG}, 1\ns_mul_i32 s{sT}, s{sT}, 40")
        p(f"v_lshrrev_b32 v{t0}, 4, v{vLin}\nv_add_u32 v{vOne}, s{sT}, v{t0}")
        p(f"s_and_b32 s{sT}, s{sHG}, 1\ns_lshl_b32 s{sT}, s{sT}, 2\ns_add_u32 s{sT}, s{sT}, s{sHi}")
        p(f"v_mul_u32_u24 v{vOfo}, 1280, v{vOne}\ns_lshl_b32 s{sT2}, s{sT}, 5\nv_add_u32 v{vOfo}, s{sT2}, v{vOfo}")
        p(f"v_lshrrev_b32 v{vOfs}, 5, v{vOne}\nv_mul_u32_u24 v{vOfs}, 40960, v{vOfs}\nv_and_b32 v{vOne}, 31, v{vOne}")
        p(f"v_lshl_add_u32 v{vOfs}, v{vOne}, 4, v{vOfs}\ns_lshl_b32 s{sT2}, s{sT}, 10\nv_add_u32 v{vOfs}, s{sT2}, v{vOfs}")
        p(f"v_mov_b32 v{vOne}, 0x7ff00000\nv_cmp_gt_u32 s[{sT2}:{sT2+1}], 40, v{t0}")
        p(f"v_cndmask_b32 v{vOfs}, v{vOne}, v{vOfs}, s[{sT2}:{sT2+1}]\nv_cndmask_b32 v{vOfo}, v{vOne}, v{vOfo}, s[{sT2}:{sT2+1}]")
    def post(pp, off):
        pp(f"v_mov_b32 v{vOne}, 1\nv_mov_b32 v{vFlg}, 0")
        pp("s_mov_b64 exec, 1")
        pp(f"buffer_atomic_add v{vOne}, v{vFlg}, {srd(sFL)}, 0 offen offset:{off} sc1")
        pp("s_mov_b64 exec, -1")
    def spin(pp, tag, sr, off, want, slp, loaded=False):
        if loaded: pp(f"s_branch L_sp_chk{tag}")
        pp(f"L_sp{tag}:")
        pp(f"buffer_load_dword v{vPol}, v{vFlg}, {srd(sr)}, 0 offen offset:{off} sc1")
        pp("s_waitcnt vmcnt(0)")
        pp(f"L_sp_chk{tag}:")
        pp(f"v_readfirstlane_b32 s{sT}, v{vPol}")
        pp(f"s_cmp_eq_u32 s{sT}, {want}\ns_cbranch_scc1 L_sp_ok{tag}")
        pp(f"s_sleep {slp}\ns_branch L_sp{tag}")
        pp(f"L_sp_ok{tag}:")
    def arrive(pp, tag, g):
        pp(f"v_mov_b32 v{vOne}, 1\nv_mov_b32 v{vFlg}, {LCN}")
        pp("s_waitcnt lgkmcnt(0)\ns_mov_b64 exec, 1")
        pp(f"ds_add_rtn_u32 v{vPol}, v{vFlg}, v{vOne} offset:{4*(g-3)}")
        pp("s_mov_b64 exec, -1\ns_waitcnt lgkmcnt(0)")
        pp(f"v_readfirstlane_b32 s{sT}, v{vPol}")
        pp(f"s_cmp_lg_u32 s{sT}, 7\ns_cbranch_scc1 L_arr{tag}")
        post(pp, 128 * g)
        pp(f"L_arr{tag}:")
        pp(f"v_mov_b32 v{vFlg}, 0")
    RA_ = 88
    def rloads(g, RB):
        return [f"s_mov_b32 s{sT}, {g*8192+j*SLAB}\nbuffer_load_dwordx4 {vr(RB+32*st+4*j,4)}, v{vOfs}, {srd(sPA)}, s{sT} offen offset:{512*st} sc1"
                for st in range(2) for j in range(8)]
    def rsum(st, RB):
        base = RB + 32 * st; ops = []
        for j in range(8):
            for d in range(4):
                src = base + 4 * j + d
                if j == 0: ops.append(f"v_lshlrev_b32 v{RA_+2*d}, 16, v{src}\nv_and_b32 v{RA_+1+2*d}, 0xffff0000, v{src}")
                else: ops.append(f"v_lshlrev_b32 v{t0}, 16, v{src}\nv_and_b32 v{src}, 0xffff0000, v{src}\nv_add_f32 v{RA_+2*d}, v{RA_+2*d}, v{t0}\nv_add_f32 v{RA_+1+2*d}, v{RA_+1+2*d}, v{src}")
        ops.append("\n".join(f"v_cvt_pk_bf16_f32 v{base+d}, v{RA_+2*d}, v{RA_+1+2*d}" for d in range(4)))
        return ops
    def rstore(g, st, RB):
        return f"buffer_store_dwordx4 {vr(RB+32*st,4)}, v{vOfo}, {srd(sOUT)}, 0 offen offset:{g*256+16*st}"
    def reduce_groups(groups, bufs):
        vq = Q(p, "vmcnt", 63); tk = {}
        for g, RB in zip(groups, bufs):
            ops = rloads(g, RB)
            for st in range(2):
                for o in ops[8*st:8*st+8]: p(o)
                tk[(g, st)] = vq.issue(8)
        for g, RB in zip(groups, bufs):
            for st in range(2):
                vq.wait(tk[(g, st)])
                for o in rsum(st, RB): p(o)
                p(rstore(g, st, RB))
                vq.issue()
    tbases()
    if not opts.get('notouch'):
        wowarm_off()
        for k in range(PW, 20):
            p(f"s_mov_b32 s{sT}, {(k>>2)*256+(k&3)*128*1280}")
            p(f"buffer_load_dwordx4 {vr(SB,4)}, v{vWarm}, {srd(sWO)}, s{sT} offen")
    red_setup()
    p(f"s_mul_i32 s{sT}, s{sWave}, 40960\nv_add_u32 v{t2}, s{sT}, v{vLin}")
    p(f"s_mov_b32 s{sIt}, 0\ns_mov_b32 s{sSt0}, 0\ns_mov_b32 s{sSt1}, 4096")
    lg = Q(p, "lgkmcnt", 15); tok = {}
    NB = 7
    st_mod = {0: "", 1: " nt", 2: " sc1", 3: " sc0 sc1"}[opts.get('stm', 2)]
    def tread(f):
        ff = f & 127
        kk = ff >> 2; nt = ff & 3; qd = kk >> 3; ts = (kk >> 1) & 3; s = kk & 1
        b = TF[f & 7]
        for e in range(2):
            p(f"ds_read_b64_tr_b16 {vr(b+2*e,2)}, v{TB[qd]} offset:{ts*SLOT+(2*s+e)*256+nt*64}")
        tok[f] = lg.issue(2)
    def tstore(pp, acc, tmp, nt, vo):
        for i in range(8): pp(f"v_cvt_pk_bf16_f32 v{tmp+i}, v{acc+2*i}, v{acc+2*i+1}")
        so = sSt0 if nt < 2 else sSt1
        for s in range(2):
            pp(f"buffer_store_dwordx4 {vr(tmp+4*s,4)}, v{vo}, {srd(sPO)}, s{so} offen offset:{(nt&1)*2048+s*1024}{st_mod}")
    for f in range(NB): tread(f)
    p("L_T_loop:")
    for f in range(128):
        kk = f >> 2; nt = f & 3; qd = kk >> 3
        if kk == 0:
            p(f"s_cmp_eq_u32 s{sIt}, 0\ns_cbranch_scc1 L_T_skip{nt}")
            tstore(p, O + 16 * nt, SB + 8 * (nt & 1), nt, t2)
            if nt == 3: p(f"s_add_u32 s{sSt0}, s{sSt0}, 8192\ns_add_u32 s{sSt1}, s{sSt1}, 8192")
            p(f"L_T_skip{nt}:")
        lg.wait(tok[f])
        mfma(p, O + 16 * nt, TF[f & 7], BREG[qd] + 4 * (kk & 7), czero=(kk == 0))
        tread(f + NB)
        if (f & 31) == 31:
            if f == 127:
                p(f"s_add_u32 s{sIt}, s{sIt}, 1\ns_cmp_ge_u32 s{sIt}, 5\ns_cbranch_scc1 L_T_done")
            if f == 95:
                p("s_waitcnt vmcnt(0)")
                p(f"s_cmp_eq_u32 s{sIt}, 4\ns_cbranch_scc1 L_T_arr")
                side("L_T_arr:")
                arrive(side, "M3", 3)
                side("s_branch L_T_nb")
            p("s_barrier")
            if f == 95: p("L_T_nb:")
    p("s_branch L_T_loop")
    p("L_T_done:")
    for nt in range(4): tstore(p, O + 16 * nt, SB + 8 * (nt & 1), nt, t2)
    stamp(p, 7); stamp(p, 4, 2)
    p("s_waitcnt vmcnt(0) lgkmcnt(0)")
    stamp(p, 5, 2)
    arrive(p, "M4", 4)
    p(f"s_cmp_lg_u32 s{sWave}, 0\ns_cbranch_scc1 L_R_w")
    spin(p, "B", sFL, 512, 8, opts.get('slp', 4))
    p(f"v_mov_b32 v{vFlg}, {LCN}\nv_mov_b32 v{vOne}, 1")
    p(f"ds_write_b32 v{vFlg}, v{vOne} offset:8")
    p("s_branch L_R_go")
    p("L_R_w:")
    p(f"v_mov_b32 v{vFlg}, {LCN}")
    p("L_R_w2:")
    p(f"s_sleep 2\nds_read_b32 v{vPol}, v{vFlg} offset:8\ns_waitcnt lgkmcnt(0)")
    p(f"v_readfirstlane_b32 s{sT}, v{vPol}\ns_cmp_lg_u32 s{sT}, 1\ns_cbranch_scc1 L_R_w2")
    p("L_R_go:")
    stamp(p, 6, 2)
    reduce_groups([4], [16])
    stamp(p, 7, 2)
    dump_stamps(p)
    p("s_endpgm")

    bal = 0
    if bal:
        PT = {'a': dict(nq=2, work=[[0, 1], [0, 1], [0, 1], [0]]), 'b': dict(nq=3, work=[[0], [0], [0], [0, 1, 2]])}
    else:
        PT = {'a': dict(nq=2, work=[[0, 1]] * 4), 'b': dict(nq=1, work=[[0]] * 4)}
    hX, hW, hK, hV, hQ, hxA, hSt = range(96, 103)
    p("L_PH:")
    p(f"v_lshrrev_b32 v1, 4, v0\nv_mul_u32_u24 v{hX}, {8*1280}, v1")
    p(f"v_and_b32 v1, 16, v0\nv_and_b32 v2, 0xf0, v{vLin}\nv_xor_b32 v1, v1, v2\nv_add_u32 v{hX}, v{hX}, v1")
    p(f"s_mul_i32 s{sT}, s{sHi}, 1280\nv_add_u32 v{hX}, s{sT}, v{hX}")
    tvoff(vWq, 8192)
    p(f"s_lshl_b32 s{sT}, s{sHi}, 18\nv_add_u32 v{hW}, s{sT}, v{vWq}")
    p(f"s_mul_i32 s{sGB}, s{sHi}, {2*PCS}")
    p(f"s_mul_i32 s{sHS}, s{sHi}, {SLOT}")
    vm = Q(p, "vmcnt", 63); lg = Q(p, "lgkmcnt", 15)
    xtok = {}; wtok = {}
    pnt = " nt" if opts.get('pnt', 0) else ""
    wnt = " nt" if opts.get('wnt', 0) else ""
    xnt = " nt" if opts.get('xnt', 0) else ""
    def xdma(c):
        p(f"s_lshl_b32 s{sT2}, s{sCh[c]}, 8")
        for t in range(5):
            for hh in range(2):
                p(f"s_add_u32 m0, s{sGB}, {WR+t*SLOT+hh*PCS}")
                p(f"s_add_u32 s{sT}, s{sT2}, {(32*t+4*hh)*1280}")
                p(f"buffer_load_dwordx4 v{hX}, {srd(sX)}, s{sT} offen{pnt} lds")
        xtok[c] = vm.issue(10)
    def wdma0(u):
        for pc in range(8):
            i = pc >> 1; h = pc & 1
            p(f"s_add_u32 m0, s{sHS}, {WREG[u]+pc*PCS}")
            p(f"s_add_u32 s{sT}, s{sWc[u>>1]}, {(8*h+i)*8192+(u&1)*256}")
            p(f"buffer_load_dwordx4 v{hW}, {srd(sWQ)}, s{sT} offen{pnt} lds")
        wtok[u] = vm.issue(8)
    xdma(0); wdma0(0)
    if not opts.get('lw1', 1): wdma0(1)
    p(f"s_lshl_b32 s{sT}, s{sHi}, 6")
    p(f"v_add_u32 v{hK}, s{sT}, v{vTl}\nv_add_u32 v{hV}, {VR}, v{hK}\nv_add_u32 v{hQ}, {QS}, v{hK}\nv_add_u32 v{hK}, {KR}, v{hK}")
    p(f"v_add_u32 v{hxA}, {4*SLOT}, v{vKl}")
    p(f"s_sub_u32 s{sT}, s{sWave}, 5\ns_mul_i32 s{sT2}, s{sT}, 81920")
    p(f"v_bfe_u32 v1, v0, 2, 3\nv_mul_u32_u24 v{vX}, 5120, v1\nv_lshrrev_b32 v1, 5, v0\nv_lshl_add_u32 v{vX}, v1, 6, v{vX}")
    p(f"v_and_b32 v1, 3, v0\nv_lshl_add_u32 v{vX}, v1, 4, v{vX}\nv_add_u32 v{vX}, s{sT2}, v{vX}")
    p(f"s_mov_b32 s{sXo[1]}, 2560\ns_mov_b32 s{sXo[2]}, 40960\ns_mov_b32 s{sXo[3]}, 43520")
    p(f"s_mul_i32 s{sT2}, s{sT}, 4160\ns_add_u32 s{sT2}, s{sT2}, {XL}\nv_add_u32 v{vXw}, s{sT2}, v{vLin}")
    p(f"v_mul_u32_u24 v1, 1040, v1\nv_and_b32 v2, 0x3c0, v{vLin}\nv_add3_u32 v{vXr}, v1, v2, s{sT2}")
    p(f"v_add_u32 v{vQw}, 163840, v{vLin}")
    p(f"v_lshrrev_b32 v1, 4, v0\nv_lshlrev_b32 v1, 15, v1\nv_and_b32 v2, 0xf0, v{vLin}\nv_add3_u32 v{vWq}, v1, v2, 64")
    p(f"v_add_u32 v{vWq}, {512-64}, v{vWq}\nv_add_u32 v{vWqN}, 256, v{vWq}")
    tvoff(vWo, 1280)
    assert bx == 8
    p(f"v_lshrrev_b32 v1, 4, v0\nv_lshlrev_b32 v1, 13, v1\nv_and_b32 v2, 0xf0, v{vLin}\nv_add_u32 v{vWarm}, v1, v2")
    p(f"s_mul_i32 s{sT2}, s{sBL}, {80*8192}\ns_lshl_b32 s{sT}, s{sHi}, 15\ns_add_u32 s{sT2}, s{sT2}, s{sT}\nv_add_u32 v{vWarm}, s{sT2}, v{vWarm}")
    WARM = opts.get('wqwarm', 1)
    htb = {KR: hK, VR: hV, QS: hQ}
    XRB = {'a': 128, 'b': 104}
    def pxload(tag, j):
        g = (j % 40) >> 2; i = j & 3
        for tq in range(PT[tag]['nq']):
            so = sXo[tq * 2 + (i >> 1)]
            p(f"buffer_load_dwordx4 {vr(XRB[tag]+tq*40+4*(j%10),4)}, v{vX}, {srd(sX)}, {'0' if so is None else 's%d'%so} offen offset:{128*g+(i&1)*1280}{xnt}")
    def wdma(tj):
        tt = tj % 20
        for pc in range(8):
            i = pc >> 1; h = pc & 1
            p(f"s_mov_b32 m0, {WR+(tj%NW)*SLOT+pc*PCS}")
            p(f"s_mov_b32 s{sT}, {(64*(tt>>1)+16*(tt&1)+32*h+i)*8192}")
            p(f"buffer_load_dwordx4 v{vWq if tj < 20 else vWqN}, {srd(sWQ)}, s{sT} offen{wnt} lds")
    NPB = 4; NIV = 23; FPI = 7
    IV = lambda f: (f // 160) * NIV + (f % 160) // FPI
    I_first = lambda tj: IV(8 * tj - NPB)
    I_rel = lambda tj: IV(8 * tj + 7)
    issue_at = {}
    for tj in range(NW, NW + 20): issue_at.setdefault(I_rel(tj - NW) + 1, []).append(tj)
    if NIV in issue_at: issue_at.setdefault(0, []).extend(t - 20 for t in issue_at.pop(NIV))
    wait_at = {}
    for iv, l in issue_at.items():
        for tj in l:
            w = I_first(tj) - 1
            assert w >= iv + 2, (tj, iv, w)
            if w >= NIV: w, tj = w - NIV, tj - 20
            wait_at.setdefault(w, []).append(tj)
    pre = sorted(set(range(NW)) - set(issue_at.get(0, [])))
    for u in range(10):
        c = u >> 1; h = u & 1
        need = [wtok[u], xtok[c]] + ([wtok[u + 1]] if 1 <= u < 9 and opts.get('xb', 1) else [])
        vm.wait(max(need))
        p("s_barrier")
        B = 32 + 32 * (c & 1); tok = {}
        def hpread(ks):
            b = F + 4 * (ks & 3)
            lg.room(2)
            for e in range(2):
                p(f"ds_read_b64_tr_b16 {vr(b+2*e,2)}, v{htb[WREG[u]]} offset:{(ks>>1)*SLOT+(2*(ks&1)+e)*256}")
            tok[ks] = lg.issue(2)
        if h == 0:
            for j in range(8):
                lg.room(1)
                p(f"ds_read_b128 {vr(B+4*j,4)}, v{hxA} offset:{32*j}")
                bl = lg.issue()
        if u == 0 and opts.get('lw1', 1): wdma0(1)
        if u + 2 < 10: wdma0(u + 2)
        if h == 0:
            lg.wait(bl)
            p("s_barrier")
        for ks in range(4): hpread(ks)
        if h == 0 and c < 4: xdma(c + 1)
        if WARM and u == opts.get('wu', 3):
            for k in range(5):
                p(f"s_mov_b32 s{sT}, {k*4*32768+512}")
                p(f"buffer_load_dwordx4 v[104:107], v{vWarm}, {srd(sWQ)}, s{sT} offen")
                vm.issue()
        if u == 8:
            p(f"s_cmp_lg_u32 s{sWave}, 7\ns_cbranch_scc1 L_ph_w")
            for tj in pre: wdma(tj)
            p("L_ph_w:")
        if u == 9:
            p(f"s_cmp_eq_u32 s{sWave}, 4\ns_cbranch_scc1 L_ph_x")
            p(f"s_cmp_eq_u32 s{sWave}, 7\ns_cbranch_scc1 L_ph_xb")
            for j in range(10): pxload('a', j)
            p("s_branch L_ph_x")
            p("L_ph_xb:")
            for j in range(10): pxload('b', j)
            p("L_ph_x:")
            p(f"s_lshl_b32 s{sT}, s{sHi}, 11\ns_add_u32 s{sT}, s{sT}, {Q40}\nv_add_u32 v{t2}, s{sT}, v{vLin}")
            for s in range(2):
                for i in range(4): p(f"v_cvt_pk_bf16_f32 v{8*s+i}, v{8*s+2*i}, v{8*s+2*i+1}")
                lg.room(1)
                p(f"ds_write_b128 v{t2}, {vr(8*s,4)} offset:{s*1024}"); lg.issue()
        for ks in range(8):
            lg.wait(tok[ks])
            mfma(p, 16 * h, F + 4 * (ks & 3), B + 4 * ks, czero=(c == 0 and ks == 0))
            if ks + 4 < 8: hpread(ks + 4)
    p("s_waitcnt vmcnt(0) lgkmcnt(0)")
    p("s_barrier")
    p(f"s_lshl_b32 s{sT}, s{sHi}, 11\ns_add_u32 s{sT}, s{sT}, {QS+32768}\nv_add_u32 v{t2}, s{sT}, v{vLin}")
    for s in range(2):
        for i in range(4): p(f"v_cvt_pk_bf16_f32 v{16+8*s+i}, v{16+8*s+2*i}, v{16+8*s+2*i+1}")
        p(f"ds_write_b128 v{t2}, {vr(16+8*s,4)} offset:{s*1024}")
    p(f"s_cmp_lg_u32 s{sWave}, 4\ns_cbranch_scc1 L_P")
    p(f"v_add_u32 v{t2}, {Q40}, v{vLin}")
    for j in range(8): p(f"ds_read_b128 {vr(QR+4*j,4)}, v{t2} offset:{1024*j}")
    p("s_branch L_Ainit")

    p("L_P:")
    if opts.get('priop'): p(f"s_setprio {opts['priop']}")
    p(f"s_mov_b32 s{sIt}, 0")
    p(f"v_subrev_u32 v{vWarm}, 32768, v{vWarm}")
    p(f"s_cmp_eq_u32 s{sWave}, 7\ns_cbranch_scc1 L_P2")
    def pwave(tag, dma):
        nq = PT[tag]['nq']; work = PT[tag]['work']
        vm = Q(p, "vmcnt", 63); lg = Q(p, "lgkmcnt", 15)
        xt = {j: 0 for j in range(10)}; wt = {t: 0 for t in range(NW)}; ft = {}
        accs = {}
        for nt in range(4):
            for tq in work[nt]: accs[(tq, nt)] = 16 * len(accs)
        assert 16 * len(accs) <= XRB[tag]
        blk = lambda j, tq: XRB[tag] + tq * 40 + 4 * (j % 10)
        def xload(j):
            pxload(tag, j); xt[j] = vm.issue(nq)
        bt = {}
        def tr(g):
            ops = [("W", 4 * g + 3)]
            for tq in range(nq):
                for i in range(4): ops.append(("D", f"ds_write_b128 v{vXw}, {vr(blk(4*g+i,tq),4)} offset:{1040*i}", None))
                for a in range(4): ops.append(("D", f"ds_read_b128 {vr(blk(4*g+a,tq),4)}, v{vXr} offset:{16*a}", (4 * g + a, tq)))
            return ops
        def emit(ops):
            for o in ops:
                if o[0] == "W": vm.wait(xt[o[1]])
                else:
                    lg.room(1); p(o[1]); tk = lg.issue()
                    if o[2]: bt[o[2]] = tk
        def fread(f):
            ff = f % 160
            tj = ff >> 3; s = (ff >> 2) & 1; nt = ff & 3; b = F + 4 * (f % NPB)
            lg.room(2)
            for e in range(2):
                p(f"ds_read_b64_tr_b16 {vr(b+2*e,2)}, v{vTl} offset:{WR+(tj%NW)*SLOT+(2*s+e)*256+nt*64}")
            ft[f] = lg.issue(2)
        qoff = {'a': [0, 8192], 'b': [3 * 8192, 0, 2 * 8192]}[tag]
        def handoff(nt):
            for tq in work[nt]:
                a = accs[(tq, nt)]
                for s in range(2):
                    for i in range(4): p(f"v_cvt_pk_bf16_f32 v{a+8*s+i}, v{a+8*s+2*i}, v{a+8*s+2*i+1}")
                    lg.room(1)
                    p(f"ds_write_b128 v{vQw}, {vr(a+8*s,4)} offset:{qoff[tq]+(2*nt+s)*1024}")
                    lg.issue()
        p("s_waitcnt lgkmcnt(0)")
        p("s_barrier")
        emit(tr(0))
        for f in range(NPB): fread(f)
        lg.drain()
        def period():
            pend = []
            for f in range(160):
                iv = f // FPI
                if f % FPI == 0 and dma:
                    for tj in issue_at.get(iv, []):
                        wdma(tj); wt[tj] = vm.issue(8)
                if f % FPI == 0 and tag == 'a' and WARM and iv == opts.get('wiv', 4):
                    for k in range(10):
                        p(f"s_mov_b32 s{sT}, {k*2*32768+768}")
                        p(f"buffer_load_dwordx4 v[208:211], v{vWarm}, {srd(sWQ)}, s{sT} offen")
                        vm.issue()
                j = f >> 2; nt = f & 3
                if j == 0: handoff(nt)
                if f == 4:
                    if tag == 'a':
                        p(f"s_sub_u32 s{sT}, s{sWave}, 5\ns_lshl_b32 s{sT}, s{sT}, 14\ns_add_u32 s{sT}, s{sT}, {QS}\nv_add_u32 v{vQw}, s{sT}, v{vLin}")
                    else:
                        p(f"v_add_u32 v{vQw}, {QS+8192}, v{vLin}")
                if nt == 0 and (j & 3) == 2:
                    assert not pend
                    pend = tr((j >> 2) + 1); per = -(-len(pend) // (7 * nq))
                lg.wait(ft[f])
                for tq in work[nt]:
                    lg.wait(bt[(j, tq)])
                    mfma(p, accs[(tq, nt)], F + 4 * (f % NPB), blk(j, tq), czero=(j == 0))
                    if tq == work[nt][-1]: fread(f + NPB)
                    if pend: emit(pend[:per]); pend = pend[per:]
                if nt == 3: xload(j + 10)
                if f % FPI == FPI - 1 or f == 159:
                    if dma:
                        for tj in wait_at.get(iv, []): vm.wait(wt[tj])
                    if f == 159:
                        p(f"v_mov_b32 v{vWq}, v{vWqN}")
                        p(f"s_add_u32 s{sIt}, s{sIt}, 1\ns_cmp_lt_u32 s{sIt}, 2")
                    p("s_barrier")
            for j in range(10): xt[j] = xt[40 + j]
            for tj in range(20, 20 + NW):
                if tj in wt: wt[tj - 20] = wt[tj]
            for f in range(NPB): ft[f] = ft[160 + f]
            for a in range(4):
                for tq in range(nq): bt[(a, tq)] = bt[(40 + a, tq)]
        mark = len(p.ins)
        period()
        del p.ins[mark:]
        p(f"L_P_loop{tag}:")
        period()
        p(f"s_cbranch_scc1 L_P_loop{tag}")
        for nt in range(4): handoff(nt)
        p("s_waitcnt vmcnt(0) lgkmcnt(0)")
        p("s_barrier")
    pwave('a', False)
    p("s_branch L_Pidle")
    p("L_P2:")
    pwave('b', True)
    p("L_Pidle:")
    p(f"s_mul_i32 s{sHS}, s{sHi}, {SLOT}\ns_mul_i32 s{sGB}, s{sHi}, {32*1280}")
    def wo_dma(qd, lds_s, glob_s):
        for pc in range(8):
            i = pc >> 1; h = pc & 1
            p(f"s_add_u32 m0, {lds_s}, {REG[qd]+pc*PCS}")
            p(f"s_add_u32 s{sT}, {glob_s}, {(128*qd+8*h+i)*1280}")
            p(f"buffer_load_dwordx4 v{vWo}, {srd(sWO)}, s{sT} offen lds")
    def wo_both(qd):
        wo_dma(qd, f"s{sHS}", f"s{sGB}")
        p(f"s_cmp_lg_u32 s{sWave}, {5+qd}\ns_cbranch_scc1 L_wob{qd}")
        wo_dma(qd, "0", "0")
        p(f"L_wob{qd}:")
    wowarm_off()
    WD = opts.get('wd', 3)
    n0 = opts.get('wotch', 50)
    for n in range(46, 64):
        if n == n0 and not opts.get('notouch'):
            p(f"v_subrev_u32 v{t0}, {4*1280}, v{vWarm}")
            for k in range(PW):
                p(f"s_mov_b32 s{sT}, {(k>>2)*256+(k&3)*128*1280}")
                p(f"buffer_load_dwordx4 v[0:3], v{vWarm}, {srd(sWO)}, s{sT} offen")
            p(f"s_cmp_lg_u32 s{sWave}, 5\ns_cbranch_scc1 L_ww")
            for k in range(PW):
                p(f"s_mov_b32 s{sT}, {(k>>2)*256+(k&3)*128*1280}")
                p(f"buffer_load_dwordx4 v[0:3], v{t0}, {srd(sWO)}, s{sT} offen")
            p("L_ww:")
        if n == 47:
            p(f"s_cmp_lg_u32 s{sWave}, 5\ns_cbranch_scc1 L_sp_okI")
            p(f"s_lshl_b32 s{sT}, s{sB}, 3\nv_mov_b32 v{vFlg}, s{sT}")
            spin(p, "I", sDBG, 0, 1, 8)
        if n == 48:
            p(f"v_add_u32 v{t2}, {QS}, v{vLin}")
            for j in range(24):
                p(f"ds_read_b128 {vr(SV[0]+4*j,4)}, v{t2} offset:{1024*j}")
                if j % 8 == 7: p("s_waitcnt lgkmcnt(0)")
        if n == opts.get('wo0', 58): wo_both(0)
        if n == opts.get('wo1', 60): wo_both(1)
        if n == 62: wo_both(2)
        if n == 63: p("s_waitcnt vmcnt(8)")
        p("s_barrier")
    p("s_branch L_H")
    p("L_A4_tail:")
    p(f"v_add_u32 v{t2}, {O3}, v{vLin}")
    for j in range(8): p(f"ds_write_b128 v{t2}, {vr(QR+4*j,4)} offset:{1024*j}")
    tvoff(vWo, 1280)
    p(f"s_mov_b32 s{sHS}, 0\ns_mov_b32 s{sGB}, 0")
    p("s_waitcnt vmcnt(0) lgkmcnt(0)")
    p("L_H:")
    p(f"s_lshl_b32 s{sT2}, s{sHi}, 6\nv_add_u32 v{vTl}, s{sT2}, v{vTl}")
    tbases()
    p(f"s_lshl_b32 s{sT2}, s{sHi}, 11\ns_add_u32 s{sT2}, s{sT2}, {4*40960}\nv_add_u32 v{t2}, s{sT2}, v{vLin}")
    p(f"v_add_u32 v{t1}, {O3}, v{vLin}")
    red_setup()
    lg = Q(p, "lgkmcnt", 15); vm = Q(p, "vmcnt", 63); tok = {}; dtok = {-1: vm.issue(8)}
    def hread(k):
        kk = k & 31; qd = kk >> 3; ts = (kk >> 1) & 3; s = kk & 1
        b = F + 4 * (k & 3)
        for e in range(2):
            p(f"ds_read_b64_tr_b16 {vr(b+2*e,2)}, v{TB[qd]} offset:{ts*SLOT+(2*s+e)*256}")
        tok[k] = lg.issue(2)
    def hstore(g):
        p(f"s_mov_b32 s{sSt0}, {g*8192}")
        for s in range(2):
            p(f"buffer_store_dwordx4 {vr(SB+4*s,4)}, v{t2}, {srd(sPO)}, s{sSt0} offen offset:{s*1024}{st_mod}")
        return vm.issue(2)
    hcvt = "\n".join(f"v_cvt_pk_bf16_f32 v{SB+i}, v{O+2*i}, v{O+2*i+1}" for i in range(8))
    for k in range(4): hread(k)
    ps = 0; RB = 16
    lq = []
    vq = []
    ltok = {}
    plan = {}
    for g in range(2):
        t = 4 * (g + 2)
        plan[t + 1] = [('L', g, 0, 4)]; plan[t + 2] = [('L', g, 4, 8)]; plan[t + 3] = [('L', g, 8, 12)]
        plan[t + 4] = [('L', g, 12, 16), ('S', g, 0)]
        plan.setdefault(t + 6, []).append(('S', g, 1))
    plan[17] = [('L', 2, 0, 8)]; plan[18] = [('L2', 2, 8, 16)]
    plan[14] = [('L', 1, 4, 8), ('S', 0, 1)]
    p(f"v_mov_b32 v{vFlg}, 0")
    for k in range(160):
        it = k >> 5; kk = k & 31; qd = kk >> 3; tau = k >> 3
        if kk == 0 and it in (0, 2, 4): stamp(p, 1 + it // 2, 2); lg.done = lg.n if opts.get('pst') == 2 else lg.done
        if kk == 0 and it > 0: p(hcvt)
        if (kk & 7) == 0:
            assert not vq
            if qd == 0 and it >= 2:
                p(f"buffer_load_dword v{vPol}, v{vFlg}, {srd(sFL)}, 0 offen offset:{128*(it-2)} sc1")
                ptok = vm.issue()
            tn = tau + 3
            if tn < 20:
                p(f"s_add_u32 s{sGBn}, s{sGB}, {(tn>>2)*256}")
                wo_dma(tn & 3, f"s{sHS}", f"s{sGBn}")
                dtok[tau] = vm.issue(8)
            if qd == 0 and it > 0: ps = hstore(it - 1)
            if qd == 3 and 1 <= it <= 3:
                p(f"s_cmp_lg_u32 s{sWave}, 4\ns_cbranch_scc1 L_H_np{it}")
                post(p, 128 * (it - 1))
                p(f"L_H_np{it}:")
            if qd == 1 and it >= 2:
                vm.wait(ptok)
                spin(p, f"A{it}", sFL, 128 * (it - 2), 8, opts.get('slp', 4), True)
            for a in plan.get(tau, []):
                if a[0] in ('L', 'L2'):
                    for i in range(a[2], a[3]):
                        p(rloads(a[1], RB if a[0] == 'L' else SV[0] - 32)[i]); ltok[(a[1], i >> 3)] = vm.issue()
                    if a[0] == 'L2': p("s_setprio 2")
                else:
                    vq = [('W', ltok[(a[1], a[2])])] + rsum(a[2], RB) + [('ST', rstore(a[1], a[2], RB))]
                    per = -(-len(vq) // 7)
        if k == 8:
            lg.drain()
            for j in range(8): p(f"ds_read_b128 {vr(QR+4*j,4)}, v{t1} offset:{1024*j}")
            p(f"v_mov_b32 v{t0}, {LCN}\nv_mov_b64 v[16:17], 0\nv_mov_b64 v[18:19], 0\nds_write_b128 v{t0}, v[16:19]")
            p("s_waitcnt lgkmcnt(0)")
        lg.wait(tok[k])
        mfma(p, O, F + 4 * (k & 3), BREG[qd] + 4 * (kk & 7), czero=(kk == 0))
        if k + 4 < 160: hread(k + 4)
        for o in vq[:per] if vq else []:
            if isinstance(o, tuple):
                if o[0] == 'W': vm.wait(o[1])
                else: p(o[1]); vm.issue()
            else: p(o)
        vq = vq[per:] if vq else []
        if (kk & 7) == 7 and tau < 18:
            need = dtok.get(tau - 1, 0)
            if qd == 2: need = max(need, ps)
            vm.wait(need)
            p("s_barrier")
    stamp(p, 4, 2)
    p(hcvt)
    vm.wait(ps)
    ps = hstore(4)
    p("s_setprio 0")
    arrive(p, "H3", 3)
    for g, st, rb in ((1, 1, RB), (2, 0, RB), (2, 1, SV[0] - 32)):
        vm.wait(ltok[(g, st)])
        for o in rsum(st, rb): p(o)
        if (g, st) == (2, 0):
            vm.wait(ps)
            stamp(p, 5, 2)
            arrive(p, "H4", 4)
            p(f"buffer_load_dword v{vPol}, v{vFlg}, {srd(sFL)}, 0 offen offset:{128*3} sc1")
            ptok = vm.issue()
        p(rstore(g, st, rb)); vm.issue()
    vm.wait(ptok)
    spin(p, "A5", sFL, 128 * 3, 8, opts.get('slp', 4), True)
    stamp(p, 6, 2)
    reduce_groups([3], [160])
    stamp(p, 7, 2)
    dump_stamps(p)
    p("L_exit:")
    p("s_endpgm")
    p.ins += side.ins

    def strip(a, b, pred):
        i0 = [i for i, x in enumerate(p.ins) if x.label == a][0]; i1 = [i for i, x in enumerate(p.ins) if x.label == b][0]
        p.ins = [x for i, x in enumerate(p.ins) if not (i0 < i < i1 and pred(x))]
    if opts.get('nodma'): p.ins = [x for x in p.ins if not (x.kind == 'dma' and (srd(sK) in x.text or srd(sV) in x.text))]
    if opts.get('nowq'): strip('L_P', 'L_Pidle', lambda x: x.kind == 'dma')
    if opts.get('nox'): strip('L_P', 'L_Pidle', lambda x: x.op == 'buffer_load_dwordx4' and srd(sX) in x.text)
    SMV = ('v_fma_f32', 'v_exp_f32', 'v_add_f32', 'v_cvt_pk_bf16_f32', 'v_max3_f32', 'v_max_f32')
    if opts.get('novalu'): strip('L_Astart', 'L_A_end', lambda x: x.op in SMV)
    if opts.get('nofma'): strip('L_Astart', 'L_A_end', lambda x: x.op == 'v_fma_f32')
    if opts.get('nomax'): strip('L_Astart', 'L_A_end', lambda x: x.op in ('v_max3_f32', 'v_max_f32'))
    if opts.get('norl'): strip('L_H', 'L_arrH3', lambda x: x.op == 'buffer_load_dwordx4' and srd(sPA) in x.text)
    if opts.get('noos'): strip('L_H', 'L_arrH3', lambda x: x.op == 'buffer_store_dwordx4' and srd(sOUT) in x.text)
    if opts.get('nosp'): strip('L_H', 'L_arrH3', lambda x: x.text.startswith('s_branch L_spA'))
    for x in p.ins:
        if x.op == 'buffer_store_dwordx4' and srd(sOUT) in x.text: x.text += {0: "", 1: " nt", 2: " sc1"}[opts.get('osm', 0)]
        if x.op == 'buffer_load_dwordx4' and srd(sPA) in x.text and opts.get('rlnt'): x.text += " nt"
    if opts.get('nowo'): strip('L_H', 'L_exit', lambda x: x.kind == 'dma')
    if opts.get('nots'): p.ins = [x for x in p.ins if not (x.op == 'buffer_store_dwordx4' and srd(sPO) in x.text)]
    if opts.get('halfds'):
        cnt = [0]
        def pred(x):
            if x.kind == 'ds':
                cnt[0] += 1
                return (cnt[0] // 2) % 2 == 1
            return False
        strip('L_T_loop', 'L_T_done', pred); strip('L_Astart', 'L_A_end', pred)
    if opts.get('nopm'): strip('L_P', 'L_Pidle', lambda x: x.kind == 'mfma' or x.op == 'ds_read_b64_tr_b16' or (x.op == 'ds_write_b128' and f"v{vQw}," in x.text))
    n = p.fix_hazards(verbose=opts.get('verbose', False))
    print("hazard nops inserted:", n, "instrs:", len(p.ins), file=sys.stderr)

    hdr = open('standalone__mha_block_cached__near_ridge.s.ref').read().split('\n')
    hdr = [l for l in hdr if l.startswith(';') and '@launch' not in l and not l.startswith('; Override') and not l.startswith('; grid=ceil')]
    out = "\n".join(hdr) + "\n"
    out += f"; @launch grid=(256,1,1) block=(512,1,1) lds={LDS_BYTES}\n"
    out += '.amdgcn_target "amdgcn-amd-amdhsa--gfx950"\n.text\n'
    out += f".globl {KN}\n.p2align 8\n.type {KN},@function\n" + p.text()
    out += '.section .rodata,"a"\n'
    for name, nv, ns in ((KN, 256, 102 if PROF else 80),):
        out += f""".p2align 6
.amdhsa_kernel {name}
  .amdhsa_next_free_vgpr {nv}
  .amdhsa_next_free_sgpr {ns}
  .amdhsa_accum_offset {nv}
  .amdhsa_group_segment_fixed_size 0
  .amdhsa_kernarg_size 64
  .amdhsa_user_sgpr_count 2
  .amdhsa_user_sgpr_kernarg_segment_ptr 1
  .amdhsa_system_sgpr_workgroup_id_x 1
.end_amdhsa_kernel
"""
    return out

if __name__ == "__main__":
    opts = {}
    path = sys.argv[1]
    for a in sys.argv[2:]:
        k, v = a.split('='); opts[k] = int(v)
    open(path, 'w').write(gen(opts))
```

```python
import re

def _regs(tok):
    tok = tok.strip()
    tok = tok.lstrip('-')
    m = re.fullmatch(r'abs\((.*)\)', tok)
    if m: tok = m.group(1)
    m = re.fullmatch(r'([vsa])\[(\d+):(\d+)\]', tok)
    if m: return [(m.group(1), i) for i in range(int(m.group(2)), int(m.group(3)) + 1)]
    m = re.fullmatch(r'([vsa])(\d+)', tok)
    if m: return [(m.group(1), int(m.group(2)))]
    if tok in ('vcc', 'vcc_lo', 'vcc_hi'): return [('s', 'vcc')]
    if tok == 'm0': return [('s', 'm0')]
    if tok in ('exec', 'exec_lo', 'exec_hi'): return [('s', 'exec')]
    return []

TRANS = ('v_exp_f32', 'v_log_f32', 'v_rcp_f32', 'v_rsq_f32', 'v_sqrt_f32', 'v_sin_f32', 'v_cos_f32')

class Ins:
    __slots__ = ('text', 'op', 'kind', 'rd', 'wr', 'ws', 'label', 'target', 'srcc', 'srcab', 'passes', 'uncond', 'end', 'wide_store', 'call', 'ret')
    def __init__(self, text):
        self.text = text
        self.label = None; self.target = None; self.uncond = False; self.end = False
        self.rd = set(); self.wr = set(); self.srcc = set(); self.srcab = set(); self.passes = 0
        self.ws = 1; self.kind = 'other'; self.wide_store = set(); self.call = False; self.ret = None
        t = text.split(';')[0].strip()
        if t.endswith(':'):
            self.label = t[:-1]; self.ws = 0; self.op = ''; self.kind = 'label'; return
        if t.startswith('.') or not t:
            self.ws = 0; self.op = ''; self.kind = 'dir'; return
        parts = t.split(None, 1)
        op = parts[0]; self.op = op
        rest = parts[1] if len(parts) > 1 else ''
        rest = re.sub(r'\s+\w+:\[[^\]]*\]', '', rest)
        ops = [o.strip() for o in rest.split(',')]
        if ops and ops[-1]:
            last = ops[-1].split()
            mods = last[1:]; ops[-1] = last[0]
        else:
            mods = []; ops = []
        R = lambda i: set(_regs(ops[i])) if i < len(ops) else set()
        if op == 's_nop':
            self.ws = int(ops[0], 0) + 1; self.kind = 'nop'
        elif op.startswith('v_mfma'):
            self.kind = 'mfma'
            self.wr = R(0); self.srcab = R(1) | R(2); self.srcc = R(3); self.rd = self.srcab | self.srcc
            self.passes = 8 if '32x32x16' in op else 4
        elif op.startswith('v_'):
            self.kind = 'trans' if op.replace('_e32', '').replace('_e64', '') in TRANS else 'valu'
            self.wr = R(0)
            for i in range(1, len(ops)): self.rd |= R(i)
            if op.startswith('v_permlane'):
                self.kind = 'permlane'; self.wr = R(0) | R(1); self.rd = R(0) | R(1)
            if op.startswith('v_fmac') or op.startswith('v_dot2c'): self.rd |= R(0)
            if op.startswith('v_readfirstlane') or op.startswith('v_readlane'): self.kind = 'readlane'
            if op.startswith('v_add_co') or op.startswith('v_addc_co'): self.wr |= R(1)
        elif op.startswith('ds_read') or op.startswith('ds_bpermute') or op.startswith('ds_swizzle') or '_rtn_' in op:
            self.kind = 'ds'; self.wr = R(0)
            for i in range(1, len(ops)): self.rd |= R(i)
        elif op.startswith('ds_'):
            self.kind = 'ds'
            for i in range(len(ops)): self.rd |= R(i)
        elif op.startswith('buffer_load') or op.startswith('global_load'):
            self.kind = 'vmem'
            if 'lds' in mods or '_lds_' in op:
                self.kind = 'dma'
                for i in range(len(ops)): self.rd |= R(i)
                self.rd.add(('s', 'm0'))
            else:
                self.wr = R(0)
                for i in range(1, len(ops)): self.rd |= R(i)
        elif op.startswith('buffer_store') or op.startswith('global_store') or op.startswith('buffer_atomic') or op.startswith('global_atomic'):
            self.kind = 'vmem'
            for i in range(len(ops)): self.rd |= R(i)
            if op.endswith('x4') or op.endswith('x3'):
                self.wide_store = R(0) if op.startswith('buffer') else R(1)
            if 'atomic' in op and 'sc0' in mods: self.wr = R(0)
        elif op.startswith('s_cbranch') or op == 's_branch':
            self.kind = 'branch'; self.target = ops[0]; self.uncond = (op == 's_branch')
        elif op == 's_call_b64':
            self.kind = 'branch'; self.target = ops[1]; self.uncond = True; self.call = True
        elif op == 's_setpc_b64':
            self.kind = 'branch'; self.end = True; self.ret = text.split('ret=')[1].strip()
        elif op == 's_endpgm':
            self.end = True
        elif op.startswith('s_'):
            self.kind = 'salu'
            if op.startswith('s_cmp') or op.startswith('s_bitcmp') or op in ('s_waitcnt', 's_barrier', 's_setprio', 's_sleep'):
                for i in range(len(ops)): self.rd |= R(i)
            else:
                self.wr = R(0)
                for i in range(1, len(ops)): self.rd |= R(i)

VALU_KINDS = ('valu', 'trans', 'permlane', 'readlane')

def need(p, c):
    n = 0
    vw = {r for r in p.wr if r[0] in 'va'}
    sw = {r for r in p.wr if r[0] == 's'}
    if p.kind in VALU_KINDS:
        if c.kind == 'mfma' and (vw & c.rd): n = max(n, 2)
        if c.kind == 'permlane' and (vw & c.rd): n = max(n, 2)
        if c.op.endswith('_dpp') and (vw & c.rd): n = max(n, 2)
        if c.kind == 'readlane' and (vw & c.rd): n = max(n, 1)
        if p.kind == 'trans' and c.kind in VALU_KINDS and c.kind != 'trans' and (vw & c.rd): n = max(n, 1)
        if p.kind == 'trans' and c.kind in ('ds', 'vmem', 'dma') and (vw & c.rd): n = max(n, 1)
        if sw:
            if c.kind in VALU_KINDS and (sw & c.rd): n = max(n, 2)
            if c.kind in ('vmem', 'dma') and (sw & c.rd): n = max(n, 5)
            if c.kind == 'salu' and (sw & c.rd): n = max(n, 2)
            if ('s', 'exec') in sw and c.kind == 'mfma': n = max(n, 4)
    if p.kind == 'mfma':
        big = {8: 12, 4: 8}[p.passes]; part = {8: 10, 4: 6}[p.passes]; war = {8: 7, 4: 3}[p.passes]
        if c.kind == 'mfma':
            if vw & c.srcab: n = max(n, big)
            if vw & c.srcc:
                if not (vw == c.srcc and p.passes == c.passes): n = max(n, part)
            elif vw & c.wr:
                n = max(n, part)
        elif c.kind in VALU_KINDS or c.kind in ('ds', 'vmem', 'dma'):
            if vw & (c.rd | c.wr): n = max(n, big)
            if c.kind in VALU_KINDS and (p.srcc & c.wr): n = max(n, war)
    if p.kind == 'salu' and ('s', 'm0') in p.wr and c.kind == 'dma': n = max(n, 1)
    if p.wide_store and (p.wide_store & c.wr): n = max(n, 2)
    return n

MAXW = 12

class Prog:
    def __init__(self):
        self.ins = []
    def __call__(self, text):
        for line in text.split('\n'):
            if line.strip(): self.ins.append(Ins(line.strip()))
    def fix_hazards(self, verbose=False):
        total = 0
        while True:
            ins = self.ins
            labels = {x.label: i for i, x in enumerate(ins) if x.label}
            preds = [[] for _ in ins]
            for i, x in enumerate(ins):
                if x.target is not None:
                    preds[labels[x.target]].append(i)
                if i + 1 < len(ins) and not x.uncond and not x.end:
                    preds[i + 1].append(i)
            rets = {}
            for i, x in enumerate(ins):
                if x.ret:
                    for nm in x.ret.split('|'): rets.setdefault(nm, []).append(i)
            for i, x in enumerate(ins):
                if x.call:
                    for r in rets[x.target]: preds[i + 1].append(r)
            inserts = []
            for i, c in enumerate(ins):
                if c.kind in ('label', 'dir', 'nop', 'branch', 'other'): continue
                worst = 0; why = None
                stack = [(p, 0) for p in preds[i]]
                seen = {}
                while stack:
                    j, d = stack.pop()
                    if j in seen and seen[j] <= d: continue
                    seen[j] = d
                    p = ins[j]
                    n = need(p, c) if p.ws else 0
                    if n - d > worst: worst = n - d; why = p.text
                    d2 = d + p.ws
                    if d2 < MAXW:
                        for q in preds[j]: stack.append((q, d2))
                if worst > 0:
                    inserts.append((i, worst, why))
                    break_after = True
            if not inserts: break
            last = -100; todo = []
            for i, w, why in inserts:
                if i - last > MAXW + 2:
                    todo.append((i, w, why)); last = i
            for i, w, why in reversed(todo):
                if verbose: print(f"nop {w} before [{ins[i].text}] due to [{why}]")
                ins.insert(i, Ins(f"s_nop {w-1}"))
                total += w
        return total
    def text(self):
        out = []
        for x in self.ins:
            out.append(x.text if x.kind in ('label', 'dir') else '    ' + x.text)
        return '\n'.join(out) + '\n'

class Q:
    def __init__(self, prog, name, maxn):
        self.p = prog; self.name = name; self.maxn = maxn; self.n = 0; self.done = 0
    def issue(self, k=1):
        self.n += k; return self.n
    def wait(self, tok):
        if tok <= self.done: return
        left = self.n - tok
        left = min(left, self.maxn)
        self.p(f"s_waitcnt {self.name}({left})")
        self.done = self.n - left
    def room(self, k):
        if self.n - self.done + k > self.maxn:
            self.wait(self.n + k - self.maxn)
    def drain(self):
        self.p(f"s_waitcnt {self.name}(0)"); self.done = self.n
```

```python
import sys, math, struct
sys.path.insert(0, 'dev')
from asmlib import Prog, Q, Ins

KN = "standalone__mha_block_cached__near_ridge_kernel"
SLOT = 8448; PCS = 1056
K0 = 0; V0 = 4 * SLOT; K1 = 8 * SLOT; V1 = 12 * SLOT; XR = 14 * SLOT; DUMS = 16 * SLOT
EXA = [V0, V1, V1 + 20480, V1 + 40960]
LDS_BYTES = 163840 - 1024
SLAB = 204800; FLG = 256 * SLAB

QR = 0; SS = [80, 120]; NM = 160; LL = 180; FAC = 186; TT = 196
XB = 0; XT = 80
TA = 80; RB = 160; RD = 200; SEL = 224; TMP = 232; vOo3 = 222; vOf3 = 223
aACC = 0; aSV = 160; aF = 240
(vLin, vKa0, vKa1, vVa, vDk, vDv, vXd, vWd, vXa0, vXa1, tA, tB, tC, vTl) = range(204, 218)
vOfs, vOfo, vWarm, vWoA, vWoB, vSt, vSt2, vOs2, vOo2, vZ, vPol, t0, vR0, vR1, vR2, vR3 = range(240, 256)

sK, sV, sWQ, sWO, sX, sPO, sPA, sOUT, sDBG, sFL = 4, 8, 12, 16, 20, 24, 60, 72, 76, 68
sWave, sB, sHG, sIt, sMK, sMV, sRnd, sR0, sCur, sHS, sGB = 28, 29, 30, 31, 32, 33, 34, 35, 36, 37, 38
sT, sC, sBL, sPi, sPa, sT2, sT3, sPb, sCol = 39, 40, 41, 42, 43, 44, 45, 46, 47
sRa, sRb, sRet, sRc, sXl, sXg, sPc, sPd, sMsk, sSt, sFo = 48, 49, 50, 52, 53, 54, 55, 56, 57, 58, 59
sDry = 64
OOB = 0x7ff00000

SCALE = math.log2(math.e) / math.sqrt(128.0)
def f2u(x): return struct.unpack('<I', struct.pack('<f', x))[0]
def vr(b, n): return f"v[{b}:{b+n-1}]"
def ar(b, n): return f"a[{b}:{b+n-1}]"
def srd(b): return f"s[{b}:{b+3}]"
def m16(d, a, b, c=None): return f"v_mfma_f32_16x16x32_bf16 {d}, {a}, {b}, {d if c is None else c}"
def mksrd(p, s, lo, off, size):
    p(f"s_add_u32 s{s}, s{lo}, {off}\ns_addc_u32 s{s+1}, s{lo+1}, 0\ns_mov_b32 s{s+2}, {size}\ns_mov_b32 s{s+3}, 0x20000")
def call(p, name): p(f"s_call_b64 s[{sRet}:{sRet+1}], {name}")
def ret(p, name): p(f"s_setpc_b64 s[{sRet}:{sRet+1}] ; ret={name}")
def spread(seq, gaps):
    tot = sum(c for _, c in seq); out = {}; acc = 0
    for it, c in seq:
        g = gaps[min(int((acc + c * 0.5) * len(gaps) / tot), len(gaps) - 1)]
        out.setdefault(g, []).append(it); acc += c
    return out
class Gaps:
    def __init__(self, n=80): self.n = n; self.items = [[] for _ in range(n)]; self.load = [0.0] * n
    def pin(self, g, it, c=1): self.items[g].append(it); self.load[g] += c
    def reserve(self, g, c=1): self.load[g] += c
    def stream(self, seq, gaps):
        tot = sum(c for _, c in seq)
        lo, hi = 0.0, 50.0
        for _ in range(40):
            mid = (lo + hi) / 2
            if sum(max(0.0, mid - self.load[g]) for g in gaps) >= tot: hi = mid
            else: lo = mid
        room = [max(0.0, hi - self.load[g]) for g in gaps]
        cum = 0.0; edges = []
        for r in room: cum += r; edges.append(cum)
        acc = 0.0; k = 0
        for it, c in seq:
            pos = acc + c * 0.5
            while k < len(gaps) - 1 and edges[k] < pos: k += 1
            self.pin(gaps[k], it, c); acc += c
def split(ops, tag=None):
    out = []
    for o in ops:
        tg = tag
        if isinstance(o, tuple): tg = o[2]; o = o[1]
        for l in o.split("\n"):
            if l == "s_nop 0": continue
            out.append((("VM", l, tg), 1.5) if l.startswith("buffer_") else (l, 1))
    return out
FB = lambda m: aF + 4 * (m & 3)
oacc = lambda dt, t: aACC + 4 * (dt * 5 + t)

def gen(opts):
    p = Prog(); side = Prog(); q = Prog()
    PROF = opts.get('prof', 0)
    PST = opts.get('pst', 0)
    def stamp_it(pp, mode, tag, vals):
        if PROF and PST == mode:
            pp("s_cselect_b32 s99, 1, 0")
            for v, i in vals:
                pp(f"s_cmp_lg_u32 s{sIt}, {v}\ns_cbranch_scc1 L_si{tag}{v}"); stamp(pp, i, mode); pp(f"L_si{tag}{v}:")
            pp("s_cmp_lg_u32 s99, 0")
    def stamp(pp, i, mode=0):
        if PROF and (PST == mode or i in (0, 9)):
            pp(f"{'s_memrealtime' if opts.get('rt') else 's_memtime'} s[{80+2*i}:{81+2*i}]\ns_waitcnt lgkmcnt(0)")
    def stamp_r(pp, i0, i1, tag):
        if PROF and PST == 0:
            pp(f"s_cmp_eq_u32 s{sRnd}, 0\ns_cbranch_scc0 L_st{tag}a"); stamp(pp, i0); pp(f"s_branch L_st{tag}b\nL_st{tag}a:"); stamp(pp, i1); pp(f"L_st{tag}b:")
    p(f"{KN}:")
    p("s_cmp_ge_u32 s2, 256\ns_cbranch_scc1 L_exit")
    p("s_load_dwordx8 s[56:63], s[0:1], 0\ns_load_dwordx8 s[64:71], s[0:1], 32")
    if PROF:
        for i in range(10): p(f"s_mov_b32 s{80+2*i}, 0")
        p("s_memrealtime s[100:101]")
    stamp(p, 0)
    p(f"v_lshrrev_b32 v1, 6, v0\nv_and_b32 v0, 63, v0\nv_lshlrev_b32 v{vLin}, 4, v0")
    p(f"v_readfirstlane_b32 s{sWave}, v1")
    p(f"s_bfe_u32 s{sB}, s2, 0x20001\ns_lshl_b32 s{sB}, s{sB}, 3\ns_lshr_b32 s{sBL}, s2, 5\ns_add_u32 s{sB}, s{sB}, s{sBL}")
    p(f"s_and_b32 s{sHG}, s2, 1\ns_lshl_b32 s{sHG}, s{sHG}, 2\ns_bfe_u32 s{sT3}, s2, 0x20003\ns_add_u32 s{sHG}, s{sHG}, s{sT3}")
    p(f"s_add_u32 s{sT3}, s{sT3}, s{sBL}")
    p(f"s_mul_i32 s{sT2}, s{sT3}, 205\ns_lshr_b32 s{sT2}, s{sT2}, 10\ns_mul_i32 s{sT2}, s{sT2}, 5\ns_sub_u32 s{sR0}, s{sT3}, s{sT2}")
    p(f"s_lshr_b32 s{sPi}, s{sWave}, 1")
    p(f"v_lshrrev_b32 v1, 4, v0\nv_and_b32 v2, 0xf0, v{vLin}\nv_and_b32 v3, 1, v1\nv_lshrrev_b32 v5, 1, v1")
    p(f"v_lshl_add_u32 v4, v3, 1, v5\nv_mul_u32_u24 v{vXd}, {8*1280}, v4\nv_lshlrev_b32 v4, 4, v3\nv_xor_b32 v4, v4, v2\nv_add_u32 v{vXd}, v{vXd}, v4")
    p(f"v_lshl_add_u32 v4, v5, 2, v3\nv_lshl_add_u32 v{vWd}, v4, 15, v2")
    p(f"s_mul_i32 s{sXl}, s{sWave}, {2*PCS}\ns_mul_i32 s{sXg}, s{sWave}, 1280")
    p(f"s_mul_i32 s{sHS}, s{sWave}, {SLOT}")
    p(f"s_and_b32 s{sT}, s{sWave}, 1\ns_lshl_b32 s{sGB}, s{sT}, 18\ns_lshl_b32 s{sT}, s{sPi}, 8\ns_add_u32 s{sGB}, s{sGB}, s{sT}")
    p(f"s_mul_i32 s{sT2}, s{sB}, 204800\ns_lshl_b32 s{sT3}, s{sHG}, 10\ns_sub_u32 s{sIt}, 5242880, s{sT3}\ns_mov_b32 s{sRnd}, 0")
    p("s_waitcnt lgkmcnt(0)")
    mksrd(p, sX, 56, f"s{sT2}", 204800)
    mksrd(p, sWQ, 62, f"s{sT3}", f"s{sIt}")
    call(p, "S_qpre")
    p("s_branch L_setup")
    def xops():
        o = []
        for t in range(5):
            for hh in range(2):
                o.append(f"s_add_u32 m0, s{sXl}, {XR+t*SLOT+hh*PCS}\ns_add_u32 s{sT}, s{sPc}, {(32*t+4*hh)*1280}\nbuffer_load_dwordx4 v{vXd}, {srd(sX)}, s{sT} offen lds")
        return o
    xpre = f"s_lshl_b32 s{sPc}, s{sCur}, 8\ns_add_u32 s{sPc}, s{sPc}, s{sXg}"
    def wops(pa=sPa, add=0):
        return [f"s_add_u32 m0, s{pa}, {pc*PCS}\ns_add_u32 s{sT}, s{sPb}, {(8*(pc&1)+(pc>>1))*8192+add}\nbuffer_load_dwordx4 v{vWd}, {srd(sWQ)}, s{sT} offen lds" for pc in range(8)]
    def wpre(reg, u):
        return f"s_add_u32 s{sPa}, s{sHS}, {reg}\ns_lshl_b32 s{sPb}, s{sCur}, 20\ns_add_u32 s{sPb}, s{sPb}, s{sGB}" + (f"\ns_add_u32 s{sPb}, s{sPb}, {64*8192}" if u else "")
    p("S_qpre:")
    p(f"s_mov_b32 s{sCur}, s{sR0}"); p(xpre)
    for o in xops(): p(o)
    p(wpre(K0, 0))
    p(f"s_mov_b32 s{sIt}, 0")
    p("L_qp2:")
    for o in wops(): p(o)
    p(f"s_add_u32 s{sPa}, s{sPa}, {K1-K0}\ns_add_u32 s{sPb}, s{sPb}, {64*8192}\ns_add_u32 s{sIt}, s{sIt}, 1\ns_cmp_lt_u32 s{sIt}, 2\ns_cbranch_scc1 L_qp2")
    ret(p, "S_qpre")
    p("L_setup:")
    p(f"v_mul_u32_u24 v{vWoA}, {4*1280}, v4\nv_add_u32 v{vWoA}, v{vWoA}, v2\nv_bfe_u32 v6, v0, 3, 1\nv_mul_u32_u24 v6, {128*1280}, v6")
    p(f"v_sub_u32 v{vWoB}, v{vWoA}, v6\nv_add_u32 v{vWoB}, {128*1280}, v{vWoB}\nv_add_u32 v{vWoA}, v{vWoA}, v6")
    p(f"v_mul_u32_u24 v{vWarm}, 1280, v1\nv_add_u32 v{vWarm}, v{vWarm}, v2")
    p(f"s_lshl_b32 s{sT}, s{sBL}, 2\ns_add_u32 s{sT}, s{sT}, s{sWave}\ns_mul_i32 s{sT}, s{sT}, {4*1280}\nv_add_u32 v{vWarm}, s{sT}, v{vWarm}")
    mksrd(p, sOUT, 66, f"s{sT2}", 204800)
    p(f"s_mov_b32 s{sDBG}, s68\ns_mov_b32 s{sDBG+1}, s69\ns_mov_b32 s{sDBG+2}, 256\ns_mov_b32 s{sDBG+3}, 0x20000")
    p("s_mov_b32 s66, s70\ns_mov_b32 s67, s71")
    p(f"s_lshl_b32 s{sT}, s{sB}, 3\ns_add_u32 s{sT}, s{sT}, s{sHG}\ns_lshl_b32 s{sT3}, s{sT}, 19\ns_lshl_b32 s{sPa}, s{sPi}, 17\ns_add_u32 s{sT3}, s{sT3}, s{sPa}")
    mksrd(p, sK, 58, f"s{sT3}", 131072); mksrd(p, sV, 60, f"s{sT3}", 131072)
    p(f"s_mul_i32 s{sT3}, s{sT}, {SLAB}"); mksrd(p, sPO, 66, f"s{sT3}", SLAB)
    p(f"s_lshl_b32 s{sT2}, s{sT2}, 3"); mksrd(p, sPA, 66, f"s{sT2}", 8 * SLAB)
    p(f"s_lshl_b32 s{sT2}, s{sB}, 10\ns_add_u32 s{sT2}, s{sT2}, {FLG}"); mksrd(p, sFL, 66, f"s{sT2}", 1024)
    p(f"s_mul_i32 s{sT2}, s{sHG}, {512*1280}"); mksrd(p, sWO, 64, f"s{sT2}", 512 * 1280)
    if PROF: p("s_mov_b32 s65, s100")
    p(f"s_mov_b32 s{sC}, {f2u(SCALE)}\ns_mov_b32 s{sMsk}, 0xffff0000")
    p(f"v_bfe_u32 v4, v0, 2, 2\nv_lshl_add_u32 v4, v4, 1, v3\nv_mul_u32_u24 v{vTl}, {PCS}, v4\nv_lshl_add_u32 v{vTl}, v5, 9, v{vTl}")
    p(f"v_and_b32 v4, 0x30, v{vLin}\nv_add_u32 v{vTl}, v{vTl}, v4")
    p(f"v_and_b32 v4, 3, v0\nv_bfe_u32 v6, v0, 2, 1\nv_lshl_add_u32 v4, v4, 1, v6\nv_mul_u32_u24 v7, {PCS}, v4\nv_bfe_u32 v6, v0, 3, 1\nv_lshl_add_u32 v7, v6, 9, v7")
    p(f"v_xor_b32 v6, 1, v1\nv_lshl_add_u32 v8, v6, 4, v7\nv_add_u32 v8, 256, v8\nv_lshl_add_u32 v7, v1, 4, v7")
    p(f"s_mul_i32 s{sMK}, s{sPi}, {K1}")
    p(f"v_add_u32 v{vKa0}, s{sMK}, v7\nv_add_u32 v{vKa1}, s{sMK}, v8\ns_add_u32 s{sMV}, s{sMK}, {V0}\nv_add_u32 v{vVa}, s{sMV}, v{vTl}")
    p(f"s_and_b32 s{sT}, s{sWave}, 1\ns_mul_i32 s{sT2}, s{sT}, {4*PCS}\ns_add_u32 s{sMK}, s{sMK}, s{sT2}\ns_add_u32 s{sMV}, s{sMV}, s{sT2}")
    p(f"v_add_u32 v{vXa0}, {XR}, v7\nv_add_u32 v{vXa1}, {XR}, v8")
    p(f"s_cmp_eq_u32 s{sT}, 0\ns_cbranch_scc1 L_x0")
    p(f"v_add_u32 v{vXa0}, {XR+2*SLOT}, v8\nv_add_u32 v{vXa1}, {XR+3*SLOT}, v7")
    p("L_x0:")
    p(f"s_mul_i32 s{sT2}, s{sT}, 20480\ns_lshl_b32 s{sT3}, s{sPi}, 11\ns_add_u32 s{sT2}, s{sT2}, s{sT3}\nv_add_u32 v{vSt}, s{sT2}, v{vLin}")
    p(f"s_lshr_b32 s{sT2}, s{sHG}, 2\ns_and_b32 s{sT3}, s{sHG}, 3\ns_lshl_b32 s{sT3}, s{sT3}, 2\ns_add_u32 s{sT3}, s{sT3}, s{sWave}")
    p(f"s_mul_i32 s{sPa}, s{sT2}, 20480\ns_lshl_b32 s{sPb}, s{sT3}, 8\ns_add_u32 s{sPa}, s{sPa}, s{sPb}\ns_mov_b32 s{sPb}, {SLAB}")
    p(f"v_mul_lo_u32 v{vOfs}, s{sPb}, v1\nv_add3_u32 v{vOfs}, v{vOfs}, v2, s{sPa}")
    p(f"s_mul_i32 s{sPa}, s{sT2}, {80*1280}\ns_lshl_b32 s{sPb}, s{sT3}, 4\ns_add_u32 s{sPa}, s{sPa}, s{sPb}")
    p(f"v_and_b32 v4, 15, v0\nv_lshl_add_u32 v6, v5, 4, v4\nv_mul_u32_u24 v{vOfo}, 1280, v6\nv_lshl_add_u32 v{vOfo}, v3, 3, v{vOfo}\nv_add_u32 v{vOfo}, s{sPa}, v{vOfo}")
    p(f"v_mov_b32 v6, {OOB}\nv_cmp_gt_u32 s[{sT2}:{sT2+1}], 32, v0\nv_cndmask_b32 v{vOf3}, v6, v{vOfo}, s[{sT2}:{sT2+1}]")
    p(f"v_and_b32 v6, 1, v0\nv_lshlrev_b32 v6, 4, v6\nv_mov_b32 v9, 0x3f80\nv_lshlrev_b32 v6, v6, v9\nv_lshrrev_b32 v4, 1, v4")
    for r in range(8):
        p(f"v_cmp_eq_u32 s[{sT2}:{sT2+1}], {r}, v4\nv_cndmask_b32 v{SEL+r}, 0, v6, s[{sT2}:{sT2+1}]")
    p(f"v_mov_b32 v{vZ}, 0\nv_mov_b64 {vr(TT,2)}, 0\nv_mov_b64 {vr(TT+2,2)}, 0")
    zacc = [f"v_mfma_f32_32x32x16_bf16 {vr(16*i,16)}, {vr(TT,4)}, {vr(TT,4)}, 0" for i in range(10)]
    p(f"s_lshl_b32 s{sT}, s{sHG}, 3\ns_add_u32 s{sT}, s{sT}, s{sWave}\ns_cmp_eq_u32 s{sT}, 1\ns_cbranch_scc1 L_fi")
    p("L_fib:")
    DRY = opts.get('dry', 0)
    if DRY:
        for z in zacc: p(z)
        p(f"v_mfma_f32_32x32x16_bf16 {vr(160,16)}, {vr(TT,4)}, {vr(TT,4)}, 0\nv_mfma_f32_32x32x16_bf16 {vr(176,16)}, {vr(TT,4)}, {vr(TT,4)}, 0")
        p(f"v_mov_b32 v{vDk}, {OOB}\nv_mov_b32 v{vDv}, {OOB}\ns_mov_b32 s{sRa}, s{sMK}\ns_mov_b32 s{sRb}, s{sMV}\ns_mov_b32 s{sMK}, 0x30000\ns_mov_b32 s{sMV}, 0x30000\ns_mov_b32 s{sDry}, 1\ns_mov_b64 vcc, 0")
        for w, l in ((1, "l1"), (2, "l3"), (3, "e13")): p(f"s_cmp_eq_u32 s{sWave}, {w}\ns_cbranch_scc1 L_A_{l}")
        p("s_branch L_A_m2")
        p("L_dry_done:")
        p(f"s_mov_b32 s{sMK}, s{sRa}\ns_mov_b32 s{sMV}, s{sRb}\ns_mov_b32 s{sDry}, 0\ns_waitcnt lgkmcnt(0)")
    side("L_fi:")
    side(f"buffer_store_dwordx4 {vr(TT,4)}, v{vLin}, {srd(sFL)}, 0 offen sc1\ns_waitcnt vmcnt(0)")
    side(f"s_lshl_b32 s{sT}, s{sB}, 3\nv_mov_b32 v200, s{sT}\nv_mov_b32 v201, 1\ns_mov_b64 exec, 1")
    side(f"buffer_atomic_add v201, v200, {srd(sDBG)}, 0 offen sc1\ns_mov_b64 exec, -1\ns_branch L_fib")

    def kv_ops(isk, tile4):
        base, vo, sr = (sMK, vDk, sK) if isk else (sMV, vDv, sV)
        slot = tile4 & 3 if isk else (tile4 + 2) & 3
        o = [f"s_add_u32 m0, s{base}, {slot*SLOT+32*j}\ns_nop 0\nbuffer_load_dwordx4 v{vo}, {srd(sr)}, 0 offen offset:{1024*j} nt lds" for j in range(4)]
        o[-1] += f"\nv_add_u32 v{vo}, 0x2000, v{vo}"
        return o

    p("L_round:")
    p(f"s_and_b32 s{sT}, s{sWave}, 1\ns_lshl_b32 s{sT}, s{sT}, 12\nv_add_u32 v{vDv}, s{sT}, v{vLin}\nv_bfe_u32 v{t0}, v{vLin}, 8, 1\nv_lshlrev_b32 v{t0}, 4, v{t0}\nv_xor_b32 v{vDk}, v{t0}, v{vDv}")
    p(f"s_mul_i32 s{sT}, s{sPi}, {2*SLOT}\nv_add_u32 v{tA}, s{sT}, v{vTl}\nv_add_u32 v{tB}, {K1}, v{tA}\nv_add_u32 v{tC}, {V0}, v{tA}")
    p(f"s_add_u32 s{sRa}, s{sHS}, {K0}\ns_add_u32 s{sRb}, s{sHS}, {K1}\ns_add_u32 s{sRc}, s{sHS}, {V0}\ns_mov_b32 s{sIt}, 0")
    p(f"v_mov_b64 {vr(TT,2)}, 0\nv_mov_b64 {vr(TT+2,2)}, 0")
    for z in zacc: p(z)
    xb = lambda t, j: 16 * t + 4 * j
    xt = lambda t, j: 80 + 8 * t + 4 * (j - 2)
    qacc = lambda nt, t: 32 * t + 4 * nt
    for r in range(8): p(f"v_accvgpr_write_b32 a{aF+r}, 0")
    for t in range(5):
        for r in range(4): p(f"v_accvgpr_write_b32 a{xb(t,3)+r}, 0")
    p("s_waitcnt vmcnt(0)\ns_barrier")
    stamp_r(p, 1, 4, "q"); stamp(p, 1, 1)
    def xread(t, j): return f"ds_read_b128 {ar(xb(t,j) if j < 2 else xt(t,j),4)}, v{[vXa0,vXa1][t&1]} offset:{(t>>1)*SLOT+64*j}"
    for j in range(4):
        for t in range(5): p(xread(t, j))
        if j % 2: p("s_waitcnt lgkmcnt(0)")
    p("s_barrier")
    HQ = 2
    NS = opts.get('ns', 3)
    def gunit(rdtxt, mf, streams, vm=None, T=None):
        lg = Q(p, "lgkmcnt", 15); tok = {0: 0, 1: 0}
        G = Gaps()
        for m in range(14):
            for e in range(2): G.pin(5 * m + 5 + e, ("RD", m + 4, e))
        for m in range(2, 16): G.reserve(5 * m - 1)
        for seq, gaps in streams: G.stream(seq, gaps)
        def rd(m, e): lg.room(1); p(rdtxt(m, e)); tok[m] = lg.issue()
        for m in (2, 3):
            for e in range(2): rd(m, e)
        for m in range(16):
            lg.wait(tok[m])
            for t in range(5):
                p(mf(m, t))
                for o in G.items[5 * m + t]:
                    if isinstance(o, str): p(o)
                    elif o[0] == "RD": rd(o[1], o[2])
                    elif o[0] == "DS": lg.room(1); p(o[1]); lg.issue()
                    elif o[0] == "W": vm.wait(T.get(o[1], 0))
                    else:
                        p(o[1])
                        if vm:
                            tk = vm.issue()
                            if o[2]: T[o[2]] = tk
    def qunit(u, dm, fill, endw, span=76):
        def rdtxt(m, e):
            f = m - HQ; ks = f >> 3; nt = f & 7
            return f"ds_read_b64_tr_b16 {ar(FB(m)+2*e,2)}, v{[tA,tB][u]} offset:{ks*SLOT+e*256+(nt>>1)*64+(nt&1)*8}"
        def mf(m, t):
            f = m - HQ
            j = (2 * u + (f >> 3)) & 3 if f >= 0 else (2 * u - 1) & 3
            return m16(vr(qacc(f & 7, t), 4), ar(FB(m), 4), ar(xb(t, j), 4))
        gunit(rdtxt, mf, [(split(dm), list(range(0, span)))] + fill)
        p(endw)
    movs = [([(f"v_accvgpr_mov_b32 a{xb(t,j)+r}, a{xt(t,j)+r}", 1) for j in (2, 3) for t in range(5) for r in range(4)], list(range(0, 79)))]
    xrd = [([(("DS", xread(t, j)), 1) for j in (2, 3, 0, 1) for t in range(5)], list(range(1, 70)))]
    rot = (f"v_mov_b32 v{t0}, v{tC}\nv_mov_b32 v{tC}, v{tB}\nv_mov_b32 v{tB}, v{tA}\nv_mov_b32 v{tA}, v{t0}\n"
           f"s_mov_b32 s{sT}, s{sRc}\ns_mov_b32 s{sRc}, s{sRb}\ns_mov_b32 s{sRb}, s{sRa}\ns_mov_b32 s{sRa}, s{sT}")
    p("L_Q_loop:")
    stamp_it(p, 1, "q", [(0, 2), (2, 3)])
    p(f"s_add_u32 s{sCur}, s{sCur}, 1\ns_cmp_ge_u32 s{sCur}, 5\ns_cselect_b32 s{sCur}, 0, s{sCur}")
    p(xpre); p(f"s_lshl_b32 s{sPb}, s{sCur}, 20\ns_add_u32 s{sPb}, s{sPb}, s{sGB}")
    p(f"s_cmp_eq_u32 s{sIt}, 3\ns_cselect_b32 s{sPa}, 0x30000, s{sRa}")
    qunit(0, xops() + wops(sRc)[:NS], movs, f"s_waitcnt vmcnt({NS}) lgkmcnt(0)\ns_barrier", span=70)
    qunit(1, wops(sRc)[NS:] + wops(sPa, 64 * 8192), xrd, rot + f"\ns_add_u32 s{sIt}, s{sIt}, 1\ns_cmp_lt_u32 s{sIt}, 4\ns_waitcnt vmcnt(8) lgkmcnt(0)\ns_barrier")
    p("s_cbranch_scc1 L_Q_loop")
    stamp(p, 4, 1)
    p(f"s_add_u32 s{sPa}, s{sHS}, {XR}\ns_mul_i32 s{sT}, s{sPi}, {2*SLOT}\ns_add_u32 s{sT}, s{sT}, {XR}\nv_add_u32 v{tB}, s{sT}, v{vTl}")
    kpre = kv_ops(True, 0) + kv_ops(True, 1) + kv_ops(True, 2) + kv_ops(True, 3)
    qunit(0, wops(sPa, 64 * 8192) + kpre[:8], movs, "s_waitcnt vmcnt(8) lgkmcnt(0)\ns_barrier")
    qunit(1, kpre[8:], [], "s_waitcnt vmcnt(12) lgkmcnt(0)\ns_barrier")
    stamp(p, 5, 1)
    vpre = [o for k in range(3) for o in kv_ops(False, k)]
    for m in range(HQ):
        for t in range(5): p(m16(vr(qacc(6 + m, t), 4), ar(FB(m), 4), ar(xb(t, 3), 4)))
    for r in range(0, 20, 2): p(f"v_mov_b64 {vr(NM+r,2)}, 0")
    for i in range(80):
        p(f"v_pk_mul_f32 {vr(2*i,2)}, {vr(2*i,2)}, s[{sC}:{sC+1}] op_sel_hi:[1,0]")
        if i >= 2: p(f"v_cvt_pk_bf16_f32 v{i-2}, v{2*i-4}, v{2*i-3}")
        if i % 6 == 0 and i // 6 < 12: p(vpre[i // 6])
    p("v_cvt_pk_bf16_f32 v78, v156, v157\nv_cvt_pk_bf16_f32 v79, v158, v159")
    q("S_pack:")
    for J in range(4):
        for t in range(5):
            tm = SS[0] + 8 * ((J * 5 + t) & 3)
            for h in range(2):
                for r in range(4): q(f"v_accvgpr_read_b32 v{tm+4*h+r}, a{oacc(2*J+h,t)+r}")
            for r in range(0, 8, 2): q(f"v_pk_mul_f32 {vr(tm+r,2)}, {vr(tm+r,2)}, {vr(FAC+2*t,2)} op_sel_hi:[1,0]")
            for r in range(4): q(f"v_cvt_pk_bf16_f32 v{QR+16*t+4*J+r}, v{tm+2*r}, v{tm+2*r+1}")
    ret(q, "S_pack")
    stamp(p, 6, 1); stamp(p, 7, 1)
    stamp_r(p, 2, 5, "a")

    HB = 2
    DRYN = {"m2": "L_A_m1", "m1": "L_A_z0", "z0": "L_dry_done", "l1": "L_A_l2", "l2": "L_dry_done", "l3": "L_A_l0", "l0": "L_dry_done", "e13": "L_A_e14", "e15": "L_dry_done"}
    def sm_ops(b):
        seq = []
        for k in range(43):
            if k < 40: seq.append((f"v_exp_f32 v{b+k}, v{b+k}", 2))
            if 2 <= k <= 41: seq.append((f"v_add_f32 v{LL+((k-2)>>3)}, v{LL+((k-2)>>3)}, v{b+k-2}", 1))
            if k >= 4 and k % 2 == 0:
                i = (k - 4) // 2
                seq.append((f"v_cvt_pk_bf16_f32 v{b+8*(i>>2)+(i&3)}, v{b+2*i}, v{b+2*i+1}", 1))
        return seq
    W1 = list(range(24, 80)) + list(range(0, 9))
    def abody(tag, nm, held=True, pv=True, qk=True, zc=False, first=False, dma=True, smt=True, smh=True, endw="vmcnt(16)", bar=True, extra=None):
        Sn = SS[nm & 1]; Sn1 = SS[(nm + 1) & 1]
        lg = Q(p, "lgkmcnt", 15); tok = {0: 0, 1: 0}
        p(f"L_A_{tag}:")
        vslot = (nm + 2) & 3; kslot = (nm + 2) & 3
        ms = ([0, 1] if held else []) + (list(range(2, 10)) if pv else []) + (list(range(10, 16)) if qk else [])
        rds = (list(range(2, 10)) if pv else []) + (list(range(10, 18)) if qk else [])
        def rd(m):
            if m < 10:
                dt = m - 2
                lg.room(2)
                for e in range(2):
                    p(f"ds_read_b64_tr_b16 {ar(FB(m)+2*e,2)}, v{vVa} offset:{vslot*SLOT+e*256+(dt>>1)*64+(dt&1)*8}")
                tok[m] = lg.issue(2)
            else:
                k = m - 10
                p(f"ds_read_b128 {ar(FB(m),4)}, v{[vKa0,vKa1][k>>2]} offset:{kslot*SLOT+64*(k&3)}")
                tok[m] = lg.issue()
        gaps = {}
        def add(d):
            for g, l in d.items(): gaps.setdefault(g, []).extend(l)
        if smt: add({g: l for g, l in spread(sm_ops(Sn), W1).items() if g < 9})
        if smh:
            if not first:
                n = Sn1; regs = [n + 8 * t + r for t in range(5) for r in range(4)] + [n + 8 * t + 4 + r for t in range(5) for r in range(4)]
                mx = [f"v_max3_f32 v{TT}, v{regs[0]}, v{regs[1]}, v{regs[2]}", f"v_max3_f32 v{TT+1}, v{regs[3]}, v{regs[4]}, v{regs[5]}"]
                for i in range(6, 40, 2): mx.append(f"v_max3_f32 v{TT+((i>>1)&1)}, v{TT+((i>>1)&1)}, v{regs[i]}, v{regs[i+1]}")
                mx.append(f"v_max_f32 v{TT}, v{TT}, v{TT+1}")
                add(spread([(o, 1) for o in mx], list(range(9, 23))))
            add({23: ["CHECK"]})
            add({g: l for g, l in spread(sm_ops(Sn1), W1).items() if g >= 24})
            if not first: add({54 if qk else 79: ["PT2"]})
        dm = (kv_ops(True, nm + 1) + (kv_ops(False, nm + 3) if dma != 'k' else [])) if dma else []
        xs = [5 * m + t for m in ms for t in range(5)]
        dl = spread([(o, 1) for o in dm], xs[:-2]) if dm else {}
        free = 4 - (2 if held else 0); ri = 0
        while ri < len(rds) and ri < free: rd(rds[ri]); ri += 1
        if extra: extra()
        def emit(x):
            for o in gaps.get(x, []):
                if o == "CHECK":
                    if first: call(p, "S_first")
                    else:
                        p(f"v_cmp_lt_f32 vcc, 0x41000000, v{TT}\ns_cbranch_vccnz L_rr{tag}")
                        p(f"L_rb{tag}:")
                        side(f"L_rr{tag}:"); call(side, f"S_rare{(nm+1)&1}"); side(f"s_branch L_rb{tag}")
                elif o == "PT2":
                    p(f"s_cbranch_vccnz L_p2{tag}")
                    p(f"L_pb{tag}:")
                    side(f"L_p2{tag}:"); call(side, "S_scale"); side(f"s_branch L_pb{tag}")
                else: p(o)
        for m in range(16):
            if m in ms: lg.wait(tok[m])
            for t in range(5):
                x = 5 * m + t
                if m in ms:
                    if m < 2: p(m16(vr(Sn1 + 8 * t + 4, 4), ar(FB(m), 4), vr(QR + 16 * t + 4 * (2 + m), 4)))
                    elif m < 10: p(m16(ar(oacc(m - 2, t), 4), ar(FB(m), 4), vr(Sn + 8 * t, 4), '0' if zc else None))
                    else:
                        k = m - 10
                        p(m16(vr(Sn + 8 * t + 4 * (k >> 2), 4), ar(FB(m), 4), vr(QR + 16 * t + 4 * (k & 3), 4), vr(NM + 4 * t, 4) if k & 3 == 0 else None))
                    if t == 4 and ri < len(rds): rd(rds[ri]); ri += 1
                for o in dl.get(x, []): p(o)
                emit(x)
        assert ri == len(rds)
        if DRY and tag != "e14":
            p(f"s_cmp_lg_u32 s{sDry}, 0\ns_cbranch_scc1 {DRYN[tag]}")
        if bar: p(f"s_waitcnt {endw} lgkmcnt(0)")
    def xl(op, a, b):
        return (f"v_mov_b32 v{b}, v{a}\nv_permlane16_swap_b32 v{a}, v{b}\n{op} v{a}, v{a}, v{b}\n"
                f"v_mov_b32 v{b}, v{a}\nv_permlane32_swap_b32 v{a}, v{b}\n{op} v{a}, v{a}, v{b}")
    def shiftsub(name, n, first):
        q(f"{name}:")
        for t in range(5):
            b = n + 8 * t
            q(f"v_max3_f32 v{TT}, v{b}, v{b+1}, v{b+2}\nv_max3_f32 v{TT}, v{TT}, v{b+3}, v{b+4}\nv_max3_f32 v{TT}, v{TT}, v{b+5}, v{b+6}\nv_max_f32 v{TT}, v{TT}, v{b+7}")
            q(xl("v_max_f32", TT, TT + 1))
            if first: q(f"v_mov_b32 v{LL+t}, 0")
            else: q(f"v_max_f32 v{TT}, 0, v{TT}\nv_exp_f32 v{FAC+2*t}, -v{TT}")
            for r in range(8): q(f"v_sub_f32 v{b+r}, v{b+r}, v{TT}")
            for r in range(4): q(f"v_sub_f32 v{NM+4*t+r}, v{NM+4*t+r}, v{TT}")
            if not first: q(f"v_mul_f32 v{LL+t}, v{LL+t}, v{FAC+2*t}")
        ret(q, name)
    shiftsub("S_rare0", SS[0], False); shiftsub("S_rare1", SS[1], False); shiftsub("S_first", SS[0], True)
    q("S_scale:")
    for dt in range(8):
        for t in range(5):
            a = oacc(dt, t)
            for r in range(4): q(f"v_accvgpr_read_b32 v{TT+4+r}, a{a+r}")
            for r in (0, 2): q(f"v_pk_mul_f32 {vr(TT+4+r,2)}, {vr(TT+4+r,2)}, {vr(FAC+2*t,2)} op_sel_hi:[1,0]")
            for r in range(4): q(f"v_accvgpr_write_b32 a{a+r}, v{TT+4+r}")
    ret(q, "S_scale")
    stamp(p, 1, 3)
    abody("m2", 2, held=False, pv=False, smt=False, smh=False, dma=False, endw="vmcnt(20)"); p("s_barrier")
    abody("m1", 3, pv=False, smt=False, first=True, dma='k', endw="vmcnt(12)"); p("s_barrier")
    abody("z0", 0, zc=True); p(f"s_mov_b32 s{sIt}, 0\ns_barrier"); stamp(p, 2, 3)
    for nm in (1, 2, 3, 0):
        abody(f"l{nm}", nm)
        if nm == 0: p(f"s_add_u32 s{sIt}, s{sIt}, 1\ns_cmp_lt_u32 s{sIt}, 3")
        p("s_barrier")
    p("s_cbranch_scc1 L_A_l1")
    stamp(p, 3, 3)
    abody("e13", 1, dma=False, endw="vmcnt(0)"); p("s_barrier")
    def nextpre():
        if DRY: p(f"s_cmp_lg_u32 s{sDry}, 0\ns_cbranch_scc1 L_np2")
        p(f"s_cmp_eq_u32 s{sRnd}, 0\ns_cbranch_scc0 L_np1")
        p(f"s_add_u32 s{sGB}, s{sGB}, 512"); call(p, "S_qpre"); p("s_branch L_np2")
        p("L_np1:")
        p(f"s_mul_i32 s{sGB}, s{sWave}, {32*1280}")
        p(f"s_add_u32 s{sPa}, s{sHS}, {K0}\ns_mov_b32 s{sPb}, s{sGB}"); call(p, "S_odma")
        p(f"s_add_u32 s{sPa}, s{sHS}, {K1}\ns_add_u32 s{sPb}, s{sGB}, {256*1280}"); call(p, "S_odma")
        p("L_np2:")
    stamp(p, 4, 3)
    abody("e14", 2, qk=False, dma=False, bar=False, extra=nextpre)
    abody("e15", 3, held=False, qk=False, dma=False, smh=False, bar=False)
    stamp(p, 5, 3)
    for t in range(5):
        p(xl("v_add_f32", LL + t, TT)); p(f"v_rcp_f32 v{FAC+2*t}, v{LL+t}")
    call(p, "S_pack")
    stamp_r(p, 3, 6, "e"); stamp(p, 6, 3); stamp(p, 7, 3)
    p(f"s_cmp_eq_u32 s{sRnd}, 1\ns_cbranch_scc1 L_T")
    for r in range(80): p(f"v_accvgpr_write_b32 a{aSV+r}, v{QR+r}")
    p(f"s_mov_b32 s{sRnd}, 1")
    for s_ in (sK, sV): p(f"s_add_u32 s{s_}, s{s_}, 262144\ns_addc_u32 s{s_+1}, s{s_+1}, 0")
    PWG = opts.get('pwg', 2)
    p("s_branch L_round")

    def oops(vo): return [f"s_add_u32 m0, s{sPa}, {pc*PCS}\ns_add_u32 s{sT}, s{sPb}, {(8*(pc&1)+(pc>>1))*1280}\nbuffer_load_dwordx4 v{vo}, {srd(sWO)}, s{sT} offen lds" for pc in range(8)]
    q("S_odma:")
    for o in oops(vWoA): q(o)
    ret(q, "S_odma")
    q("S_odmb:")
    for o in oops(vWoB): q(o)
    ret(q, "S_odmb")
    q("S_warm:")
    for k in range(4): q(f"s_add_u32 s{sT}, s{sPa}, {k*128*1280}\nbuffer_load_dwordx4 {vr(TMP,4)}, v{vWarm}, {srd(sWO)}, s{sT} offen")
    ret(q, "S_warm")
    SLP = opts.get('slp', 4)
    q("S_spin:")
    q(f"buffer_load_dword v{vPol}, v{vZ}, {srd(sFL)}, s{sFo} offen sc1\ns_waitcnt vmcnt(0)")
    q("S_spinc:")
    q(f"v_readfirstlane_b32 s{sT}, v{vPol}\ns_cmp_eq_u32 s{sT}, 8\ns_cbranch_scc1 L_spr\ns_sleep {SLP}\ns_branch S_spin")
    q("L_spr:"); ret(q, "S_spin|S_spinc")
    q("S_post:")
    q(f"s_cmp_lg_u32 s{sWave}, 0\ns_cbranch_scc1 L_pr\nv_mov_b32 v{t0}, 1\ns_mov_b64 exec, 1")
    q(f"buffer_atomic_add v{t0}, v{vZ}, {srd(sFL)}, s{sT2} offen sc1\ns_mov_b64 exec, -1")
    q("L_pr:"); ret(q, "S_post")
    def ld_op(li):
        sg = li >> 1; h = li & 1
        return f"s_add_u32 s{sT}, s{sPc}, {sg*4096+h*4*SLAB}\nbuffer_load_dwordx4 {vr(RB+4*li,4)}, v{vOs2}, {srd(sPA)}, s{sT} offen sc1"
    LSET = [range(0, 4), range(4, 8), range(8, 10)]
    def red_ops(k):
        d = RD + 4 * k
        o = [m16(vr(d, 4), vr(SEL + 4 * ((li >> 1) & 1), 4), vr(RB + 4 * li, 4), '0' if li % 4 == 0 else None) for li in LSET[k]]
        o2 = [f"v_cvt_pk_bf16_f32 v{d}, v{d}, v{d+1}", f"v_cvt_pk_bf16_f32 v{d+1}, v{d+2}, v{d+3}",
              ("VM", f"s_add_u32 s{sT2}, s{sPd}, {k*32*1280}\nbuffer_store_dwordx2 {vr(d,2)}, v{vOo3 if k == 2 else vOo2}, {srd(sOUT)}, s{sT2} offen", None)]
        return o, o2
    q("S_ld:")
    for li in range(10): q(ld_op(li))
    q("s_waitcnt vmcnt(0)")
    q("S_reda:")
    for o in red_ops(0)[0]: q(o)
    q("S_redb:")
    for k in (1, 2):
        for o in red_ops(k)[0]: q(o)
    for k in range(3):
        for o in red_ops(k)[1]: q(o if isinstance(o, str) else o[1])
    ret(q, "S_ld|S_reda|S_redb")
    def reduce_group(g):
        p(f"s_mov_b32 s{sPc}, {g*40960}\ns_movk_i32 s{sPd}, {g*256}"); call(p, "S_ld")

    p("L_T:")
    stamp(p, 1, 2)
    p(f"s_mov_b32 s{sT}, {EXA[0]}\ns_mul_i32 s{sT2}, s{sWave}, 20480\ns_add_u32 s{sT2}, s{sT2}, {V1-20480}\ns_cmp_eq_u32 s{sWave}, 0\ns_cselect_b32 s{sT2}, s{sT}, s{sT2}")
    p(f"v_add_u32 v{vR0}, s{sT2}, v{vLin}")
    p(f"s_xor_b32 s{sT3}, s{sWave}, 2\ns_mul_i32 s{sT2}, s{sT3}, 20480\ns_add_u32 s{sT2}, s{sT2}, {V1-20480}\ns_cmp_eq_u32 s{sT3}, 0\ns_cselect_b32 s{sT2}, s{sT}, s{sT2}")
    p(f"v_add_u32 v{vR1}, s{sT2}, v{vLin}")
    p(f"s_lshl_b32 s{sT}, s{sB}, 3\nv_mov_b32 v{t0}, s{sT}")
    p("L_isp:")
    p(f"buffer_load_dword v{vPol}, v{t0}, {srd(sDBG)}, 0 offen sc1")
    for g in range(5): p(f"s_movk_i32 s{sPa}, {g*256}"); call(p, "S_warm")
    p("s_barrier")
    for step in range(2):
        for i in range(20):
            p(f"ds_write_b128 v{vR0}, {ar(aSV+4*i,4) if step == 0 else vr(QR+4*i,4)} offset:{1024*i}")
            if i % 10 == 9: p("s_waitcnt lgkmcnt(0)")
        p("s_barrier")
        for i in range(20):
            p(f"ds_read_b128 {ar(80*step+4*i,4)}, v{vR1} offset:{1024*i}")
            if i % 10 == 9: p("s_waitcnt lgkmcnt(0)")
        if step == 1:
            p(f"s_waitcnt vmcnt(20)")
            p("L_ick:")
            p(f"v_readfirstlane_b32 s{sT}, v{vPol}\ns_cmp_eq_u32 s{sT}, 1\ns_cbranch_scc1 L_iok")
            p(f"s_sleep 8\nbuffer_load_dword v{vPol}, v{t0}, {srd(sDBG)}, 0 offen sc1\ns_waitcnt vmcnt(0)\ns_branch L_ick")
            p("L_iok:")
        p("s_barrier")
    REG = [K0, K1, V0, V1]; TBr = [vR0, vR1, vR2, vR3]
    p(f"s_lshl_b32 s{sT}, s{sPi}, 7\nv_add_u32 v{vR0}, s{sT}, v{vTl}\nv_add_u32 v{vR1}, {K1}, v{vR0}\nv_add_u32 v{vR2}, {V0}, v{vR0}\nv_add_u32 v{vR3}, {V1}, v{vR0}")
    p(f"s_add_u32 s{sPa}, s{sHS}, {V0}\ns_mov_b32 s{sPb}, s{sGB}"); call(p, "S_odmb")
    p(f"v_mov_b32 v{vSt2}, {OOB}\nv_mov_b32 v{vOs2}, {OOB}\nv_mov_b32 v{vOo2}, {OOB}\nv_mov_b32 v{vOo3}, {OOB}")
    p(f"s_mov_b32 s{sIt}, 0\ns_mov_b32 s{sSt}, 0\ns_mov_b32 s{sPc}, 0\ns_mov_b32 s{sPd}, 0\ns_mov_b32 s{sFo}, 0\ns_mov_b32 s{sCol}, s{sGB}\ns_mov_b32 s{sRa}, s{sHS}")
    Bop = lambda qd, t, ts: [ar(aSV + 16 * t + 4 * ts, 4), vr(QR + 16 * t + 4 * ts, 4), ar(16 * t + 4 * ts, 4), ar(80 + 16 * t + 4 * ts, 4)][qd]
    tacc = lambda Jp, t, h: TA + 40 * Jp + 8 * t + 4 * h
    def st_ops(Jp, vo, back):
        o = []
        for t in range(5):
            tm = TMP + 4 * (t & 1); a = tacc(Jp, t, 0)
            o += [f"v_cvt_pk_bf16_f32 v{tm+i}, v{a+2*i}, v{a+2*i+1}" for i in range(4)]
            o.append(("VM", f"s_add_u32 s{sT3}, s{sSt}, {t*4096}\nbuffer_store_dwordx4 {vr(tm,4)}, v{vo}, {srd(sPO)}, s{sT3} offen offset:{1024*Jp} sc1", 'ps'))
        return o
    vm = Q(p, "vmcnt", 63); T = {}
    def tmf(qd, f, m):
        Jp = f >> 3; ts = (f >> 1) & 3; h = f & 1
        return [m16(vr(tacc(Jp, t, h), 4), ar(FB(m), 4), Bop(qd, t, ts), '0' if qd == 0 and ts == 0 else None) for t in range(5)]
    LAG = opts.get('lag', 2); PQ = opts.get('pq', 2)
    def period():
        for qd in range(4):
            D = (qd + 3) & 3
            if qd == 0:
                p(f"buffer_load_dword v{vPol}, v{vZ}, {srd(sFL)}, s{sFo} offen sc1"); T['poll'] = vm.issue()
            if qd == 1:
                p(f"s_add_u32 s{sCol}, s{sCol}, 256\ns_cmp_ge_u32 s{sIt}, {LAG}\ns_cbranch_scc1 L_T_ck")
                p("L_T_ckb:")
                T['pollw'] = vm.n - T['poll']
            if qd == PQ:
                p(f"s_lshl_b32 s{sT2}, s{sIt}, 7\ns_sub_u32 s{sT2}, s{sT2}, 128\ns_cbranch_scc1 L_T_np"); call(p, "S_post"); p("L_T_np:")
            if qd == 3:
                p(f"s_lshl_b32 s{sPd}, s{sIt}, 8\ns_sub_u32 s{sPd}, s{sPd}, {256*LAG}\ns_cselect_b32 s{sPd}, 0, s{sPd}\ns_cbranch_scc1 L_T_no\nv_mov_b32 v{vOo2}, v{vOfo}\nv_mov_b32 v{vOo3}, v{vOf3}")
                p("L_T_no:")
            p(f"s_add_u32 s{sPa}, s{sRa}, {REG[D]}\ns_add_u32 s{sPb}, s{sCol}, {(D&1)*256*1280}\ns_add_u32 s{sRb}, s{sPb}, {8*1280}")
            vmo = []
            lds_ = list(LSET[qd - 1]) if qd >= 1 else []
            for i in range(8):
                im = (i >> 1) * 1280
                vmo.append(("VM", f"s_add_u32 m0, s{sPa}, {i*PCS-im}\nbuffer_load_dwordx4 v{vWoA if D < 2 else vWoB}, {srd(sWO)}, s{sRb if i & 1 else sPb} offen offset:{im} lds", ('d', D)))
                if i % 2 and lds_: vmo.append(("VM", ld_op(lds_.pop(0)), ('l', qd - 1)))
            streams = []
            if qd == 0: streams.append((split(st_ops(1, vSt2, True) + [f"v_mov_b32 v{vSt2}, v{vSt}\ns_mul_i32 s{sSt}, s{sIt}, 40960"]), list(range(13, 49))))
            if qd == 3: streams.append((split(st_ops(0, vSt, False)), list(range(53, 80))))
            streams.append((split(vmo), list(range(0, 78))))
            rk = (qd + 1) & 3
            if rk < 3: streams.append(([(("W", ('l', rk)), 1)] + [(o, 1) for o in red_ops(rk)[0]], list(range(30, 50))))
            else: streams.append((split([o for k in range(3) for o in red_ops(k)[1]]), list(range(0, 78))))
            def rdtxt(m, e):
                f = m - 2; Jp = f >> 3; ts = (f >> 1) & 3; h = f & 1
                return f"ds_read_b64_tr_b16 {ar(FB(m)+2*e,2)}, v{TBr[qd]} offset:{ts*SLOT+e*256+Jp*64+h*8}"
            gunit(rdtxt, lambda m, t: (tmf(qd, m - 2, m) if m >= 2 else tmf((qd - 1) & 3, 14 + m, m))[t], streams, vm, T)
            need = T.get(('d', (qd + 1) & 3), 0)
            if qd == PQ - 1: need = max(need, T['ps'])
            if qd == 1: need = max(need, T['poll'])
            vm.wait(need)
            if qd == 3: p(f"s_add_u32 s{sIt}, s{sIt}, 1\ns_cmp_lt_u32 s{sIt}, 5")
            p("s_waitcnt lgkmcnt(0)\ns_barrier")
    mark = len(p.ins)
    period()
    del p.ins[mark:]
    p("L_T_loop:")
    stamp_it(p, 2, "t", [(0, 2), (1, 3), (2, 4), (3, 5), (4, 6)])
    period()
    p("s_cbranch_scc1 L_T_loop")
    side("L_T_ck:")
    side(f"s_waitcnt vmcnt({min(63, T['pollw'])})"); call(side, "S_spinc")
    side(f"s_sub_u32 s{sPc}, s{sIt}, {LAG}\ns_mul_i32 s{sPc}, s{sPc}, 40960\ns_add_u32 s{sFo}, s{sFo}, 128\nv_mov_b32 v{vOs2}, v{vOfs}")
    side(f"s_cmp_lg_u32 s{sIt}, 4\ns_cbranch_scc1 L_T_ckb")
    side(f"v_mov_b32 v{vWoA}, {OOB}\nv_mov_b32 v{vWoB}, {OOB}\ns_mov_b32 s{sRa}, 0x28000\ns_branch L_T_ckb")
    for m in range(2):
        for o in tmf(3, 14 + m, m): p(o)
    p(f"s_movk_i32 s{sFo}, 384\nbuffer_load_dword v{vPol}, v{vZ}, {srd(sFL)}, s{sFo} offen sc1")
    for o in st_ops(1, vSt, True): p(o if isinstance(o, str) else o[1])
    stamp(p, 7); stamp(p, 7, 2)
    p("s_waitcnt vmcnt(5)"); call(p, "S_redb")
    rest = list(range(5 - LAG, 4))
    p("s_waitcnt vmcnt(3)\ns_barrier")
    p(f"s_movk_i32 s{sT2}, 512"); call(p, "S_post")
    call(p, "S_spinc")
    for i, g in enumerate(rest[1:]):
        p(f"s_mov_b32 s{sPc}, {g*40960}")
        for li in range(10): p(ld_op(li).replace(vr(RB + 4 * li, 4), vr(40 * i + 4 * li, 4)))
    reduce_group(rest[0])
    for i, g in enumerate(rest[1:]):
        for r in range(0, 40, 2): p(f"v_mov_b64 {vr(RB+r,2)}, {vr(40*i+r,2)}")
        p(f"s_movk_i32 s{sPd}, {g*256}"); call(p, "S_reda")
    p(f"s_movk_i32 s{sFo}, 512"); call(p, "S_spin")
    reduce_group(4)
    if PROF:
        p("s_waitcnt vmcnt(0)\ns_mov_b32 s96, s65")
        stamp(p, 9)
        p("s_memrealtime s[100:101]\ns_waitcnt lgkmcnt(0)")
        p(f"s_lshl_b32 s{sT}, s2, 3\ns_add_u32 s{sT}, s{sT}, s{sWave}\ns_lshl_b32 s{sT}, s{sT}, 6")
        p(f"s_add_u32 s4, s66, 0x4000000\ns_addc_u32 s5, s67, 0\ns_mov_b32 s6, 0x100000\ns_mov_b32 s7, 0x20000\nv_mov_b32 v0, s{sT}")
        for i in range(11):
            p(f"v_mov_b32 v1, s{80+2*i}\nbuffer_store_dword v1, v0, s[4:7], 0 offen offset:{4*i}\nbuffer_store_dword v1, v0, s[4:7], 0 offen offset:{256+4*i}")
    p("L_exit:")
    p("s_endpgm")
    p.ins += q.ins + side.ins
    n = p.fix_hazards(verbose=opts.get('verbose', False))
    print("hazard nops inserted:", n, "instrs:", len(p.ins), file=sys.stderr)
    hdr = open('standalone__mha_block_cached__near_ridge.s.ref').read().split('\n')
    hdr = [l for l in hdr if l.startswith(';') and '@launch' not in l and not l.startswith('; Override') and not l.startswith('; grid=ceil')]
    out = "\n".join(hdr) + "\n"
    out += f"; @launch grid=(256,1,1) block=(256,1,1) lds={LDS_BYTES}\n"
    out += '.amdgcn_target "amdgcn-amd-amdhsa--gfx950"\n.text\n'
    out += f".globl {KN}\n.p2align 8\n.type {KN},@function\n" + p.text()
    out += f""".section .rodata,"a"
.p2align 6
.amdhsa_kernel {KN}
  .amdhsa_next_free_vgpr 512
  .amdhsa_next_free_sgpr {102 if PROF else 80}
  .amdhsa_accum_offset 256
  .amdhsa_group_segment_fixed_size 0
  .amdhsa_kernarg_size 64
  .amdhsa_user_sgpr_count 2
  .amdhsa_user_sgpr_kernarg_segment_ptr 1
  .amdhsa_system_sgpr_workgroup_id_x 1
.end_amdhsa_kernel
"""
    return out

if __name__ == "__main__":
    opts = {}
    for a in sys.argv[2:]:
        k, v = a.split('='); opts[k] = int(v)
    open(sys.argv[1], 'w').write(gen(opts))
```

```python
import sys, math, struct
sys.path.insert(0, 'dev')
from asmlib import Prog, Q, Ins

KN = "standalone__mha_block_cached__near_ridge_kernel"
SLOT = 8448; PCS = 1056
K0 = 0; V0 = 4 * SLOT; K1 = 8 * SLOT; V1 = 12 * SLOT; XR = 14 * SLOT; DUMS = 16 * SLOT
EXA = [V0, V1, V1 + 20480, V1 + 40960]
LDS_BYTES = 163840 - 1024
SLAB = 204800; FLG = 256 * SLAB

QR = 0; SS = [80, 120]; NM = 160; LL = 180; ONE = 200; FACS = [218, 220, 246, 248, 250]; TT = 232; WD = 252
XB = 0; XT = 80
TA = 80; RB = 160; RD = 200; SEL = 224; TMP = 232; vOo3 = 222; vOf3 = 223
aACC = 0; aSV = 160; aF = 240
(vLin, vKa0, vKa1, vVa, vDk, vDv, vXd, vWd, vXa0, vXa1, tA, tB, tC, vTl) = range(204, 218)
vOfs, vOfo, vWarm, vWoA, vWoB, vSt, vSt2, vOs2, vOo2, vZ, vPol, t0, vR0, vR1, vR2, vR3 = range(240, 256)

sK, sV, sWQ, sWO, sX, sPO, sPA, sOUT, sDBG, sFL = 4, 8, 12, 16, 20, 24, 60, 72, 76, 68
sWave, sB, sHG, sIt, sMK, sMV, sRnd, sR0, sCur, sHS, sGB = 28, 29, 30, 31, 32, 33, 34, 35, 36, 37, 38
sT, sC, sBL, sPi, sPa, sT2, sT3, sPb, sCol = 39, 40, 41, 42, 43, 44, 45, 46, 47
sRa, sRb, sRet, sRc, sXl, sXg, sPc, sPd, sMsk, sSt, sFo = 48, 49, 50, 52, 53, 54, 55, 56, 57, 58, 59
sDry = 64
sZ, sMK2, sMV2 = 3, 64, 47
OOB = 0x7ff00000

SCALE = math.log2(math.e) / math.sqrt(128.0)
def f2u(x): return struct.unpack('<I', struct.pack('<f', x))[0]
def vr(b, n): return f"v[{b}:{b+n-1}]"
def ar(b, n): return f"a[{b}:{b+n-1}]"
def srd(b): return f"s[{b}:{b+3}]"
def m16(d, a, b, c=None): return f"v_mfma_f32_16x16x32_bf16 {d}, {a}, {b}, {d if c is None else c}"
def mksrd(p, s, lo, off, size):
    p(f"s_add_u32 s{s}, s{lo}, {off}\ns_addc_u32 s{s+1}, s{lo+1}, 0\ns_mov_b32 s{s+2}, {size}\ns_mov_b32 s{s+3}, 0x20000")
def call(p, name): p(f"s_call_b64 s[{sRet}:{sRet+1}], {name}")
def ret(p, name): p(f"s_setpc_b64 s[{sRet}:{sRet+1}] ; ret={name}")
def spread(seq, gaps):
    tot = sum(c for _, c in seq); out = {}; acc = 0
    for it, c in seq:
        g = gaps[min(int((acc + c * 0.5) * len(gaps) / tot), len(gaps) - 1)]
        out.setdefault(g, []).append(it); acc += c
    return out
class Gaps:
    def __init__(self, n=80): self.n = n; self.items = [[] for _ in range(n)]; self.load = [0.0] * n
    def pin(self, g, it, c=1): self.items[g].append(it); self.load[g] += c
    def reserve(self, g, c=1): self.load[g] += c
    def stream(self, seq, gaps):
        tot = sum(c for _, c in seq)
        lo, hi = 0.0, 50.0
        for _ in range(40):
            mid = (lo + hi) / 2
            if sum(max(0.0, mid - self.load[g]) for g in gaps) >= tot: hi = mid
            else: lo = mid
        room = [max(0.0, hi - self.load[g]) for g in gaps]
        cum = 0.0; edges = []
        for r in room: cum += r; edges.append(cum)
        acc = 0.0; k = 0
        for it, c in seq:
            pos = acc + c * 0.5
            while k < len(gaps) - 1 and edges[k] < pos: k += 1
            self.pin(gaps[k], it, c); acc += c
def greedy(order, cap, streams):
    out = {g: [] for g in order}; ptr = [0] * len(streams); where = {}
    for pos, g in enumerate(order):
        room = cap[g]
        while True:
            best = None
            for si, st in enumerate(streams):
                k = ptr[si]
                if k >= len(st['items']) or pos < st['lo']: continue
                it, c, dep = st['items'][k]
                if dep is not None and where.get(dep, 10**9) >= pos and pos < st['hi']: continue
                lag = (pos + 1 - st['lo']) / (st['hi'] + 1 - st['lo']) - k / len(st['items'])
                late = lag * len(st['items'])
                if c > room and late < 1.5 and pos < st['hi']: continue
                if late < -1.0: continue
                if best is None or late > best[0]: best = (late, si)
            if best is None: break
            si = best[1]; it, c, dep = streams[si]['items'][ptr[si]]
            out[g].append(it); where[(si, ptr[si])] = pos; ptr[si] += 1; room -= c
    assert all(ptr[i] == len(st['items']) for i, st in enumerate(streams)), ptr
    return out
def split(ops, tag=None):
    out = []
    for o in ops:
        tg = tag
        if isinstance(o, tuple): tg = o[2]; o = o[1]
        for l in o.split("\n"):
            if l == "s_nop 0": continue
            out.append((("VM", l, tg), 1.5) if l.startswith("buffer_") else (l, 1))
    return out
FB = lambda m: aF + 4 * (m & 3)
oacc = lambda dt, t: aACC + 4 * (dt * 5 + t)

def gen(opts):
    p = Prog(); side = Prog(); q = Prog()
    PROF = opts.get('prof', 0)
    PST = opts.get('pst', 0)
    def stamp_it(pp, mode, tag, vals):
        if PROF and PST == mode:
            pp("s_cselect_b32 s99, 1, 0")
            for v, i in vals:
                pp(f"s_cmp_lg_u32 s{sIt}, {v}\ns_cbranch_scc1 L_si{tag}{v}"); stamp(pp, i, mode); pp(f"L_si{tag}{v}:")
            pp("s_cmp_lg_u32 s99, 0")
    def stamp(pp, i, mode=0):
        if PROF and (PST == mode or i in (0, 9)):
            pp(f"{'s_memrealtime' if opts.get('rt') else 's_memtime'} s[{80+2*i}:{81+2*i}]\ns_waitcnt lgkmcnt(0)")
    def stamp_r(pp, i0, i1, tag):
        if PROF and PST == 0:
            pp(f"s_cmp_eq_u32 s{sRnd}, 0\ns_cbranch_scc0 L_st{tag}a"); stamp(pp, i0); pp(f"s_branch L_st{tag}b\nL_st{tag}a:"); stamp(pp, i1); pp(f"L_st{tag}b:")
    p(f"{KN}:")
    p("s_cmp_ge_u32 s2, 256\ns_cbranch_scc1 L_exit")
    p("s_load_dwordx8 s[56:63], s[0:1], 0\ns_load_dwordx8 s[64:71], s[0:1], 32")
    if PROF:
        for i in range(10): p(f"s_mov_b32 s{80+2*i}, 0")
        p("s_memrealtime s[100:101]")
    stamp(p, 0)
    p(f"v_lshrrev_b32 v1, 6, v0\nv_and_b32 v0, 63, v0\nv_lshlrev_b32 v{vLin}, 4, v0")
    p(f"v_readfirstlane_b32 s{sWave}, v1")
    p(f"s_bfe_u32 s{sB}, s2, 0x20001\ns_lshl_b32 s{sB}, s{sB}, 3\ns_lshr_b32 s{sBL}, s2, 5\ns_add_u32 s{sB}, s{sB}, s{sBL}")
    p(f"s_and_b32 s{sHG}, s2, 1\ns_lshl_b32 s{sHG}, s{sHG}, 2\ns_bfe_u32 s{sT3}, s2, 0x20003\ns_add_u32 s{sHG}, s{sHG}, s{sT3}")
    p(f"s_add_u32 s{sT3}, s{sT3}, s{sBL}")
    p(f"s_mul_i32 s{sT2}, s{sT3}, 205\ns_lshr_b32 s{sT2}, s{sT2}, 10\ns_mul_i32 s{sT2}, s{sT2}, 5\ns_sub_u32 s{sR0}, s{sT3}, s{sT2}")
    p(f"s_lshr_b32 s{sPi}, s{sWave}, 1")
    p(f"v_lshrrev_b32 v1, 4, v0\nv_and_b32 v2, 0xf0, v{vLin}\nv_and_b32 v3, 1, v1\nv_lshrrev_b32 v5, 1, v1")
    p(f"v_lshl_add_u32 v4, v3, 1, v5\nv_mul_u32_u24 v{vXd}, {8*1280}, v4\nv_lshlrev_b32 v4, 4, v3\nv_xor_b32 v4, v4, v2\nv_add_u32 v{vXd}, v{vXd}, v4")
    p(f"v_lshl_add_u32 v4, v5, 2, v3\nv_lshl_add_u32 v{vWd}, v4, 15, v2")
    p(f"s_mul_i32 s{sXl}, s{sWave}, {2*PCS}\ns_mul_i32 s{sXg}, s{sWave}, 1280")
    p(f"s_mul_i32 s{sHS}, s{sWave}, {SLOT}")
    p(f"s_and_b32 s{sT}, s{sWave}, 1\ns_lshl_b32 s{sGB}, s{sT}, 18\ns_lshl_b32 s{sT}, s{sPi}, 8\ns_add_u32 s{sGB}, s{sGB}, s{sT}")
    p(f"s_mul_i32 s{sT2}, s{sB}, 204800\ns_lshl_b32 s{sT3}, s{sHG}, 10\ns_sub_u32 s{sIt}, 5242880, s{sT3}\ns_mov_b32 s{sRnd}, 0")
    ZM = opts.get('z', 1)
    p({0: f"s_mov_b32 s{sZ}, 0", 1: f"s_and_b32 s{sZ}, s{sHG}, 1", 2: f"s_and_b32 s{sZ}, s{sBL}, 1", 3: f"s_mov_b32 s{sZ}, 1"}[ZM])
    p(f"s_lshl_b32 s{sZ}, s{sZ}, 1\ns_lshl_b32 s{sT}, s{sZ}, 8\ns_add_u32 s{sGB}, s{sGB}, s{sT}")
    p("s_waitcnt lgkmcnt(0)")
    mksrd(p, sX, 56, f"s{sT2}", 204800)
    mksrd(p, sWQ, 62, f"s{sT3}", f"s{sIt}")
    call(p, "S_qpre")
    p("s_branch L_setup")
    def xops():
        o = []
        for t in range(5):
            for hh in range(2):
                o.append(f"s_add_u32 m0, s{sXl}, {XR+t*SLOT+hh*PCS}\ns_add_u32 s{sT}, s{sPc}, {(32*t+4*hh)*1280}\nbuffer_load_dwordx4 v{vXd}, {srd(sX)}, s{sT} offen lds")
        return o
    xpre = f"s_lshl_b32 s{sPc}, s{sCur}, 8\ns_add_u32 s{sPc}, s{sPc}, s{sXg}"
    def wops(pa=sPa, add=0):
        return [f"s_add_u32 m0, s{pa}, {pc*PCS}\ns_add_u32 s{sT}, s{sPb}, {(8*(pc&1)+(pc>>1))*8192+add}\nbuffer_load_dwordx4 v{vWd}, {srd(sWQ)}, s{sT} offen lds" for pc in range(8)]
    def wpre(reg, u):
        return f"s_add_u32 s{sPa}, s{sHS}, {reg}\ns_lshl_b32 s{sPb}, s{sCur}, 20\ns_add_u32 s{sPb}, s{sPb}, s{sGB}" + (f"\ns_add_u32 s{sPb}, s{sPb}, {64*8192}" if u else "")
    p("S_qpre:")
    p(f"s_mov_b32 s{sCur}, s{sR0}"); p(xpre)
    for o in xops(): p(o)
    p(wpre(K0, 0))
    p(f"s_mov_b32 s{sIt}, 0")
    p("L_qp2:")
    for o in wops(): p(o)
    p(f"s_add_u32 s{sPa}, s{sPa}, {K1-K0}\ns_add_u32 s{sPb}, s{sPb}, {64*8192}\ns_add_u32 s{sIt}, s{sIt}, 1\ns_cmp_lt_u32 s{sIt}, 2\ns_cbranch_scc1 L_qp2")
    ret(p, "S_qpre")
    p("L_setup:")
    p(f"v_mul_u32_u24 v{vWoA}, {4*1280}, v4\nv_add_u32 v{vWoA}, v{vWoA}, v2\nv_bfe_u32 v6, v0, 3, 1\nv_mul_u32_u24 v6, {128*1280}, v6")
    p(f"v_sub_u32 v{vWoB}, v{vWoA}, v6\nv_add_u32 v{vWoB}, {128*1280}, v{vWoB}\nv_add_u32 v{vWoA}, v{vWoA}, v6")
    p(f"v_mul_u32_u24 v{vWarm}, 1280, v1\nv_add_u32 v{vWarm}, v{vWarm}, v2")
    p(f"s_lshl_b32 s{sT}, s{sBL}, 2\ns_add_u32 s{sT}, s{sT}, s{sWave}\ns_mul_i32 s{sT}, s{sT}, {4*1280}\nv_add_u32 v{vWarm}, s{sT}, v{vWarm}")
    mksrd(p, sOUT, 66, f"s{sT2}", 204800)
    p(f"s_mov_b32 s{sDBG}, s68\ns_mov_b32 s{sDBG+1}, s69\ns_mov_b32 s{sDBG+2}, 256\ns_mov_b32 s{sDBG+3}, 0x20000")
    p("s_mov_b32 s66, s70\ns_mov_b32 s67, s71")
    p(f"s_lshl_b32 s{sT}, s{sB}, 3\ns_add_u32 s{sT}, s{sT}, s{sHG}\ns_lshl_b32 s{sT3}, s{sT}, 19\ns_lshl_b32 s{sPa}, s{sPi}, 17\ns_add_u32 s{sT3}, s{sT3}, s{sPa}")
    mksrd(p, sK, 58, f"s{sT3}", 131072); mksrd(p, sV, 60, f"s{sT3}", 131072)
    p(f"s_mul_i32 s{sT3}, s{sT}, {SLAB}"); mksrd(p, sPO, 66, f"s{sT3}", SLAB)
    p(f"s_lshl_b32 s{sT2}, s{sT2}, 3"); mksrd(p, sPA, 66, f"s{sT2}", 8 * SLAB)
    p(f"s_lshl_b32 s{sT2}, s{sB}, 10\ns_add_u32 s{sT2}, s{sT2}, {FLG}"); mksrd(p, sFL, 66, f"s{sT2}", 1024)
    p(f"s_mul_i32 s{sT2}, s{sHG}, {512*1280}"); mksrd(p, sWO, 64, f"s{sT2}", 512 * 1280)
    if PROF: p("s_mov_b32 s65, s100")
    p(f"s_mov_b32 s{sC}, {f2u(SCALE)}\ns_mov_b32 s{sMsk}, 0xffff0000")
    p(f"v_bfe_u32 v4, v0, 2, 2\nv_lshl_add_u32 v4, v4, 1, v3\nv_mul_u32_u24 v{vTl}, {PCS}, v4\nv_lshl_add_u32 v{vTl}, v5, 9, v{vTl}")
    p(f"v_and_b32 v4, 0x30, v{vLin}\nv_add_u32 v{vTl}, v{vTl}, v4")
    p(f"v_and_b32 v4, 3, v0\nv_bfe_u32 v6, v0, 2, 1\nv_lshl_add_u32 v4, v4, 1, v6\nv_mul_u32_u24 v7, {PCS}, v4\nv_bfe_u32 v6, v0, 3, 1\nv_lshl_add_u32 v7, v6, 9, v7")
    p(f"v_xor_b32 v6, 1, v1\nv_lshl_add_u32 v8, v6, 4, v7\nv_add_u32 v8, 256, v8\nv_lshl_add_u32 v7, v1, 4, v7")
    p(f"s_mul_i32 s{sMK}, s{sPi}, {K1}")
    p(f"v_add_u32 v{vKa0}, s{sMK}, v7\nv_add_u32 v{vKa1}, s{sMK}, v8\ns_add_u32 s{sMV}, s{sMK}, {V0}\nv_add_u32 v{vVa}, s{sMV}, v{vTl}")
    p(f"s_and_b32 s{sT}, s{sWave}, 1\ns_mul_i32 s{sT2}, s{sT}, {4*PCS}\ns_add_u32 s{sMK}, s{sMK}, s{sT2}\ns_add_u32 s{sMV}, s{sMV}, s{sT2}")
    p(f"v_add_u32 v{vXa0}, {XR}, v7\nv_add_u32 v{vXa1}, {XR}, v8")
    p(f"s_cmp_eq_u32 s{sT}, 0\ns_cbranch_scc1 L_x0")
    p(f"v_add_u32 v{vXa0}, {XR+2*SLOT}, v8\nv_add_u32 v{vXa1}, {XR+3*SLOT}, v7")
    p("L_x0:")
    p(f"s_mul_i32 s{sT2}, s{sT}, 20480\ns_lshl_b32 s{sT3}, s{sPi}, 11\ns_add_u32 s{sT2}, s{sT2}, s{sT3}\nv_add_u32 v{vSt}, s{sT2}, v{vLin}")
    p(f"s_lshr_b32 s{sT2}, s{sHG}, 2\ns_and_b32 s{sT3}, s{sHG}, 3\ns_lshl_b32 s{sT3}, s{sT3}, 2\ns_add_u32 s{sT3}, s{sT3}, s{sWave}")
    p(f"s_mul_i32 s{sPa}, s{sT2}, 20480\ns_lshl_b32 s{sPb}, s{sT3}, 8\ns_add_u32 s{sPa}, s{sPa}, s{sPb}\ns_mov_b32 s{sPb}, {SLAB}")
    p(f"v_mul_lo_u32 v{vOfs}, s{sPb}, v1\nv_add3_u32 v{vOfs}, v{vOfs}, v2, s{sPa}")
    p(f"s_mul_i32 s{sPa}, s{sT2}, {80*1280}\ns_lshl_b32 s{sPb}, s{sT3}, 4\ns_add_u32 s{sPa}, s{sPa}, s{sPb}")
    p(f"v_and_b32 v4, 15, v0\nv_lshl_add_u32 v6, v5, 4, v4\nv_mul_u32_u24 v{vOfo}, 1280, v6\nv_lshl_add_u32 v{vOfo}, v3, 3, v{vOfo}\nv_add_u32 v{vOfo}, s{sPa}, v{vOfo}")
    p(f"v_mov_b32 v6, {OOB}\nv_cmp_gt_u32 s[{sT2}:{sT2+1}], 32, v0\nv_cndmask_b32 v{vOf3}, v6, v{vOfo}, s[{sT2}:{sT2+1}]")
    p(f"v_and_b32 v6, 1, v0\nv_lshlrev_b32 v6, 4, v6\nv_mov_b32 v9, 0x3f80\nv_lshlrev_b32 v6, v6, v9\nv_lshrrev_b32 v4, 1, v4")
    for r in range(8):
        p(f"v_cmp_eq_u32 s[{sT2}:{sT2+1}], {r}, v4\nv_cndmask_b32 v{SEL+r}, 0, v6, s[{sT2}:{sT2+1}]")
    for r in range(4): p(f"v_mov_b32 v{ONE+r}, 0x3f803f80")
    p(f"v_mov_b32 v{vZ}, 0\nv_mov_b64 {vr(TT,2)}, 0\nv_mov_b64 {vr(TT+2,2)}, 0")
    zacc = [f"v_mfma_f32_32x32x16_bf16 {vr(16*i,16)}, {vr(TT,4)}, {vr(TT,4)}, 0" for i in range(10)]
    p(f"s_lshl_b32 s{sT}, s{sHG}, 3\ns_add_u32 s{sT}, s{sT}, s{sWave}\ns_cmp_eq_u32 s{sT}, 1\ns_cbranch_scc1 L_fi")
    p("L_fib:")
    DRY = opts.get('dry', 0)
    if DRY:
        for z in zacc: p(z)
        p(f"v_mfma_f32_32x32x16_bf16 {vr(160,16)}, {vr(TT,4)}, {vr(TT,4)}, 0\nv_mfma_f32_32x32x16_bf16 {vr(176,16)}, {vr(TT,4)}, {vr(TT,4)}, 0")
        p(f"v_mov_b32 v{vDk}, {OOB}\nv_mov_b32 v{vDv}, {OOB}\ns_mov_b32 s{sRa}, s{sMK}\ns_mov_b32 s{sRb}, s{sMV}\ns_mov_b32 s{sMK}, 0x30000\ns_mov_b32 s{sMV}, 0x30000\ns_mov_b32 s{sDry}, 1\ns_mov_b64 vcc, 0")
        for w, l in ((1, "l1"), (2, "l3"), (3, "e13")): p(f"s_cmp_eq_u32 s{sWave}, {w}\ns_cbranch_scc1 L_A_{l}")
        p("s_branch L_A_m2")
        p("L_dry_done:")
        p(f"s_mov_b32 s{sMK}, s{sRa}\ns_mov_b32 s{sMV}, s{sRb}\ns_mov_b32 s{sDry}, 0\ns_waitcnt lgkmcnt(0)")
    side("L_fi:")
    side(f"buffer_store_dwordx4 {vr(TT,4)}, v{vLin}, {srd(sFL)}, 0 offen sc1\ns_waitcnt vmcnt(0)")
    side(f"s_lshl_b32 s{sT}, s{sB}, 3\nv_mov_b32 v196, s{sT}\nv_mov_b32 v197, 1\ns_mov_b64 exec, 1")
    side(f"buffer_atomic_add v197, v196, {srd(sDBG)}, 0 offen sc1\ns_mov_b64 exec, -1\ns_branch L_fib")

    def kv_ops(isk, tile4):
        base, vo, sr = (sMK, vDk, sK) if isk else (sMV, vDv, sV)
        slot = tile4 & 3 if isk else (tile4 + 2) & 3
        o = [f"s_add_u32 m0, s{base}, {slot*SLOT+32*j}\ns_nop 0\nbuffer_load_dwordx4 v{vo}, {srd(sr)}, 0 offen offset:{1024*j} nt lds" for j in range(4)]
        o[-1] += f"\nv_add_u32 v{vo}, 0x2000, v{vo}"
        return o

    p(f"s_mov_b32 s{sMK2}, s{sMK}\ns_mov_b32 s{sMV2}, s{sMV}")
    p("L_round:")
    kvinit = f"s_and_b32 s{sT}, s{sWave}, 1\ns_lshl_b32 s{sT}, s{sT}, 12\nv_add_u32 v{vDv}, s{sT}, v{vLin}\nv_bfe_u32 v{t0}, v{vLin}, 8, 1\nv_lshlrev_b32 v{t0}, 4, v{t0}\nv_xor_b32 v{vDk}, v{t0}, v{vDv}"
    kvadv = "\n".join(f"s_add_u32 s{s_}, s{s_}, 262144\ns_addc_u32 s{s_+1}, s{s_+1}, 0" for s_ in (sK, sV))
    p(kvinit)
    p(f"s_cmp_eq_u32 s{sZ}, 2\ns_cselect_b32 s{sMK}, 0x30000, s{sMK2}\ns_cselect_b32 s{sMV}, 0x30000, s{sMV2}\ns_cbranch_scc0 L_z1")
    p(f"v_mov_b32 v{vDk}, {OOB}\nv_mov_b32 v{vDv}, {OOB}")
    p("L_z1:")
    p(f"s_mul_i32 s{sT}, s{sPi}, {2*SLOT}\nv_add_u32 v{tA}, s{sT}, v{vTl}\nv_add_u32 v{tB}, {K1}, v{tA}\nv_add_u32 v{tC}, {V0}, v{tA}")
    p(f"s_add_u32 s{sRa}, s{sHS}, {K0}\ns_add_u32 s{sRb}, s{sHS}, {K1}\ns_add_u32 s{sRc}, s{sHS}, {V0}\ns_mov_b32 s{sIt}, 0")
    p(f"v_mov_b64 {vr(TT,2)}, 0\nv_mov_b64 {vr(TT+2,2)}, 0")
    for z in zacc: p(z)
    xb = lambda t, j: 16 * t + 4 * j
    xt = lambda t, j: 80 + 8 * t + 4 * (j - 2)
    qacc = lambda nt, t: 32 * t + 4 * nt
    for r in range(8): p(f"v_accvgpr_write_b32 a{aF+r}, 0")
    for t in range(5):
        for r in range(4): p(f"v_accvgpr_write_b32 a{xb(t,3)+r}, 0")
    if opts.get('wq', 0) == 2:
        p(f"s_waitcnt vmcnt(20)\ns_cmp_eq_u32 s{sRnd}, 1\ns_cbranch_scc1 L_rw\ns_waitcnt vmcnt(0)")
        p("L_rw:"); p("s_barrier")
    else: p("s_waitcnt vmcnt(0)\ns_barrier")
    stamp_r(p, 1, 4, "q"); stamp(p, 1, 1)
    def xread(t, j): return f"ds_read_b128 {ar(xb(t,j) if j < 2 else xt(t,j),4)}, v{[vXa0,vXa1][t&1]} offset:{(t>>1)*SLOT+64*j}"
    for j in range(4):
        for t in range(5): p(xread(t, j))
        if j % 2: p("s_waitcnt lgkmcnt(0)")
    p("s_barrier")
    HQ = 2
    NS = opts.get('ns', 3)
    def gunit(rdtxt, mf, streams, vm=None, T=None):
        lg = Q(p, "lgkmcnt", 15); tok = {0: 0, 1: 0}
        G = Gaps()
        for m in range(14):
            for e in range(2): G.pin(5 * m + 5 + e, ("RD", m + 4, e))
        for m in range(2, 16): G.reserve(5 * m - 1)
        for seq, gaps in streams: G.stream(seq, gaps)
        def rd(m, e): lg.room(1); p(rdtxt(m, e)); tok[m] = lg.issue()
        for m in (2, 3):
            for e in range(2): rd(m, e)
        for m in range(16):
            lg.wait(tok[m])
            for t in range(5):
                p(mf(m, t))
                for o in G.items[5 * m + t]:
                    if isinstance(o, str): p(o)
                    elif o[0] == "RD": rd(o[1], o[2])
                    elif o[0] == "DS": lg.room(1); p(o[1]); lg.issue()
                    elif o[0] == "W": vm.wait(T.get(o[1], 0))
                    else:
                        p(o[1])
                        if vm:
                            tk = vm.issue()
                            if o[2]: T[o[2]] = tk
    def qunit(u, dm, fill, endw, span=76):
        def rdtxt(m, e):
            f = m - HQ; ks = f >> 3; nt = f & 7
            return f"ds_read_b64_tr_b16 {ar(FB(m)+2*e,2)}, v{[tA,tB][u]} offset:{ks*SLOT+e*256+(nt>>1)*64+(nt&1)*8}"
        def mf(m, t):
            f = m - HQ
            j = (2 * u + (f >> 3)) & 3 if f >= 0 else (2 * u - 1) & 3
            return m16(vr(qacc(f & 7, t), 4), ar(FB(m), 4), ar(xb(t, j), 4))
        gunit(rdtxt, mf, [(split(dm), list(range(0, span)))] + fill)
        p(endw)
    movs = [([(f"v_accvgpr_mov_b32 a{xb(t,j)+r}, a{xt(t,j)+r}", 1) for j in (2, 3) for t in range(5) for r in range(4)], list(range(0, 79)))]
    xrd = [([(("DS", xread(t, j)), 1) for j in (2, 3, 0, 1) for t in range(5)], list(range(1, 70)))]
    rot = (f"v_mov_b32 v{t0}, v{tC}\nv_mov_b32 v{tC}, v{tB}\nv_mov_b32 v{tB}, v{tA}\nv_mov_b32 v{tA}, v{t0}\n"
           f"s_mov_b32 s{sT}, s{sRc}\ns_mov_b32 s{sRc}, s{sRb}\ns_mov_b32 s{sRb}, s{sRa}\ns_mov_b32 s{sRa}, s{sT}")
    WQ = opts.get('wq', 0)
    vWm2 = 219
    wmo = [f"s_add_u32 s{sT}, s{sSt}, {k*128*1280}\nbuffer_load_dwordx4 {vr(TMP,4)}, v{vWm2}, {srd(sWO)}, s{sT} offen" for k in range(4)] if WQ == 1 else []
    p("L_Q_loop:")
    p(f"s_lshl_b32 s{sSt}, s{sIt}, 8")
    stamp_it(p, 1, "q", [(0, 2), (2, 3)])
    p(f"s_add_u32 s{sCur}, s{sCur}, 1\ns_cmp_ge_u32 s{sCur}, 5\ns_cselect_b32 s{sCur}, 0, s{sCur}")
    p(xpre); p(f"s_lshl_b32 s{sPb}, s{sCur}, 20\ns_add_u32 s{sPb}, s{sPb}, s{sGB}")
    p(f"s_cmp_eq_u32 s{sIt}, 3\ns_cselect_b32 s{sPa}, 0x30000, s{sRa}")
    qunit(0, xops() + wops(sRc)[:NS], movs, f"s_waitcnt vmcnt({NS}) lgkmcnt(0)\ns_barrier", span=70)
    qunit(1, wops(sRc)[NS:] + wops(sPa, 64 * 8192) + wmo, xrd, rot + f"\ns_add_u32 s{sIt}, s{sIt}, 1\ns_cmp_lt_u32 s{sIt}, 4\ns_waitcnt vmcnt({8+len(wmo)}) lgkmcnt(0)\ns_barrier")
    p("s_cbranch_scc1 L_Q_loop")
    stamp(p, 4, 1)
    p(f"s_add_u32 s{sPa}, s{sHS}, {XR}\ns_mul_i32 s{sT}, s{sPi}, {2*SLOT}\ns_add_u32 s{sT}, s{sT}, {XR}\nv_add_u32 v{tB}, s{sT}, v{vTl}")
    kpre = kv_ops(True, 0) + kv_ops(True, 1) + kv_ops(True, 2) + kv_ops(True, 3)
    qunit(0, wops(sPa, 64 * 8192) + kpre[:8], movs, "s_waitcnt vmcnt(8) lgkmcnt(0)\ns_barrier")
    p(f"s_movk_i32 s{sSt}, 1024")
    qunit(1, wmo + kpre[8:], [], f"s_waitcnt vmcnt({12+len(wmo)}) lgkmcnt(0)\ns_barrier")
    stamp(p, 5, 1)
    vpre = [o for k in range(3) for o in kv_ops(False, k)]
    p(f"s_cmp_eq_u32 s{sZ}, 2\ns_cbranch_scc0 L_z2\ns_sub_u32 s{sGB}, s{sGB}, 512"); call(p, "S_qpre")
    p("L_z2:")
    for m in range(HQ):
        for t in range(5): p(m16(vr(qacc(6 + m, t), 4), ar(FB(m), 4), ar(xb(t, 3), 4)))
    for r in range(0, 20, 2): p(f"v_mov_b64 {vr(NM+r,2)}, 0")
    for i in range(80):
        p(f"v_pk_mul_f32 {vr(2*i,2)}, {vr(2*i,2)}, s[{sC}:{sC+1}] op_sel_hi:[1,0]")
        if i >= 2: p(f"v_cvt_pk_bf16_f32 v{i-2}, v{2*i-4}, v{2*i-3}")
        if i % 6 == 0 and i // 6 < 12: p(vpre[i // 6])
    p("v_cvt_pk_bf16_f32 v78, v156, v157\nv_cvt_pk_bf16_f32 v79, v158, v159")
    p(f"s_cmp_eq_u32 s{sZ}, 2\ns_cbranch_scc1 L_zsave")
    stamp(p, 6, 1); stamp(p, 7, 1)
    stamp_r(p, 2, 5, "a")

    HB = 2
    DRYN = {"m2": "L_A_m1", "m1": "L_A_z0", "z0": "L_dry_done", "l1": "L_A_l2", "l2": "L_dry_done", "l3": "L_A_l0", "l0": "L_dry_done", "e13": "L_A_e14", "e15": "L_dry_done"}
    def sm_ops(b):
        seq = []
        for k in range(43):
            if k < 40: seq.append((f"v_exp_f32 v{b+k}, v{b+k}", 2))
            if k >= 4 and k % 2 == 0:
                i = (k - 4) // 2
                seq.append((f"v_cvt_pk_bf16_f32 v{b+8*(i>>2)+(i&3)}, v{b+2*i}, v{b+2*i+1}", 1))
        return seq
    W1 = list(range(24, 80)) + list(range(0, 9))
    def oops(vo): return [f"s_add_u32 m0, s{sPa}, {pc*PCS}\ns_add_u32 s{sT}, s{sPb}, {(8*(pc&1)+(pc>>1))*1280}\nbuffer_load_dwordx4 v{vo}, {srd(sWO)}, s{sT} offen lds" for pc in range(8)]
    r0 = xops() + wops(sPa) + wops(sRa, 64 * 8192)
    r0[0] = f"s_add_u32 s{sGB}, s{sGB}, 512\ns_mov_b32 s{sCur}, s{sR0}\n{xpre}\n{wpre(K0, 0)}\ns_add_u32 s{sRa}, s{sHS}, {K1}\n" + r0[0]
    r0s = [r0[4*i:4*i+4] for i in range(6)] + [r0[24:26], [], []]
    wm = [f"s_mov_b32 s{sT}, {(k>>2)*256+(k&3)*128*1280}\nbuffer_load_dwordx4 {vr(WD,4)}, v{vWarm}, {srd(sWO)}, s{sT} offen" for k in range(20)]
    o0 = oops(vWoA); o1 = oops(vWoA)
    o0[0] = f"s_mul_i32 s{sGB}, s{sWave}, {32*1280}\ns_add_u32 s{sPa}, s{sHS}, {K0}\ns_mov_b32 s{sPb}, s{sGB}\n" + o0[0]
    o1[0] = f"s_add_u32 s{sPa}, s{sHS}, {K1}\ns_add_u32 s{sPb}, s{sGB}, {256*1280}\n" + o1[0]
    r1s = [wm[0:4], wm[4:7], wm[7:10], wm[10:13], wm[13:16], wm[16:20], [], o0, o1]
    r2s = [[kvadv, kvinit] + kv_ops(True, 0), kv_ops(True, 1), kv_ops(True, 2), kv_ops(True, 3), kv_ops(False, 0), kv_ops(False, 1), [], [], []]
    def site(k):
        p(f"s_or_b32 s{sT}, s{sRnd}, s{sZ}\ns_cbranch_scc1 L_s{k}a")
        for o in r0s[k]: p(o)
        p(f"L_s{k}b:")
        side(f"L_s{k}a:")
        side(f"s_cmp_eq_u32 s{sZ}, 1\ns_cbranch_scc1 L_s{k}c")
        for o in r1s[k]: side(o)
        side(f"s_branch L_s{k}b")
        side(f"L_s{k}c:")
        for o in r2s[k]: side(o)
        side(f"s_branch L_s{k}b")
    POS = []
    for m in range(16):
        POS += [(m, t) for t in range(5)]
        if 3 <= m < 8: POS.append(('L', m - 3))
    NPOS = len(POS); first_of = {m: POS.index((m, 0)) for m in range(16)}
    cap = {x: 2.0 for x in range(NPOS)}; pins = {x: [] for x in range(NPOS)}
    for m in range(14):
        x = POS.index((m, 4)) + 1
        for e in range(2 if m + 4 < 10 else 1): pins[x + e].append(('RD', m + 4, e)); cap[x + e] -= 1
    for m in range(2, 16): cap[first_of[m] - 1] -= 1
    XC = opts.get('xc', 27); XP = first_of[10] + 4
    pins[XC].append('CHECK'); cap[XC] -= 2; pins[XP].append('PT2'); cap[XP] -= 1
    order = list(range(XC + 1, NPOS)) + list(range(0, XC + 1)); n1 = NPOS - XC - 1
    mreg = [8 * t + r for t in range(5) for r in range(4)] + [8 * t + 4 + r for t in range(5) for r in range(4)]
    mx = [('MX', TT, None, mreg[0:3]), ('MX', TT + 1, None, mreg[3:6])] + [('MX', TT + ((i >> 1) & 1), 1, mreg[i:i+2]) for i in range(6, 40, 2)] + [('MF',)]
    tmpl = greedy(order, cap, [
        dict(items=[(('EX', k), 2, None) for k in range(40)], lo=0, hi=n1 + 8),
        dict(items=[(('CV', i), 1, (0, 2 * i + 1)) for i in range(20)], lo=3, hi=n1 + 10),
        dict(items=[(o, 1, None) for o in mx[:9]], lo=n1 + 2, hi=n1 + 13),
        dict(items=[(o, 1, None) for o in mx[9:]], lo=n1 + 14, hi=n1 + XC - 1),
        dict(items=[(('DM', i), 1, (4, i - 1) if i % 2 else None) for i in range(6)], lo=n1, hi=n1 + XC - 1),
        dict(items=[(('DM', i), 1, (5, i - 7) if i % 2 else None) for i in range(6, 16)], lo=0, hi=n1 - 4)])
    def abody(tag, nm, held=True, pv=True, qk=True, zc=False, first=False, dma=True, smt=True, smh=True, endw="vmcnt(16)", bar=True, sites={}):
        Sn = SS[nm & 1]; Sn1 = SS[(nm + 1) & 1]
        lg = Q(p, "lgkmcnt", 15); tok = {0: 0, 1: 0}
        p(f"L_A_{tag}:")
        slot = (nm + 2) & 3
        ms = ([0, 1] if held else []) + (list(range(2, 10)) + ['L'] if pv else []) + (list(range(10, 16)) if qk else [])
        done = set()
        def rd(m, e):
            if (m, e) in done or (m < 10 and not pv) or (m >= 10 and not qk): return
            done.add((m, e)); lg.room(1)
            if m < 10:
                dt = m - 2
                p(f"ds_read_b64_tr_b16 {ar(FB(m)+2*e,2)}, v{vVa} offset:{slot*SLOT+e*256+(dt>>1)*64+(dt&1)*8}")
            else:
                k = m - 10
                p(f"ds_read_b128 {ar(FB(m),4)}, v{[vKa0,vKa1][k>>2]} offset:{slot*SLOT+64*(k&3)}")
            tok[m] = lg.issue()
        dm = []
        if dma:
            for o in kv_ops(True, nm + 1) + (kv_ops(False, nm + 3) if dma != 'k' else []):
                l = o.replace("s_nop 0\n", "").split("\n"); dm += [l[0], "\n".join(l[1:])]
        for m in ((2, 3) if pv else (10, 11)):
            for e in range(2 if pv else 1): rd(m, e)
        for x, (m, t) in enumerate(POS):
            if m in ms:
                if m == 'L': p(m16(vr(LL + 4 * t, 4), vr(ONE, 4), vr(Sn + 8 * t, 4), '0' if zc else None))
                else:
                    if t == 0: lg.wait(tok[m])
                    if m < 2: p(m16(vr(Sn1 + 8 * t + 4, 4), ar(FB(m), 4), vr(QR + 16 * t + 4 * (2 + m), 4)))
                    elif m < 10: p(m16(ar(oacc(m - 2, t), 4), ar(FB(m), 4), vr(Sn + 8 * t, 4), '0' if zc else None))
                    else:
                        k = m - 10
                        p(m16(vr(Sn + 8 * t + 4 * (k >> 2), 4), ar(FB(m), 4), vr(QR + 16 * t + 4 * (k & 3), 4), vr(NM + 4 * t, 4) if k & 3 == 0 else None))
            b = Sn1 if x > XC else Sn; on = smh if x > XC else smt
            for o in tmpl[x] + pins[x]:
                if o == 'CHECK':
                    if first: call(p, "S_first")
                    elif smh:
                        p(f"v_cmp_lt_f32 vcc, 0x41000000, v{TT}\ns_cbranch_vccnz L_rr{tag}")
                        p(f"L_rb{tag}:")
                        side(f"L_rr{tag}:"); call(side, f"S_rare{(nm+1)&1}"); side(f"s_branch L_rb{tag}")
                elif o == 'PT2':
                    if smh and not first:
                        p(f"s_cbranch_vccnz L_p2{tag}")
                        p(f"L_pb{tag}:")
                        side(f"L_p2{tag}:"); call(side, "S_scale"); side(f"s_branch L_pb{tag}")
                elif o[0] == 'RD': rd(o[1], o[2])
                elif o[0] == 'EX':
                    if on: p(f"v_exp_f32 v{b+o[1]}, v{b+o[1]}")
                elif o[0] == 'CV':
                    i = o[1]
                    if on: p(f"v_cvt_pk_bf16_f32 v{b+8*(i>>2)+(i&3)}, v{b+2*i}, v{b+2*i+1}")
                elif o[0] == 'MX':
                    if smh and not first: p(f"v_max3_f32 v{o[1]}, " + ", ".join(([f"v{o[1]}"] if o[2] else []) + [f"v{Sn1+r}" for r in o[3]]))
                elif o[0] == 'MF':
                    if smh and not first: p(f"v_max_f32 v{TT}, v{TT}, v{TT+1}")
                elif o[0] == 'DM':
                    if o[1] < len(dm): p(dm[o[1]])
            if x in sites: site(sites[x])
        if bar: p(f"s_waitcnt {endw} lgkmcnt(0)")
    def xl(op, a, b):
        return (f"v_mov_b32 v{b}, v{a}\nv_permlane16_swap_b32 v{a}, v{b}\n{op} v{a}, v{a}, v{b}\n"
                f"v_mov_b32 v{b}, v{a}\nv_permlane32_swap_b32 v{a}, v{b}\n{op} v{a}, v{a}, v{b}")
    def shiftsub(name, n, first):
        q(f"{name}:")
        for t in range(5):
            b = n + 8 * t
            q(f"v_max3_f32 v{TT}, v{b}, v{b+1}, v{b+2}\nv_max3_f32 v{TT}, v{TT}, v{b+3}, v{b+4}\nv_max3_f32 v{TT}, v{TT}, v{b+5}, v{b+6}\nv_max_f32 v{TT}, v{TT}, v{b+7}")
            q(xl("v_max_f32", TT, TT + 1))
            if not first: q(f"v_max_f32 v{TT}, 0, v{TT}\nv_exp_f32 v{FACS[t]}, -v{TT}")
            for r in range(8): q(f"v_sub_f32 v{b+r}, v{b+r}, v{TT}")
            for r in range(4): q(f"v_sub_f32 v{NM+4*t+r}, v{NM+4*t+r}, v{TT}")
        ret(q, name)
    shiftsub("S_rare0", SS[0], False); shiftsub("S_rare1", SS[1], False); shiftsub("S_first", SS[0], True)
    q("S_scale:")
    for dt in range(8):
        for t in range(5):
            a = oacc(dt, t)
            for r in range(4): q(f"v_accvgpr_read_b32 v{TT+4+r}, a{a+r}")
            for r in (0, 2): q(f"v_pk_mul_f32 {vr(TT+4+r,2)}, {vr(TT+4+r,2)}, {vr(FACS[t],2)} op_sel_hi:[1,0]")
            for r in range(4): q(f"v_accvgpr_write_b32 a{a+r}, v{TT+4+r}")
    for t in range(5):
        for r in (0, 2): q(f"v_pk_mul_f32 {vr(LL+4*t+r,2)}, {vr(LL+4*t+r,2)}, {vr(FACS[t],2)} op_sel_hi:[1,0]")
    ret(q, "S_scale")
    stamp(p, 1, 3)
    abody("m2", 2, held=False, pv=False, smt=False, smh=False, dma=False, endw="vmcnt(20)"); p("s_barrier")
    abody("m1", 3, pv=False, smt=False, first=True, dma='k', endw="vmcnt(12)"); p("s_barrier")
    abody("z0", 0, zc=True); p(f"s_mov_b32 s{sIt}, 0\ns_barrier"); stamp(p, 2, 3)
    for nm in (1, 2, 3, 0):
        abody(f"l{nm}", nm)
        if nm == 0: p(f"s_add_u32 s{sIt}, s{sIt}, 1\ns_cmp_lt_u32 s{sIt}, 3")
        p("s_barrier")
    p("s_cbranch_scc1 L_A_l1")
    stamp(p, 3, 3)
    abody("e13", 1, dma=False, endw="vmcnt(0)"); p("s_barrier")
    stamp(p, 4, 3)
    abody("e14", 2, qk=False, dma=False, bar=False, sites={1: 0, 20: 1, 40: 2, 65: 3})
    abody("e15", 3, held=False, qk=False, dma=False, smh=False, bar=False, sites={12: 4, 35: 5})
    stamp(p, 5, 3)
    for t in range(5):
        p(f"v_rcp_f32 v{FACS[t]}, v{LL+4*t}")
    for J in range(4):
        if J < 3: site(6 + J)
        for t in range(5):
            tm = SS[0] + 8 * ((J * 5 + t) & 3)
            for h in range(2):
                for r in range(4): p(f"v_accvgpr_read_b32 v{tm+4*h+r}, a{oacc(2*J+h,t)+r}")
            for r in range(0, 8, 2): p(f"v_pk_mul_f32 {vr(tm+r,2)}, {vr(tm+r,2)}, {vr(FACS[t],2)} op_sel_hi:[1,0]")
            for r in range(4): p(f"v_cvt_pk_bf16_f32 v{QR+16*t+4*J+r}, v{tm+2*r}, v{tm+2*r+1}")
    stamp_r(p, 3, 6, "e"); stamp(p, 6, 3); stamp(p, 7, 3)
    p(f"s_cmp_eq_u32 s{sRnd}, 1\ns_cbranch_scc1 L_T")
    p(f"s_mov_b32 s{sRnd}, 1\ns_cmp_eq_u32 s{sZ}, 1\ns_cbranch_scc1 L_zswap")
    p(kvadv)
    p("L_zsave:")
    for r in range(80): p(f"v_accvgpr_write_b32 a{aSV+r}, v{QR+r}")
    p(f"s_cmp_eq_u32 s{sZ}, 1\ns_cbranch_scc1 L_zswap2\ns_lshr_b32 s{sZ}, s{sZ}, 1\ns_branch L_round")
    p("L_zswap:")
    p("s_waitcnt vmcnt(20)\ns_barrier")
    for o in kv_ops(False, 2): p(o)
    for r in range(80): p(f"v_accvgpr_read_b32 v{80+r}, a{aSV+r}")
    p("s_branch L_zsave")
    p("L_zswap2:")
    for r in range(0, 80, 2): p(f"v_mov_b64 {vr(QR+r,2)}, {vr(80+r,2)}")
    for r in range(0, 20, 2): p(f"v_mov_b64 {vr(NM+r,2)}, 0")
    p(f"s_mov_b32 s{sZ}, 0\ns_branch L_A_m2")

    q("S_odmb:")
    for o in oops(vWoB): q(o)
    ret(q, "S_odmb")
    SLP = opts.get('slp', 4)
    q("S_spin:")
    q(f"buffer_load_dword v{vPol}, v{vZ}, {srd(sFL)}, s{sFo} offen sc1\ns_waitcnt vmcnt(0)")
    q("S_spinc:")
    q(f"v_readfirstlane_b32 s{sT}, v{vPol}\ns_cmp_eq_u32 s{sT}, 8\ns_cbranch_scc1 L_spr\ns_sleep {SLP}\ns_branch S_spin")
    q("L_spr:"); ret(q, "S_spin|S_spinc")
    q("S_post:")
    q(f"s_cmp_lg_u32 s{sWave}, 0\ns_cbranch_scc1 L_pr\nv_mov_b32 v{t0}, 1\ns_mov_b64 exec, 1")
    q(f"buffer_atomic_add v{t0}, v{vZ}, {srd(sFL)}, s{sT2} offen sc1\ns_mov_b64 exec, -1")
    q("L_pr:"); ret(q, "S_post")
    def ld_op(li):
        sg = li >> 1; h = li & 1
        return f"s_add_u32 s{sT}, s{sPc}, {sg*4096+h*4*SLAB}\nbuffer_load_dwordx4 {vr(RB+4*li,4)}, v{vOs2}, {srd(sPA)}, s{sT} offen sc1"
    LSET = [range(0, 4), range(4, 8), range(8, 10)]
    def red_ops(k):
        d = RD + 4 * k
        o = [m16(vr(d, 4), vr(SEL + 4 * ((li >> 1) & 1), 4), vr(RB + 4 * li, 4), '0' if li % 4 == 0 else None) for li in LSET[k]]
        o2 = [f"v_cvt_pk_bf16_f32 v{d}, v{d}, v{d+1}", f"v_cvt_pk_bf16_f32 v{d+1}, v{d+2}, v{d+3}",
              ("VM", f"s_add_u32 s{sT2}, s{sPd}, {k*32*1280}\nbuffer_store_dwordx2 {vr(d,2)}, v{vOo3 if k == 2 else vOo2}, {srd(sOUT)}, s{sT2} offen", None)]
        return o, o2
    q("S_ld:")
    for li in range(10): q(ld_op(li))
    q("s_waitcnt vmcnt(0)")
    q("S_reda:")
    for o in red_ops(0)[0]: q(o)
    q("S_redb:")
    for k in (1, 2):
        for o in red_ops(k)[0]: q(o)
    for k in range(3):
        for o in red_ops(k)[1]: q(o if isinstance(o, str) else o[1])
    ret(q, "S_ld|S_reda|S_redb")
    def reduce_group(g):
        p(f"s_mov_b32 s{sPc}, {g*40960}\ns_movk_i32 s{sPd}, {g*256}"); call(p, "S_ld")

    p("L_T:")
    stamp(p, 1, 2)
    p("s_waitcnt vmcnt(16)")
    p(f"s_mov_b32 s{sT}, {EXA[0]}\ns_mul_i32 s{sT2}, s{sWave}, 20480\ns_add_u32 s{sT2}, s{sT2}, {V1-20480}\ns_cmp_eq_u32 s{sWave}, 0\ns_cselect_b32 s{sT2}, s{sT}, s{sT2}")
    p(f"v_add_u32 v{vR0}, s{sT2}, v{vLin}")
    p(f"s_xor_b32 s{sT3}, s{sWave}, 2\ns_mul_i32 s{sT2}, s{sT3}, 20480\ns_add_u32 s{sT2}, s{sT2}, {V1-20480}\ns_cmp_eq_u32 s{sT3}, 0\ns_cselect_b32 s{sT2}, s{sT}, s{sT2}")
    p(f"v_add_u32 v{vR1}, s{sT2}, v{vLin}")
    p(f"s_lshl_b32 s{sT}, s{sB}, 3\nv_mov_b32 v{t0}, s{sT}")
    p("L_isp:")
    p(f"buffer_load_dword v{vPol}, v{t0}, {srd(sDBG)}, 0 offen sc1")
    p("s_barrier")
    for step in range(2):
        for i in range(20):
            p(f"ds_write_b128 v{vR0}, {ar(aSV+4*i,4) if step == 0 else vr(QR+4*i,4)} offset:{1024*i}")
            if i % 10 == 9: p("s_waitcnt lgkmcnt(0)")
        p("s_barrier")
        for i in range(20):
            p(f"ds_read_b128 {ar(80*step+4*i,4)}, v{vR1} offset:{1024*i}")
            if i % 10 == 9: p("s_waitcnt lgkmcnt(0)")
        if step == 1:
            p("s_waitcnt vmcnt(0)")
            p("L_ick:")
            p(f"v_readfirstlane_b32 s{sT}, v{vPol}\ns_cmp_eq_u32 s{sT}, 1\ns_cbranch_scc1 L_iok")
            p(f"s_sleep 8\nbuffer_load_dword v{vPol}, v{t0}, {srd(sDBG)}, 0 offen sc1\ns_waitcnt vmcnt(0)\ns_branch L_ick")
            p("L_iok:")
        p("s_barrier")
    REG = [K0, K1, V0, V1]; TBr = [vR0, vR1, vR2, vR3]
    p(f"s_lshl_b32 s{sT}, s{sPi}, 7\nv_add_u32 v{vR0}, s{sT}, v{vTl}\nv_add_u32 v{vR1}, {K1}, v{vR0}\nv_add_u32 v{vR2}, {V0}, v{vR0}\nv_add_u32 v{vR3}, {V1}, v{vR0}")
    p(f"s_add_u32 s{sPa}, s{sHS}, {V0}\ns_mov_b32 s{sPb}, s{sGB}"); call(p, "S_odmb")
    p(f"v_mov_b32 v{vSt2}, {OOB}\nv_mov_b32 v{vOs2}, {OOB}\nv_mov_b32 v{vOo2}, {OOB}\nv_mov_b32 v{vOo3}, {OOB}")
    p(f"s_mov_b32 s{sIt}, 0\ns_mov_b32 s{sSt}, 0\ns_mov_b32 s{sPc}, 0\ns_mov_b32 s{sPd}, 0\ns_mov_b32 s{sFo}, 0\ns_mov_b32 s{sCol}, s{sGB}\ns_mov_b32 s{sRa}, s{sHS}")
    Bop = lambda qd, t, ts: [ar(aSV + 16 * t + 4 * ts, 4), vr(QR + 16 * t + 4 * ts, 4), ar(16 * t + 4 * ts, 4), ar(80 + 16 * t + 4 * ts, 4)][qd]
    tacc = lambda Jp, t, h: TA + 40 * Jp + 8 * t + 4 * h
    def st_ops(Jp, vo, back):
        o = []
        for t in range(5):
            tm = TMP + 4 * (t & 1); a = tacc(Jp, t, 0)
            o += [f"v_cvt_pk_bf16_f32 v{tm+i}, v{a+2*i}, v{a+2*i+1}" for i in range(4)]
            o.append(("VM", f"s_add_u32 s{sT3}, s{sSt}, {t*4096}\nbuffer_store_dwordx4 {vr(tm,4)}, v{vo}, {srd(sPO)}, s{sT3} offen offset:{1024*Jp} sc1", 'ps'))
        return o
    vm = Q(p, "vmcnt", 63); T = {}
    def tmf(qd, f, m):
        Jp = f >> 3; ts = (f >> 1) & 3; h = f & 1
        return [m16(vr(tacc(Jp, t, h), 4), ar(FB(m), 4), Bop(qd, t, ts), '0' if qd == 0 and ts == 0 else None) for t in range(5)]
    LAG = opts.get('lag', 2); PQ = opts.get('pq', 2)
    def period():
        for qd in range(4):
            D = (qd + 3) & 3
            if qd == 0:
                p(f"buffer_load_dword v{vPol}, v{vZ}, {srd(sFL)}, s{sFo} offen sc1"); T['poll'] = vm.issue()
            if qd == 1:
                p(f"s_add_u32 s{sCol}, s{sCol}, 256\ns_cmp_ge_u32 s{sIt}, {LAG}\ns_cbranch_scc1 L_T_ck")
                p("L_T_ckb:")
                T['pollw'] = vm.n - T['poll']
            if qd == PQ:
                p(f"s_lshl_b32 s{sT2}, s{sIt}, 7\ns_sub_u32 s{sT2}, s{sT2}, 128\ns_cbranch_scc1 L_T_np"); call(p, "S_post"); p("L_T_np:")
            if qd == 3:
                p(f"s_lshl_b32 s{sPd}, s{sIt}, 8\ns_sub_u32 s{sPd}, s{sPd}, {256*LAG}\ns_cselect_b32 s{sPd}, 0, s{sPd}\ns_cbranch_scc1 L_T_no\nv_mov_b32 v{vOo2}, v{vOfo}\nv_mov_b32 v{vOo3}, v{vOf3}")
                p("L_T_no:")
            p(f"s_add_u32 s{sPa}, s{sRa}, {REG[D]}\ns_add_u32 s{sPb}, s{sCol}, {(D&1)*256*1280}\ns_add_u32 s{sRb}, s{sPb}, {8*1280}")
            vmo = []
            lds_ = list(LSET[qd - 1]) if qd >= 1 else []
            for i in range(8):
                im = (i >> 1) * 1280
                vmo.append(("VM", f"s_add_u32 m0, s{sPa}, {i*PCS-im}\nbuffer_load_dwordx4 v{vWoA if D < 2 else vWoB}, {srd(sWO)}, s{sRb if i & 1 else sPb} offen offset:{im} lds", ('d', D)))
                if i % 2 and lds_: vmo.append(("VM", ld_op(lds_.pop(0)), ('l', qd - 1)))
            if WQ == 3:
                vmo.append(("VM", f"s_add_u32 s{sT}, s{sRc}, {qd*128*1280}\nbuffer_load_dwordx4 {vr(212,4)}, v{vWarm}, {srd(sWO)}, s{sT} offen", None))
                if qd == 0: p(f"s_add_u32 s{sRc}, s{sIt}, 2\ns_min_u32 s{sRc}, s{sRc}, 4\ns_lshl_b32 s{sRc}, s{sRc}, 8")
            streams = []
            if qd == 0: streams.append((split(st_ops(1, vSt2, True) + [f"v_mov_b32 v{vSt2}, v{vSt}\ns_mul_i32 s{sSt}, s{sIt}, 40960"]), list(range(13, 49))))
            if qd == 3: streams.append((split(st_ops(0, vSt, False)), list(range(53, 80))))
            streams.append((split(vmo), list(range(0, 78))))
            rk = (qd + 1) & 3
            if rk < 3: streams.append(([(("W", ('l', rk)), 1)] + [(o, 1) for o in red_ops(rk)[0]], list(range(30, 50))))
            else: streams.append((split([o for k in range(3) for o in red_ops(k)[1]]), list(range(0, 78))))
            def rdtxt(m, e):
                f = m - 2; Jp = f >> 3; ts = (f >> 1) & 3; h = f & 1
                return f"ds_read_b64_tr_b16 {ar(FB(m)+2*e,2)}, v{TBr[qd]} offset:{ts*SLOT+e*256+Jp*64+h*8}"
            gunit(rdtxt, lambda m, t: (tmf(qd, m - 2, m) if m >= 2 else tmf((qd - 1) & 3, 14 + m, m))[t], streams, vm, T)
            need = T.get(('d', (qd + 1) & 3), 0)
            if qd == PQ - 1: need = max(need, T['ps'])
            if qd == 1: need = max(need, T['poll'])
            vm.wait(need)
            if qd == 3: p(f"s_add_u32 s{sIt}, s{sIt}, 1\ns_cmp_lt_u32 s{sIt}, 5")
            p("s_waitcnt lgkmcnt(0)\ns_barrier")
    mark = len(p.ins)
    period()
    del p.ins[mark:]
    p("L_T_loop:")
    stamp_it(p, 2, "t", [(0, 2), (1, 3), (2, 4), (3, 5), (4, 6)])
    period()
    p("s_cbranch_scc1 L_T_loop")
    side("L_T_ck:")
    side(f"s_waitcnt vmcnt({min(63, T['pollw'])})"); call(side, "S_spinc")
    side(f"s_sub_u32 s{sPc}, s{sIt}, {LAG}\ns_mul_i32 s{sPc}, s{sPc}, 40960\ns_add_u32 s{sFo}, s{sFo}, 128\nv_mov_b32 v{vOs2}, v{vOfs}")
    side(f"s_cmp_lg_u32 s{sIt}, 4\ns_cbranch_scc1 L_T_ckb")
    side(f"v_mov_b32 v{vWoA}, {OOB}\nv_mov_b32 v{vWoB}, {OOB}\ns_mov_b32 s{sRa}, 0x28000\ns_branch L_T_ckb")
    for m in range(2):
        for o in tmf(3, 14 + m, m): p(o)
    p(f"s_movk_i32 s{sFo}, 384\nbuffer_load_dword v{vPol}, v{vZ}, {srd(sFL)}, s{sFo} offen sc1")
    for o in st_ops(1, vSt, True): p(o if isinstance(o, str) else o[1])
    stamp(p, 7); stamp(p, 7, 2)
    p("s_waitcnt vmcnt(5)"); call(p, "S_redb")
    rest = list(range(5 - LAG, 4))
    p("s_waitcnt vmcnt(3)\ns_barrier")
    p(f"s_movk_i32 s{sT2}, 512"); call(p, "S_post")
    call(p, "S_spinc")
    for i, g in enumerate(rest[1:]):
        p(f"s_mov_b32 s{sPc}, {g*40960}")
        for li in range(10): p(ld_op(li).replace(vr(RB + 4 * li, 4), vr(40 * i + 4 * li, 4)))
    reduce_group(rest[0])
    for i, g in enumerate(rest[1:]):
        for r in range(0, 40, 2): p(f"v_mov_b64 {vr(RB+r,2)}, {vr(40*i+r,2)}")
        p(f"s_movk_i32 s{sPd}, {g*256}"); call(p, "S_reda")
    p(f"s_movk_i32 s{sFo}, 512"); call(p, "S_spin")
    reduce_group(4)
    if PROF:
        p("s_waitcnt vmcnt(0)\ns_mov_b32 s96, s65")
        stamp(p, 9)
        p("s_memrealtime s[100:101]\ns_waitcnt lgkmcnt(0)")
        p(f"s_lshl_b32 s{sT}, s2, 3\ns_add_u32 s{sT}, s{sT}, s{sWave}\ns_lshl_b32 s{sT}, s{sT}, 6")
        p(f"s_add_u32 s4, s66, 0x4000000\ns_addc_u32 s5, s67, 0\ns_mov_b32 s6, 0x100000\ns_mov_b32 s7, 0x20000\nv_mov_b32 v0, s{sT}")
        for i in range(11):
            p(f"v_mov_b32 v1, s{80+2*i}\nbuffer_store_dword v1, v0, s[4:7], 0 offen offset:{4*i}\nbuffer_store_dword v1, v0, s[4:7], 0 offen offset:{256+4*i}")
    p("L_exit:")
    p("s_endpgm")
    if opts.get('nodma'): p.ins = [x for x in p.ins if not (x.kind == 'dma' and (srd(sK) in x.text or srd(sV) in x.text))]
    if opts.get('bprof'):
        a, b = {1: ('L_Q_loop', 'L_A_m2'), 2: ('L_T_loop', 'L_exit'), 3: ('L_A_l1', 'L_A_e13')}[opts['bprof']]
        new = []; on = False; k = 0
        def wrap(x, acc):
            for t in ["s_cselect_b32 s99, 1, 0", "s_memtime s[78:79]".replace("78:79", "2:3") if False else "s_memtime s[100:101]", "s_waitcnt lgkmcnt(0)", f"s_sub_u32 s{acc}, s{acc}, s100"]: new.append(Ins(t))
            new.append(x)
            for t in ["s_memtime s[100:101]", "s_waitcnt lgkmcnt(0)", f"s_add_u32 s{acc}, s{acc}, s100", "s_cmp_lg_u32 s99, 0"]: new.append(Ins(t))
        for x in p.ins:
            if x.label == b or (on and x.text.startswith('s_cbranch_scc1 L_T_loop')): on = False
            if on and x.op == 's_barrier': wrap(x, 82)
            elif on and x.op == 's_waitcnt' and 'vmcnt' in x.text:
                wrap(x, 84 + 2 * min(k, 5)); print("site", min(k, 5), x.text, file=sys.stderr); k += 1
            else: new.append(x)
            if x.label == a: on = True
        p.ins = new
    p.ins += q.ins + side.ins
    n = p.fix_hazards(verbose=opts.get('verbose', False))
    print("hazard nops inserted:", n, "instrs:", len(p.ins), file=sys.stderr)
    hdr = open('standalone__mha_block_cached__near_ridge.s.ref').read().split('\n')
    hdr = [l for l in hdr if l.startswith(';') and '@launch' not in l and not l.startswith('; Override') and not l.startswith('; grid=ceil')]
    out = "\n".join(hdr) + "\n"
    out += f"; @launch grid=(256,1,1) block=(256,1,1) lds={LDS_BYTES}\n"
    out += '.amdgcn_target "amdgcn-amd-amdhsa--gfx950"\n.text\n'
    out += f".globl {KN}\n.p2align 8\n.type {KN},@function\n" + p.text()
    out += f""".section .rodata,"a"
.p2align 6
.amdhsa_kernel {KN}
  .amdhsa_next_free_vgpr 512
  .amdhsa_next_free_sgpr {102 if PROF else 80}
  .amdhsa_accum_offset 256
  .amdhsa_group_segment_fixed_size 0
  .amdhsa_kernarg_size 64
  .amdhsa_user_sgpr_count 2
  .amdhsa_user_sgpr_kernarg_segment_ptr 1
  .amdhsa_system_sgpr_workgroup_id_x 1
.end_amdhsa_kernel
"""
    return out

if __name__ == "__main__":
    opts = {}
    for a in sys.argv[2:]:
        k, v = a.split('='); opts[k] = int(v)
    open(sys.argv[1], 'w').write(gen(opts))
```

```python
import sys, math, struct
sys.path.insert(0, 'dev')
from asmlib import Prog, Q, Ins

KN = "standalone__mha_block_cached__near_ridge_kernel"
SLOT = 8448; PCS = 1056
K0 = 0; V0 = 4 * SLOT; K1 = 8 * SLOT; V1 = 12 * SLOT; XR = 14 * SLOT; DUMS = 16 * SLOT
EXA = [V0, V1, V1 + 20480, V1 + 40960]
LDS_BYTES = 163840 - 1024
SLAB = 204800; FLG = 256 * SLAB

QR = 0; SS = [80, 120]; NM = 160; LL = 180; ONE = 200; FACS = [218, 220, 246, 248, 250]; TT = 232; WD = 252
XB = 0; XT = 80
TA = 80; RB = 160; RD = 200; SEL = 224; TMP = 232; vOo3 = 222; vOf3 = 223
aACC = 0; aSV = 160; aF = 240
(vLin, vKa0, vKa1, vVa, vDk, vDv, vXd, vWd, vXa0, vXa1, tA, tB, tC, vTl) = range(204, 218)
vOfs, vOfo, vWarm, vWoA, vWoB, vSt, vSt2, vOs2, vOo2, vZ, vPol, t0, vR0, vR1, vR2, vR3 = range(240, 256)

sK, sV, sWQ, sWO, sX, sPO, sPA, sOUT, sDBG, sFL = 4, 8, 12, 16, 20, 24, 60, 72, 76, 68
sWave, sB, sHG, sIt, sMK, sMV, sRnd, sR0, sCur, sHS, sGB = 28, 29, 30, 31, 32, 33, 34, 35, 36, 37, 38
sT, sC, sBL, sPi, sPa, sT2, sT3, sPb, sCol = 39, 40, 41, 42, 43, 44, 45, 46, 47
sRa, sRb, sRet, sRc, sXl, sXg, sPc, sPd, sMsk, sSt, sFo = 48, 49, 50, 52, 53, 54, 55, 56, 57, 58, 59
sDry = 64
sZ, sMK2, sMV2 = 3, 64, 47
OOB = 0x7ff00000

SCALE = math.log2(math.e) / math.sqrt(128.0)
def f2u(x): return struct.unpack('<I', struct.pack('<f', x))[0]
def vr(b, n): return f"v[{b}:{b+n-1}]"
def ar(b, n): return f"a[{b}:{b+n-1}]"
def srd(b): return f"s[{b}:{b+3}]"
def m16(d, a, b, c=None): return f"v_mfma_f32_16x16x32_bf16 {d}, {a}, {b}, {d if c is None else c}"
def mksrd(p, s, lo, off, size):
    p(f"s_add_u32 s{s}, s{lo}, {off}\ns_addc_u32 s{s+1}, s{lo+1}, 0\ns_mov_b32 s{s+2}, {size}\ns_mov_b32 s{s+3}, 0x20000")
def call(p, name): p(f"s_call_b64 s[{sRet}:{sRet+1}], {name}")
def ret(p, name): p(f"s_setpc_b64 s[{sRet}:{sRet+1}] ; ret={name}")
def spread(seq, gaps):
    tot = sum(c for _, c in seq); out = {}; acc = 0
    for it, c in seq:
        g = gaps[min(int((acc + c * 0.5) * len(gaps) / tot), len(gaps) - 1)]
        out.setdefault(g, []).append(it); acc += c
    return out
class Gaps:
    def __init__(self, n=80): self.n = n; self.items = [[] for _ in range(n)]; self.load = [0.0] * n
    def pin(self, g, it, c=1): self.items[g].append(it); self.load[g] += c
    def reserve(self, g, c=1): self.load[g] += c
    def stream(self, seq, gaps):
        tot = sum(c for _, c in seq)
        lo, hi = 0.0, 50.0
        for _ in range(40):
            mid = (lo + hi) / 2
            if sum(max(0.0, mid - self.load[g]) for g in gaps) >= tot: hi = mid
            else: lo = mid
        room = [max(0.0, hi - self.load[g]) for g in gaps]
        cum = 0.0; edges = []
        for r in room: cum += r; edges.append(cum)
        acc = 0.0; k = 0
        for it, c in seq:
            pos = acc + c * 0.5
            while k < len(gaps) - 1 and edges[k] < pos: k += 1
            self.pin(gaps[k], it, c); acc += c
def greedy(order, cap, streams):
    out = {g: [] for g in order}; ptr = [0] * len(streams); where = {}
    for pos, g in enumerate(order):
        room = cap[g]
        while True:
            best = None
            for si, st in enumerate(streams):
                k = ptr[si]
                if k >= len(st['items']) or pos < st['lo']: continue
                it, c, dep = st['items'][k]
                if dep is not None and where.get(dep, 10**9) >= pos and pos < st['hi']: continue
                lag = (pos + 1 - st['lo']) / (st['hi'] + 1 - st['lo']) - k / len(st['items'])
                late = lag * len(st['items'])
                if c > room and late < 1.5 and pos < st['hi']: continue
                if late < -1.0: continue
                if best is None or late > best[0]: best = (late, si)
            if best is None: break
            si = best[1]; it, c, dep = streams[si]['items'][ptr[si]]
            out[g].append(it); where[(si, ptr[si])] = pos; ptr[si] += 1; room -= c
    assert all(ptr[i] == len(st['items']) for i, st in enumerate(streams)), ptr
    return out
def split(ops, tag=None):
    out = []
    for o in ops:
        tg = tag
        if isinstance(o, tuple): tg = o[2]; o = o[1]
        for l in o.split("\n"):
            if l == "s_nop 0": continue
            out.append((("VM", l, tg), 1.5) if l.startswith("buffer_") else (l, 1))
    return out
FB = lambda m: aF + 4 * (m & 3)
oacc = lambda dt, t: aACC + 4 * (dt * 5 + t)

def gen(opts):
    p = Prog(); side = Prog(); q = Prog()
    PROF = opts.get('prof', 0)
    PST = opts.get('pst', 0)
    def stamp_it(pp, mode, tag, vals):
        if PROF and PST == mode:
            pp("s_cselect_b32 s99, 1, 0")
            for v, i in vals:
                pp(f"s_cmp_lg_u32 s{sIt}, {v}\ns_cbranch_scc1 L_si{tag}{v}"); stamp(pp, i, mode); pp(f"L_si{tag}{v}:")
            pp("s_cmp_lg_u32 s99, 0")
    def stamp(pp, i, mode=0):
        if PROF and (PST == mode or i in (0, 9)):
            pp(f"{'s_memrealtime' if opts.get('rt') else 's_memtime'} s[{80+2*i}:{81+2*i}]\ns_waitcnt lgkmcnt(0)")
    def stamp_r(pp, i0, i1, tag):
        if PROF and PST == 0:
            pp(f"s_cmp_eq_u32 s{sRnd}, 0\ns_cbranch_scc0 L_st{tag}a"); stamp(pp, i0); pp(f"s_branch L_st{tag}b\nL_st{tag}a:"); stamp(pp, i1); pp(f"L_st{tag}b:")
    p(f"{KN}:")
    p("s_cmp_ge_u32 s2, 256\ns_cbranch_scc1 L_exit")
    p("s_load_dwordx8 s[56:63], s[0:1], 0\ns_load_dwordx8 s[64:71], s[0:1], 32")
    if PROF:
        for i in range(10): p(f"s_mov_b32 s{80+2*i}, 0")
        p("s_memrealtime s[100:101]")
    stamp(p, 0)
    p(f"v_lshrrev_b32 v1, 6, v0\nv_and_b32 v0, 63, v0\nv_lshlrev_b32 v{vLin}, 4, v0")
    p(f"v_readfirstlane_b32 s{sWave}, v1")
    p(f"s_bfe_u32 s{sB}, s2, 0x20001\ns_lshl_b32 s{sB}, s{sB}, 3\ns_lshr_b32 s{sBL}, s2, 5\ns_add_u32 s{sB}, s{sB}, s{sBL}")
    p(f"s_and_b32 s{sHG}, s2, 1\ns_lshl_b32 s{sHG}, s{sHG}, 2\ns_bfe_u32 s{sT3}, s2, 0x20003\ns_add_u32 s{sHG}, s{sHG}, s{sT3}")
    p(f"s_add_u32 s{sT3}, s{sT3}, s{sBL}")
    p(f"s_mul_i32 s{sT2}, s{sT3}, 205\ns_lshr_b32 s{sT2}, s{sT2}, 10\ns_mul_i32 s{sT2}, s{sT2}, 5\ns_sub_u32 s{sR0}, s{sT3}, s{sT2}")
    p(f"s_lshr_b32 s{sPi}, s{sWave}, 1")
    p(f"v_lshrrev_b32 v1, 4, v0\nv_and_b32 v2, 0xf0, v{vLin}\nv_and_b32 v3, 1, v1\nv_lshrrev_b32 v5, 1, v1")
    p(f"v_lshl_add_u32 v4, v3, 1, v5\nv_mul_u32_u24 v{vXd}, {8*1280}, v4\nv_lshlrev_b32 v4, 4, v3\nv_xor_b32 v4, v4, v2\nv_add_u32 v{vXd}, v{vXd}, v4")
    p(f"v_lshl_add_u32 v4, v5, 2, v3\nv_lshl_add_u32 v{vWd}, v4, 15, v2")
    p(f"s_mul_i32 s{sXl}, s{sWave}, {2*PCS}\ns_mul_i32 s{sXg}, s{sWave}, 1280")
    p(f"s_mul_i32 s{sHS}, s{sWave}, {SLOT}")
    p(f"s_and_b32 s{sT}, s{sWave}, 1\ns_lshl_b32 s{sGB}, s{sT}, 18\ns_lshl_b32 s{sT}, s{sPi}, 8\ns_add_u32 s{sGB}, s{sGB}, s{sT}")
    p(f"s_mul_i32 s{sT2}, s{sB}, 204800\ns_lshl_b32 s{sT3}, s{sHG}, 10\ns_sub_u32 s{sIt}, 5242880, s{sT3}\ns_mov_b32 s{sRnd}, 0")
    ZM = opts.get('z', 1)
    p({0: f"s_mov_b32 s{sZ}, 0", 1: f"s_and_b32 s{sZ}, s{sHG}, 1", 2: f"s_and_b32 s{sZ}, s{sBL}, 1", 3: f"s_mov_b32 s{sZ}, 1"}[ZM])
    p(f"s_lshl_b32 s{sZ}, s{sZ}, 1\ns_lshl_b32 s{sT}, s{sZ}, 8\ns_add_u32 s{sGB}, s{sGB}, s{sT}")
    p("s_waitcnt lgkmcnt(0)")
    mksrd(p, sX, 56, f"s{sT2}", 204800)
    mksrd(p, sWQ, 62, f"s{sT3}", f"s{sIt}")
    call(p, "S_qpre")
    p("s_branch L_setup")
    def xops():
        o = []
        for t in range(5):
            for hh in range(2):
                o.append(f"s_add_u32 m0, s{sXl}, {XR+t*SLOT+hh*PCS}\ns_add_u32 s{sT}, s{sPc}, {(32*t+4*hh)*1280}\nbuffer_load_dwordx4 v{vXd}, {srd(sX)}, s{sT} offen lds")
        return o
    xpre = f"s_lshl_b32 s{sPc}, s{sCur}, 8\ns_add_u32 s{sPc}, s{sPc}, s{sXg}"
    def wops(pa=sPa, add=0):
        return [f"s_add_u32 m0, s{pa}, {pc*PCS}\ns_add_u32 s{sT}, s{sPb}, {(8*(pc&1)+(pc>>1))*8192+add}\nbuffer_load_dwordx4 v{vWd}, {srd(sWQ)}, s{sT} offen lds" for pc in range(8)]
    def wpre(reg, u):
        return f"s_add_u32 s{sPa}, s{sHS}, {reg}\ns_lshl_b32 s{sPb}, s{sCur}, 20\ns_add_u32 s{sPb}, s{sPb}, s{sGB}" + (f"\ns_add_u32 s{sPb}, s{sPb}, {64*8192}" if u else "")
    p("S_qpre:")
    p(f"s_mov_b32 s{sCur}, s{sR0}"); p(xpre)
    for o in xops(): p(o)
    p(wpre(K0, 0))
    p(f"s_mov_b32 s{sIt}, 0")
    p("L_qp2:")
    for o in wops(): p(o)
    p(f"s_add_u32 s{sPa}, s{sPa}, {K1-K0}\ns_add_u32 s{sPb}, s{sPb}, {64*8192}\ns_add_u32 s{sIt}, s{sIt}, 1\ns_cmp_lt_u32 s{sIt}, 2\ns_cbranch_scc1 L_qp2")
    ret(p, "S_qpre")
    p("L_setup:")
    p(f"v_mul_u32_u24 v{vWoA}, {4*1280}, v4\nv_add_u32 v{vWoA}, v{vWoA}, v2\nv_bfe_u32 v6, v0, 3, 1\nv_mul_u32_u24 v6, {128*1280}, v6")
    p(f"v_sub_u32 v{vWoB}, v{vWoA}, v6\nv_add_u32 v{vWoB}, {128*1280}, v{vWoB}\nv_add_u32 v{vWoA}, v{vWoA}, v6")
    p(f"v_mul_u32_u24 v{vWarm}, 1280, v1\nv_add_u32 v{vWarm}, v{vWarm}, v2")
    p(f"s_lshl_b32 s{sT}, s{sBL}, 2\ns_add_u32 s{sT}, s{sT}, s{sWave}\ns_mul_i32 s{sT}, s{sT}, {4*1280}\nv_add_u32 v{vWarm}, s{sT}, v{vWarm}")
    mksrd(p, sOUT, 66, f"s{sT2}", 204800)
    p(f"s_mov_b32 s{sDBG}, s68\ns_mov_b32 s{sDBG+1}, s69\ns_mov_b32 s{sDBG+2}, 256\ns_mov_b32 s{sDBG+3}, 0x20000")
    p("s_mov_b32 s66, s70\ns_mov_b32 s67, s71")
    p(f"s_lshl_b32 s{sT}, s{sB}, 3\ns_add_u32 s{sT}, s{sT}, s{sHG}\ns_lshl_b32 s{sT3}, s{sT}, 19\ns_lshl_b32 s{sPa}, s{sPi}, 17\ns_add_u32 s{sT3}, s{sT3}, s{sPa}")
    mksrd(p, sK, 58, f"s{sT3}", 131072); mksrd(p, sV, 60, f"s{sT3}", 131072)
    p(f"s_mul_i32 s{sT3}, s{sT}, {SLAB}"); mksrd(p, sPO, 66, f"s{sT3}", SLAB)
    p(f"s_lshl_b32 s{sT2}, s{sT2}, 3"); mksrd(p, sPA, 66, f"s{sT2}", 8 * SLAB)
    p(f"s_lshl_b32 s{sT2}, s{sB}, 10\ns_add_u32 s{sT2}, s{sT2}, {FLG}"); mksrd(p, sFL, 66, f"s{sT2}", 1024)
    p(f"s_mul_i32 s{sT2}, s{sHG}, {512*1280}"); mksrd(p, sWO, 64, f"s{sT2}", 512 * 1280)
    if PROF: p("s_mov_b32 s65, s100")
    p(f"s_mov_b32 s{sC}, {f2u(SCALE)}\ns_mov_b32 s{sMsk}, 0xffff0000")
    p(f"v_bfe_u32 v4, v0, 2, 2\nv_lshl_add_u32 v4, v4, 1, v3\nv_mul_u32_u24 v{vTl}, {PCS}, v4\nv_lshl_add_u32 v{vTl}, v5, 9, v{vTl}")
    p(f"v_and_b32 v4, 0x30, v{vLin}\nv_add_u32 v{vTl}, v{vTl}, v4")
    p(f"v_and_b32 v4, 3, v0\nv_bfe_u32 v6, v0, 2, 1\nv_lshl_add_u32 v4, v4, 1, v6\nv_mul_u32_u24 v7, {PCS}, v4\nv_bfe_u32 v6, v0, 3, 1\nv_lshl_add_u32 v7, v6, 9, v7")
    p(f"v_xor_b32 v6, 1, v1\nv_lshl_add_u32 v8, v6, 4, v7\nv_add_u32 v8, 256, v8\nv_lshl_add_u32 v7, v1, 4, v7")
    p(f"s_mul_i32 s{sMK}, s{sPi}, {K1}")
    p(f"v_add_u32 v{vKa0}, s{sMK}, v7\nv_add_u32 v{vKa1}, s{sMK}, v8\ns_add_u32 s{sMV}, s{sMK}, {V0}\nv_add_u32 v{vVa}, s{sMV}, v{vTl}")
    p(f"s_and_b32 s{sT}, s{sWave}, 1\ns_mul_i32 s{sT2}, s{sT}, {4*PCS}\ns_add_u32 s{sMK}, s{sMK}, s{sT2}\ns_add_u32 s{sMV}, s{sMV}, s{sT2}")
    p(f"v_add_u32 v{vXa0}, {XR}, v7\nv_add_u32 v{vXa1}, {XR}, v8")
    p(f"s_cmp_eq_u32 s{sT}, 0\ns_cbranch_scc1 L_x0")
    p(f"v_add_u32 v{vXa0}, {XR+2*SLOT}, v8\nv_add_u32 v{vXa1}, {XR+3*SLOT}, v7")
    p("L_x0:")
    p(f"s_mul_i32 s{sT2}, s{sT}, 20480\ns_lshl_b32 s{sT3}, s{sPi}, 11\ns_add_u32 s{sT2}, s{sT2}, s{sT3}\nv_add_u32 v{vSt}, s{sT2}, v{vLin}")
    p(f"s_lshr_b32 s{sT2}, s{sHG}, 2\ns_and_b32 s{sT3}, s{sHG}, 3\ns_lshl_b32 s{sT3}, s{sT3}, 2\ns_add_u32 s{sT3}, s{sT3}, s{sWave}")
    p(f"s_mul_i32 s{sPa}, s{sT2}, 20480\ns_lshl_b32 s{sPb}, s{sT3}, 8\ns_add_u32 s{sPa}, s{sPa}, s{sPb}\ns_mov_b32 s{sPb}, {SLAB}")
    p(f"v_mul_lo_u32 v{vOfs}, s{sPb}, v1\nv_add3_u32 v{vOfs}, v{vOfs}, v2, s{sPa}")
    p(f"s_mul_i32 s{sPa}, s{sT2}, {80*1280}\ns_lshl_b32 s{sPb}, s{sT3}, 4\ns_add_u32 s{sPa}, s{sPa}, s{sPb}")
    p(f"v_and_b32 v4, 15, v0\nv_lshl_add_u32 v6, v5, 4, v4\nv_mul_u32_u24 v{vOfo}, 1280, v6\nv_lshl_add_u32 v{vOfo}, v3, 3, v{vOfo}\nv_add_u32 v{vOfo}, s{sPa}, v{vOfo}")
    p(f"v_mov_b32 v6, {OOB}\nv_cmp_gt_u32 s[{sT2}:{sT2+1}], 32, v0\nv_cndmask_b32 v{vOf3}, v6, v{vOfo}, s[{sT2}:{sT2+1}]")
    p(f"v_and_b32 v6, 1, v0\nv_lshlrev_b32 v6, 4, v6\nv_mov_b32 v9, 0x3f80\nv_lshlrev_b32 v6, v6, v9\nv_lshrrev_b32 v4, 1, v4")
    for r in range(8):
        p(f"v_cmp_eq_u32 s[{sT2}:{sT2+1}], {r}, v4\nv_cndmask_b32 v{SEL+r}, 0, v6, s[{sT2}:{sT2+1}]")
    for r in range(4): p(f"v_mov_b32 v{ONE+r}, 0x3f803f80")
    p(f"v_mov_b32 v{vZ}, 0\nv_mov_b64 {vr(TT,2)}, 0\nv_mov_b64 {vr(TT+2,2)}, 0")
    zacc = [f"v_mfma_f32_32x32x16_bf16 {vr(16*i,16)}, {vr(TT,4)}, {vr(TT,4)}, 0" for i in range(10)]
    p(f"s_lshl_b32 s{sT}, s{sHG}, 3\ns_add_u32 s{sT}, s{sT}, s{sWave}\ns_cmp_eq_u32 s{sT}, 1\ns_cbranch_scc1 L_fi")
    p("L_fib:")
    DRY = opts.get('dry', 0)
    if DRY:
        for z in zacc: p(z)
        p(f"v_mfma_f32_32x32x16_bf16 {vr(160,16)}, {vr(TT,4)}, {vr(TT,4)}, 0\nv_mfma_f32_32x32x16_bf16 {vr(176,16)}, {vr(TT,4)}, {vr(TT,4)}, 0")
        p(f"v_mov_b32 v{vDk}, {OOB}\nv_mov_b32 v{vDv}, {OOB}\ns_mov_b32 s{sRa}, s{sMK}\ns_mov_b32 s{sRb}, s{sMV}\ns_mov_b32 s{sMK}, 0x30000\ns_mov_b32 s{sMV}, 0x30000\ns_mov_b32 s{sDry}, 1\ns_mov_b64 vcc, 0")
        for w, l in ((1, "l1"), (2, "l3"), (3, "e13")): p(f"s_cmp_eq_u32 s{sWave}, {w}\ns_cbranch_scc1 L_A_{l}")
        p("s_branch L_A_m2")
        p("L_dry_done:")
        p(f"s_mov_b32 s{sMK}, s{sRa}\ns_mov_b32 s{sMV}, s{sRb}\ns_mov_b32 s{sDry}, 0\ns_waitcnt lgkmcnt(0)")
    side("L_fi:")
    side(f"buffer_store_dwordx4 {vr(TT,4)}, v{vLin}, {srd(sFL)}, 0 offen sc1\ns_waitcnt vmcnt(0)")
    side(f"s_lshl_b32 s{sT}, s{sB}, 3\nv_mov_b32 v196, s{sT}\nv_mov_b32 v197, 1\ns_mov_b64 exec, 1")
    side(f"buffer_atomic_add v197, v196, {srd(sDBG)}, 0 offen sc1\ns_mov_b64 exec, -1\ns_branch L_fib")

    def kv_ops(isk, tile4):
        base, vo, sr = (sMK, vDk, sK) if isk else (sMV, vDv, sV)
        slot = tile4 & 3 if isk else (tile4 + 2) & 3
        o = [f"s_add_u32 m0, s{base}, {slot*SLOT+32*j}\ns_nop 0\nbuffer_load_dwordx4 v{vo}, {srd(sr)}, 0 offen offset:{1024*j} nt lds" for j in range(4)]
        o[-1] += f"\nv_add_u32 v{vo}, 0x2000, v{vo}"
        return o

    p(f"s_mov_b32 s{sMK2}, s{sMK}\ns_mov_b32 s{sMV2}, s{sMV}")
    p("L_round:")
    kvinit = f"s_and_b32 s{sT}, s{sWave}, 1\ns_lshl_b32 s{sT}, s{sT}, 12\nv_add_u32 v{vDv}, s{sT}, v{vLin}\nv_bfe_u32 v{t0}, v{vLin}, 8, 1\nv_lshlrev_b32 v{t0}, 4, v{t0}\nv_xor_b32 v{vDk}, v{t0}, v{vDv}"
    kvadv = "\n".join(f"s_add_u32 s{s_}, s{s_}, 262144\ns_addc_u32 s{s_+1}, s{s_+1}, 0" for s_ in (sK, sV))
    p(kvinit)
    p(f"s_cmp_eq_u32 s{sZ}, 2\ns_cselect_b32 s{sMK}, 0x30000, s{sMK2}\ns_cselect_b32 s{sMV}, 0x30000, s{sMV2}\ns_cbranch_scc0 L_z1")
    p(f"v_mov_b32 v{vDk}, {OOB}\nv_mov_b32 v{vDv}, {OOB}")
    p("L_z1:")
    p(f"s_mul_i32 s{sT}, s{sPi}, {2*SLOT}\nv_add_u32 v{tA}, s{sT}, v{vTl}\nv_add_u32 v{tB}, {K1}, v{tA}\nv_add_u32 v{tC}, {V0}, v{tA}")
    p(f"s_add_u32 s{sRa}, s{sHS}, {K0}\ns_add_u32 s{sRb}, s{sHS}, {K1}\ns_add_u32 s{sRc}, s{sHS}, {V0}\ns_mov_b32 s{sIt}, 0")
    p(f"v_mov_b64 {vr(TT,2)}, 0\nv_mov_b64 {vr(TT+2,2)}, 0")
    for z in zacc: p(z)
    xb = lambda t, j: 16 * t + 4 * j
    xt = lambda t, j: 80 + 8 * t + 4 * (j - 2)
    qacc = lambda nt, t: 32 * t + 4 * nt
    for r in range(8): p(f"v_accvgpr_write_b32 a{aF+r}, 0")
    for t in range(5):
        for r in range(4): p(f"v_accvgpr_write_b32 a{xb(t,3)+r}, 0")
    if opts.get('wq', 0) == 2:
        p(f"s_waitcnt vmcnt(20)\ns_cmp_eq_u32 s{sRnd}, 1\ns_cbranch_scc1 L_rw\ns_waitcnt vmcnt(0)")
        p("L_rw:"); p("s_barrier")
    else: p("s_waitcnt vmcnt(0)\ns_barrier")
    stamp_r(p, 1, 4, "q"); stamp(p, 1, 1)
    def xread(t, j): return f"ds_read_b128 {ar(xb(t,j) if j < 2 else xt(t,j),4)}, v{[vXa0,vXa1][t&1]} offset:{(t>>1)*SLOT+64*j}"
    for j in range(4):
        for t in range(5): p(xread(t, j))
        if j % 2: p("s_waitcnt lgkmcnt(0)")
    p("s_barrier")
    HQ = 2
    NS = opts.get('ns', 3)
    def gunit(rdtxt, mf, streams, vm=None, T=None):
        lg = Q(p, "lgkmcnt", 15); tok = {0: 0, 1: 0}
        G = Gaps()
        for m in range(14):
            for e in range(2): G.pin(5 * m + 5 + e, ("RD", m + 4, e))
        for m in range(2, 16): G.reserve(5 * m - 1)
        for seq, gaps in streams: G.stream(seq, gaps)
        def rd(m, e): lg.room(1); p(rdtxt(m, e)); tok[m] = lg.issue()
        for m in (2, 3):
            for e in range(2): rd(m, e)
        for m in range(16):
            lg.wait(tok[m])
            for t in range(5):
                p(mf(m, t))
                for o in G.items[5 * m + t]:
                    if isinstance(o, str): p(o)
                    elif o[0] == "RD": rd(o[1], o[2])
                    elif o[0] == "DS": lg.room(1); p(o[1]); lg.issue()
                    elif o[0] == "W": vm.wait(T.get(o[1], 0))
                    else:
                        p(o[1])
                        if vm:
                            tk = vm.issue()
                            if o[2]: T[o[2]] = tk
    def qunit(u, dm, fill, endw, span=76):
        def rdtxt(m, e):
            f = m - HQ; ks = f >> 3; nt = f & 7
            return f"ds_read_b64_tr_b16 {ar(FB(m)+2*e,2)}, v{[tA,tB][u]} offset:{ks*SLOT+e*256+(nt>>1)*64+(nt&1)*8}"
        def mf(m, t):
            f = m - HQ
            j = (2 * u + (f >> 3)) & 3 if f >= 0 else (2 * u - 1) & 3
            return m16(vr(qacc(f & 7, t), 4), ar(FB(m), 4), ar(xb(t, j), 4))
        gunit(rdtxt, mf, [(split(dm), list(range(0, span)))] + fill)
        p(endw)
    movs = [([(f"v_accvgpr_mov_b32 a{xb(t,j)+r}, a{xt(t,j)+r}", 1) for j in (2, 3) for t in range(5) for r in range(4)], list(range(0, 79)))]
    xrd = [([(("DS", xread(t, j)), 1) for j in (2, 3, 0, 1) for t in range(5)], list(range(1, 70)))]
    rot = (f"v_mov_b32 v{t0}, v{tC}\nv_mov_b32 v{tC}, v{tB}\nv_mov_b32 v{tB}, v{tA}\nv_mov_b32 v{tA}, v{t0}\n"
           f"s_mov_b32 s{sT}, s{sRc}\ns_mov_b32 s{sRc}, s{sRb}\ns_mov_b32 s{sRb}, s{sRa}\ns_mov_b32 s{sRa}, s{sT}")
    WQ = opts.get('wq', 0)
    vWm2 = 219
    wmo = [f"s_add_u32 s{sT}, s{sSt}, {k*128*1280}\nbuffer_load_dwordx4 {vr(TMP,4)}, v{vWm2}, {srd(sWO)}, s{sT} offen" for k in range(4)] if WQ == 1 else []
    p("L_Q_loop:")
    p(f"s_lshl_b32 s{sSt}, s{sIt}, 8")
    stamp_it(p, 1, "q", [(0, 2), (2, 3)])
    p(f"s_add_u32 s{sCur}, s{sCur}, 1\ns_cmp_ge_u32 s{sCur}, 5\ns_cselect_b32 s{sCur}, 0, s{sCur}")
    p(xpre); p(f"s_lshl_b32 s{sPb}, s{sCur}, 20\ns_add_u32 s{sPb}, s{sPb}, s{sGB}")
    p(f"s_cmp_eq_u32 s{sIt}, 3\ns_cselect_b32 s{sPa}, 0x30000, s{sRa}")
    qunit(0, xops() + wops(sRc)[:NS], movs, f"s_waitcnt vmcnt({NS}) lgkmcnt(0)\ns_barrier", span=70)
    qunit(1, wops(sRc)[NS:] + wops(sPa, 64 * 8192) + wmo, xrd, rot + f"\ns_add_u32 s{sIt}, s{sIt}, 1\ns_cmp_lt_u32 s{sIt}, 4\ns_waitcnt vmcnt({8+len(wmo)}) lgkmcnt(0)\ns_barrier")
    p("s_cbranch_scc1 L_Q_loop")
    stamp(p, 4, 1)
    p(f"s_add_u32 s{sPa}, s{sHS}, {XR}\ns_mul_i32 s{sT}, s{sPi}, {2*SLOT}\ns_add_u32 s{sT}, s{sT}, {XR}\nv_add_u32 v{tB}, s{sT}, v{vTl}")
    kpre = kv_ops(True, 0) + kv_ops(True, 1) + kv_ops(True, 2) + kv_ops(True, 3)
    qunit(0, wops(sPa, 64 * 8192) + kpre[:8], movs, "s_waitcnt vmcnt(8) lgkmcnt(0)\ns_barrier")
    p(f"s_movk_i32 s{sSt}, 1024")
    qunit(1, wmo + kpre[8:], [], f"s_waitcnt vmcnt({12+len(wmo)}) lgkmcnt(0)\ns_barrier")
    stamp(p, 5, 1)
    vpre = [o for k in range(3) for o in kv_ops(False, k)]
    p(f"s_cmp_eq_u32 s{sZ}, 2\ns_cbranch_scc0 L_z2\ns_sub_u32 s{sGB}, s{sGB}, 512"); call(p, "S_qpre")
    p("L_z2:")
    for m in range(HQ):
        for t in range(5): p(m16(vr(qacc(6 + m, t), 4), ar(FB(m), 4), ar(xb(t, 3), 4)))
    for r in range(0, 20, 2): p(f"v_mov_b64 {vr(NM+r,2)}, 0")
    for i in range(80):
        p(f"v_pk_mul_f32 {vr(2*i,2)}, {vr(2*i,2)}, s[{sC}:{sC+1}] op_sel_hi:[1,0]")
        if i >= 2: p(f"v_cvt_pk_bf16_f32 v{i-2}, v{2*i-4}, v{2*i-3}")
        if i % 6 == 0 and i // 6 < 12: p(vpre[i // 6])
    p("v_cvt_pk_bf16_f32 v78, v156, v157\nv_cvt_pk_bf16_f32 v79, v158, v159")
    p(f"s_cmp_eq_u32 s{sZ}, 2\ns_cbranch_scc1 L_zsave")
    stamp(p, 6, 1); stamp(p, 7, 1)
    stamp_r(p, 2, 5, "a")

    HB = 2
    DRYN = {"m2": "L_A_m1", "m1": "L_A_z0", "z0": "L_dry_done", "l1": "L_A_l2", "l2": "L_dry_done", "l3": "L_A_l0", "l0": "L_dry_done", "e13": "L_A_e14", "e15": "L_dry_done"}
    def sm_ops(b):
        seq = []
        for k in range(43):
            if k < 40: seq.append((f"v_exp_f32 v{b+k}, v{b+k}", 2))
            if k >= 4 and k % 2 == 0:
                i = (k - 4) // 2
                seq.append((f"v_cvt_pk_bf16_f32 v{b+8*(i>>2)+(i&3)}, v{b+2*i}, v{b+2*i+1}", 1))
        return seq
    W1 = list(range(24, 80)) + list(range(0, 9))
    def oops(vo): return [f"s_add_u32 m0, s{sPa}, {pc*PCS}\ns_add_u32 s{sT}, s{sPb}, {(8*(pc&1)+(pc>>1))*1280}\nbuffer_load_dwordx4 v{vo}, {srd(sWO)}, s{sT} offen lds" for pc in range(8)]
    r0 = xops() + wops(sPa) + wops(sRa, 64 * 8192)
    r0[0] = f"s_add_u32 s{sGB}, s{sGB}, 512\ns_mov_b32 s{sCur}, s{sR0}\n{xpre}\n{wpre(K0, 0)}\ns_add_u32 s{sRa}, s{sHS}, {K1}\n" + r0[0]
    r0s = [r0[4*i:4*i+4] for i in range(6)] + [r0[24:26], [], []]
    wm = [f"s_mov_b32 s{sT}, {(k>>2)*256+(k&3)*128*1280}\nbuffer_load_dwordx4 {vr(WD,4)}, v{vWarm}, {srd(sWO)}, s{sT} offen" for k in range(20)]
    o0 = oops(vWoA); o1 = oops(vWoA)
    o0[0] = f"s_mul_i32 s{sGB}, s{sWave}, {32*1280}\ns_add_u32 s{sPa}, s{sHS}, {K0}\ns_mov_b32 s{sPb}, s{sGB}\n" + o0[0]
    o1[0] = f"s_add_u32 s{sPa}, s{sHS}, {K1}\ns_add_u32 s{sPb}, s{sGB}, {256*1280}\n" + o1[0]
    r1s = [wm[0:4], wm[4:7], wm[7:10], wm[10:13], wm[13:16], wm[16:20], [], o0, o1]
    r2s = [[kvadv, kvinit] + kv_ops(True, 0), kv_ops(True, 1), kv_ops(True, 2), kv_ops(True, 3), kv_ops(False, 0), kv_ops(False, 1), [], [], []]
    def site(k):
        p(f"s_or_b32 s{sT}, s{sRnd}, s{sZ}\ns_cbranch_scc1 L_s{k}a")
        for o in r0s[k]: p(o)
        p(f"L_s{k}b:")
        side(f"L_s{k}a:")
        side(f"s_cmp_eq_u32 s{sZ}, 1\ns_cbranch_scc1 L_s{k}c")
        for o in r1s[k]: side(o)
        side(f"s_branch L_s{k}b")
        side(f"L_s{k}c:")
        for o in r2s[k]: side(o)
        side(f"s_branch L_s{k}b")
    POS = []
    for m in range(16):
        POS += [(m, t) for t in range(5)]
        if 3 <= m < 8: POS.append(('L', m - 3))
    NPOS = len(POS); first_of = {m: POS.index((m, 0)) for m in range(16)}
    cap = {x: 2.0 for x in range(NPOS)}; pins = {x: [] for x in range(NPOS)}
    for m in range(14):
        x = POS.index((m, 4)) + 1
        for e in range(2 if m + 4 < 10 else 1): pins[x + e].append(('RD', m + 4, e)); cap[x + e] -= 1
    for m in range(2, 16): cap[first_of[m] - 1] -= 1
    XC = opts.get('xc', 24); XP = first_of[10] + 4
    pins[XC].append('CHECK'); cap[XC] -= 2; pins[XP].append('PT2'); cap[XP] -= 1
    order = list(range(XC + 1, NPOS)) + list(range(0, XC + 1)); n1 = NPOS - XC - 1
    mreg = [8 * t + r for t in range(5) for r in range(4)] + [8 * t + 4 + r for t in range(5) for r in range(4)]
    mx = [('MX', TT, None, mreg[0:3]), ('MX', TT + 1, None, mreg[3:6])] + [('MX', TT + ((i >> 1) & 1), 1, mreg[i:i+2]) for i in range(6, 40, 2)] + [('MF',)]
    tmpl = greedy(order, cap, [
        dict(items=[(('EX', k), 2, None) for k in range(40)], lo=0, hi=n1 + 8),
        dict(items=[(('CV', i), 1, (0, 2 * i + 1)) for i in range(20)], lo=3, hi=n1 + 10),
        dict(items=[(o, 1, None) for o in mx[:9]], lo=n1 + 2, hi=n1 + 13),
        dict(items=[(o, 1, None) for o in mx[9:]], lo=n1 + 14, hi=n1 + XC - 1),
        dict(items=[(('DM', i), 1, (4, i - 1) if i % 2 else None) for i in range(6)], lo=n1, hi=n1 + XC - 1),
        dict(items=[(('DM', i), 1, (5, i - 7) if i % 2 else None) for i in range(6, 16)], lo=0, hi=n1 - 4)])
    def abody(tag, nm, held=True, pv=True, qk=True, zc=False, first=False, dma=True, smt=True, smh=True, endw="vmcnt(16)", bar=True, sites={}):
        Sn = SS[nm & 1]; Sn1 = SS[(nm + 1) & 1]
        lg = Q(p, "lgkmcnt", 15); tok = {0: 0, 1: 0}
        p(f"L_A_{tag}:")
        slot = (nm + 2) & 3
        ms = ([0, 1] if held else []) + (list(range(2, 10)) + ['L'] if pv else []) + (list(range(10, 16)) if qk else [])
        done = set()
        def rd(m, e):
            if (m, e) in done or (m < 10 and not pv) or (m >= 10 and not qk): return
            done.add((m, e)); lg.room(1)
            if m < 10:
                dt = m - 2
                p(f"ds_read_b64_tr_b16 {ar(FB(m)+2*e,2)}, v{vVa} offset:{slot*SLOT+e*256+(dt>>1)*64+(dt&1)*8}")
            else:
                k = m - 10
                p(f"ds_read_b128 {ar(FB(m),4)}, v{[vKa0,vKa1][k>>2]} offset:{slot*SLOT+64*(k&3)}")
            tok[m] = lg.issue()
        dm = []
        if dma:
            for o in kv_ops(True, nm + 1) + (kv_ops(False, nm + 3) if dma != 'k' else []):
                l = o.replace("s_nop 0\n", "").split("\n"); dm += [l[0], "\n".join(l[1:])]
        for m in ((2, 3) if pv else (10, 11)):
            for e in range(2 if pv else 1): rd(m, e)
        for x, (m, t) in enumerate(POS):
            if m in ms:
                if m == 'L': p(m16(vr(LL + 4 * t, 4), vr(ONE, 4), vr(Sn + 8 * t, 4), '0' if zc else None))
                else:
                    if t == 0: lg.wait(tok[m])
                    if m < 2: p(m16(vr(Sn1 + 8 * t + 4, 4), ar(FB(m), 4), vr(QR + 16 * t + 4 * (2 + m), 4)))
                    elif m < 10: p(m16(ar(oacc(m - 2, t), 4), ar(FB(m), 4), vr(Sn + 8 * t, 4), '0' if zc else None))
                    else:
                        k = m - 10
                        p(m16(vr(Sn + 8 * t + 4 * (k >> 2), 4), ar(FB(m), 4), vr(QR + 16 * t + 4 * (k & 3), 4), vr(NM + 4 * t, 4) if k & 3 == 0 else None))
            b = Sn1 if x > XC else Sn; on = smh if x > XC else smt
            for o in tmpl[x] + pins[x]:
                if o == 'CHECK':
                    if first: call(p, "S_first")
                    elif smh:
                        p(f"v_cmp_lt_f32 vcc, 0x41000000, v{TT}\ns_cbranch_vccnz L_rr{tag}")
                        p(f"L_rb{tag}:")
                        side(f"L_rr{tag}:"); call(side, f"S_rare{(nm+1)&1}"); side(f"s_branch L_rb{tag}")
                elif o == 'PT2':
                    if smh and not first:
                        p(f"s_cbranch_vccnz L_p2{tag}")
                        p(f"L_pb{tag}:")
                        side(f"L_p2{tag}:"); call(side, "S_scale"); side(f"s_branch L_pb{tag}")
                elif o[0] == 'RD': rd(o[1], o[2])
                elif o[0] == 'EX':
                    if on: p(f"v_exp_f32 v{b+o[1]}, v{b+o[1]}")
                elif o[0] == 'CV':
                    i = o[1]
                    if on: p(f"v_cvt_pk_bf16_f32 v{b+8*(i>>2)+(i&3)}, v{b+2*i}, v{b+2*i+1}")
                elif o[0] == 'MX':
                    if smh and not first: p(f"v_max3_f32 v{o[1]}, " + ", ".join(([f"v{o[1]}"] if o[2] else []) + [f"v{Sn1+r}" for r in o[3]]))
                elif o[0] == 'MF':
                    if smh and not first: p(f"v_max_f32 v{TT}, v{TT}, v{TT+1}")
                elif o[0] == 'DM':
                    if o[1] < len(dm): p(dm[o[1]])
            if x in sites: site(sites[x])
        if bar: p(f"s_waitcnt {endw} lgkmcnt(0)")
    def xl(op, a, b):
        return (f"v_mov_b32 v{b}, v{a}\nv_permlane16_swap_b32 v{a}, v{b}\n{op} v{a}, v{a}, v{b}\n"
                f"v_mov_b32 v{b}, v{a}\nv_permlane32_swap_b32 v{a}, v{b}\n{op} v{a}, v{a}, v{b}")
    def shiftsub(name, n, first):
        q(f"{name}:")
        for t in range(5):
            b = n + 8 * t
            q(f"v_max3_f32 v{TT}, v{b}, v{b+1}, v{b+2}\nv_max3_f32 v{TT}, v{TT}, v{b+3}, v{b+4}\nv_max3_f32 v{TT}, v{TT}, v{b+5}, v{b+6}\nv_max_f32 v{TT}, v{TT}, v{b+7}")
            q(xl("v_max_f32", TT, TT + 1))
            if not first: q(f"v_max_f32 v{TT}, 0, v{TT}\nv_exp_f32 v{FACS[t]}, -v{TT}")
            for r in range(8): q(f"v_sub_f32 v{b+r}, v{b+r}, v{TT}")
            for r in range(4): q(f"v_sub_f32 v{NM+4*t+r}, v{NM+4*t+r}, v{TT}")
        ret(q, name)
    shiftsub("S_rare0", SS[0], False); shiftsub("S_rare1", SS[1], False); shiftsub("S_first", SS[0], True)
    q("S_scale:")
    for dt in range(8):
        for t in range(5):
            a = oacc(dt, t)
            for r in range(4): q(f"v_accvgpr_read_b32 v{TT+4+r}, a{a+r}")
            for r in (0, 2): q(f"v_pk_mul_f32 {vr(TT+4+r,2)}, {vr(TT+4+r,2)}, {vr(FACS[t],2)} op_sel_hi:[1,0]")
            for r in range(4): q(f"v_accvgpr_write_b32 a{a+r}, v{TT+4+r}")
    for t in range(5):
        for r in (0, 2): q(f"v_pk_mul_f32 {vr(LL+4*t+r,2)}, {vr(LL+4*t+r,2)}, {vr(FACS[t],2)} op_sel_hi:[1,0]")
    ret(q, "S_scale")
    stamp(p, 1, 3)
    abody("m2", 2, held=False, pv=False, smt=False, smh=False, dma=False, endw="vmcnt(20)"); p("s_barrier")
    abody("m1", 3, pv=False, smt=False, first=True, dma='k', endw="vmcnt(12)"); p("s_barrier")
    abody("z0", 0, zc=True); p(f"s_mov_b32 s{sIt}, 0\ns_barrier"); stamp(p, 2, 3)
    for nm in (1, 2, 3, 0):
        abody(f"l{nm}", nm)
        if nm == 0: p(f"s_add_u32 s{sIt}, s{sIt}, 1\ns_cmp_lt_u32 s{sIt}, 3")
        p("s_barrier")
    p("s_cbranch_scc1 L_A_l1")
    stamp(p, 3, 3)
    abody("e13", 1, dma=False, endw="vmcnt(0)"); p("s_barrier")
    stamp(p, 4, 3)
    abody("e14", 2, qk=False, dma=False, bar=False, sites={1: 0, 20: 1, 40: 2, 65: 3})
    abody("e15", 3, held=False, qk=False, dma=False, smh=False, bar=False, sites={12: 4, 35: 5})
    stamp(p, 5, 3)
    for t in range(5):
        p(f"v_rcp_f32 v{FACS[t]}, v{LL+4*t}")
    for J in range(4):
        if J < 3: site(6 + J)
        for t in range(5):
            tm = SS[0] + 8 * ((J * 5 + t) & 3)
            for h in range(2):
                for r in range(4): p(f"v_accvgpr_read_b32 v{tm+4*h+r}, a{oacc(2*J+h,t)+r}")
            for r in range(0, 8, 2): p(f"v_pk_mul_f32 {vr(tm+r,2)}, {vr(tm+r,2)}, {vr(FACS[t],2)} op_sel_hi:[1,0]")
            for r in range(4): p(f"v_cvt_pk_bf16_f32 v{QR+16*t+4*J+r}, v{tm+2*r}, v{tm+2*r+1}")
    stamp_r(p, 3, 6, "e"); stamp(p, 6, 3); stamp(p, 7, 3)
    p(f"s_cmp_eq_u32 s{sRnd}, 1\ns_cbranch_scc1 L_T")
    p(f"s_mov_b32 s{sRnd}, 1\ns_cmp_eq_u32 s{sZ}, 1\ns_cbranch_scc1 L_zswap")
    p(kvadv)
    p("L_zsave:")
    for r in range(80): p(f"v_accvgpr_write_b32 a{aSV+r}, v{QR+r}")
    p(f"s_cmp_eq_u32 s{sZ}, 1\ns_cbranch_scc1 L_zswap2\ns_lshr_b32 s{sZ}, s{sZ}, 1\ns_branch L_round")
    p("L_zswap:")
    p("s_waitcnt vmcnt(20)\ns_barrier")
    for o in kv_ops(False, 2): p(o)
    for r in range(80): p(f"v_accvgpr_read_b32 v{80+r}, a{aSV+r}")
    p("s_branch L_zsave")
    p("L_zswap2:")
    for r in range(0, 80, 2): p(f"v_mov_b64 {vr(QR+r,2)}, {vr(80+r,2)}")
    for r in range(0, 20, 2): p(f"v_mov_b64 {vr(NM+r,2)}, 0")
    p(f"s_mov_b32 s{sZ}, 0\ns_branch L_A_m2")

    q("S_odmb:")
    for o in oops(vWoB): q(o)
    ret(q, "S_odmb")
    SLP = opts.get('slp', 4)
    q("S_spin:")
    q(f"buffer_load_dword v{vPol}, v{vZ}, {srd(sFL)}, s{sFo} offen sc1\ns_waitcnt vmcnt(0)")
    q("S_spinc:")
    q(f"v_readfirstlane_b32 s{sT}, v{vPol}\ns_cmp_eq_u32 s{sT}, 8\ns_cbranch_scc1 L_spr\ns_sleep {SLP}\ns_branch S_spin")
    q("L_spr:"); ret(q, "S_spin|S_spinc")
    q("S_post:")
    q(f"s_cmp_lg_u32 s{sWave}, 0\ns_cbranch_scc1 L_pr\nv_mov_b32 v{t0}, 1\ns_mov_b64 exec, 1")
    q(f"buffer_atomic_add v{t0}, v{vZ}, {srd(sFL)}, s{sT2} offen sc1\ns_mov_b64 exec, -1")
    q("L_pr:"); ret(q, "S_post")
    def ld_op(li):
        sg = li >> 1; h = li & 1
        return f"s_add_u32 s{sT}, s{sPc}, {sg*4096+h*4*SLAB}\nbuffer_load_dwordx4 {vr(RB+4*li,4)}, v{vOs2}, {srd(sPA)}, s{sT} offen sc1"
    LSET = [range(0, 4), range(4, 8), range(8, 10)]
    def red_ops(k):
        d = RD + 4 * k
        o = [m16(vr(d, 4), vr(SEL + 4 * ((li >> 1) & 1), 4), vr(RB + 4 * li, 4), '0' if li % 4 == 0 else None) for li in LSET[k]]
        o2 = [f"v_cvt_pk_bf16_f32 v{d}, v{d}, v{d+1}", f"v_cvt_pk_bf16_f32 v{d+1}, v{d+2}, v{d+3}",
              ("VM", f"s_add_u32 s{sT2}, s{sPd}, {k*32*1280}\nbuffer_store_dwordx2 {vr(d,2)}, v{vOo3 if k == 2 else vOo2}, {srd(sOUT)}, s{sT2} offen", None)]
        return o, o2
    q("S_ld:")
    for li in range(10): q(ld_op(li))
    q("s_waitcnt vmcnt(0)")
    q("S_reda:")
    for o in red_ops(0)[0]: q(o)
    q("S_redb:")
    for k in (1, 2):
        for o in red_ops(k)[0]: q(o)
    for k in range(3):
        for o in red_ops(k)[1]: q(o if isinstance(o, str) else o[1])
    ret(q, "S_ld|S_reda|S_redb")
    def reduce_group(g):
        p(f"s_mov_b32 s{sPc}, {g*40960}\ns_movk_i32 s{sPd}, {g*256}"); call(p, "S_ld")

    p("L_T:")
    stamp(p, 1, 2)
    p("s_waitcnt vmcnt(16)")
    p(f"s_mov_b32 s{sT}, {EXA[0]}\ns_mul_i32 s{sT2}, s{sWave}, 20480\ns_add_u32 s{sT2}, s{sT2}, {V1-20480}\ns_cmp_eq_u32 s{sWave}, 0\ns_cselect_b32 s{sT2}, s{sT}, s{sT2}")
    p(f"v_add_u32 v{vR0}, s{sT2}, v{vLin}")
    p(f"s_xor_b32 s{sT3}, s{sWave}, 2\ns_mul_i32 s{sT2}, s{sT3}, 20480\ns_add_u32 s{sT2}, s{sT2}, {V1-20480}\ns_cmp_eq_u32 s{sT3}, 0\ns_cselect_b32 s{sT2}, s{sT}, s{sT2}")
    p(f"v_add_u32 v{vR1}, s{sT2}, v{vLin}")
    p(f"s_lshl_b32 s{sT}, s{sB}, 3\nv_mov_b32 v{t0}, s{sT}")
    p("L_isp:")
    p(f"buffer_load_dword v{vPol}, v{t0}, {srd(sDBG)}, 0 offen sc1")
    p("s_barrier")
    for step in range(2):
        for i in range(20):
            p(f"ds_write_b128 v{vR0}, {ar(aSV+4*i,4) if step == 0 else vr(QR+4*i,4)} offset:{1024*i}")
            if i % 10 == 9: p("s_waitcnt lgkmcnt(0)")
        p("s_barrier")
        for i in range(20):
            p(f"ds_read_b128 {ar(80*step+4*i,4)}, v{vR1} offset:{1024*i}")
            if i % 10 == 9: p("s_waitcnt lgkmcnt(0)")
        if step == 1:
            p("s_waitcnt vmcnt(0)")
            p("L_ick:")
            p(f"v_readfirstlane_b32 s{sT}, v{vPol}\ns_cmp_eq_u32 s{sT}, 1\ns_cbranch_scc1 L_iok")
            p(f"s_sleep 8\nbuffer_load_dword v{vPol}, v{t0}, {srd(sDBG)}, 0 offen sc1\ns_waitcnt vmcnt(0)\ns_branch L_ick")
            p("L_iok:")
        p("s_barrier")
    REG = [K0, K1, V0, V1]; TBr = [vR0, vR1, vR2, vR3]
    p(f"s_lshl_b32 s{sT}, s{sPi}, 7\nv_add_u32 v{vR0}, s{sT}, v{vTl}\nv_add_u32 v{vR1}, {K1}, v{vR0}\nv_add_u32 v{vR2}, {V0}, v{vR0}\nv_add_u32 v{vR3}, {V1}, v{vR0}")
    p(f"s_add_u32 s{sPa}, s{sHS}, {V0}\ns_mov_b32 s{sPb}, s{sGB}"); call(p, "S_odmb")
    p(f"v_mov_b32 v{vSt2}, {OOB}\nv_mov_b32 v{vOs2}, {OOB}\nv_mov_b32 v{vOo2}, {OOB}\nv_mov_b32 v{vOo3}, {OOB}")
    p(f"s_mov_b32 s{sIt}, 0\ns_mov_b32 s{sSt}, 0\ns_mov_b32 s{sPc}, 0\ns_mov_b32 s{sPd}, 0\ns_mov_b32 s{sFo}, 0\ns_mov_b32 s{sCol}, s{sGB}\ns_mov_b32 s{sRa}, s{sHS}")
    Bop = lambda qd, t, ts: [ar(aSV + 16 * t + 4 * ts, 4), vr(QR + 16 * t + 4 * ts, 4), ar(16 * t + 4 * ts, 4), ar(80 + 16 * t + 4 * ts, 4)][qd]
    tacc = lambda Jp, t, h: TA + 40 * Jp + 8 * t + 4 * h
    def st_ops(Jp, vo, back):
        o = []
        for t in range(5):
            tm = TMP + 4 * (t & 1); a = tacc(Jp, t, 0)
            o += [f"v_cvt_pk_bf16_f32 v{tm+i}, v{a+2*i}, v{a+2*i+1}" for i in range(4)]
            o.append(("VM", f"s_add_u32 s{sT3}, s{sSt}, {t*4096}\nbuffer_store_dwordx4 {vr(tm,4)}, v{vo}, {srd(sPO)}, s{sT3} offen offset:{1024*Jp} sc1", 'ps'))
        return o
    vm = Q(p, "vmcnt", 63); T = {}
    def tmf(qd, f, m):
        Jp = f >> 3; ts = (f >> 1) & 3; h = f & 1
        return [m16(vr(tacc(Jp, t, h), 4), ar(FB(m), 4), Bop(qd, t, ts), '0' if qd == 0 and ts == 0 else None) for t in range(5)]
    LAG = opts.get('lag', 2); PQ = opts.get('pq', 2)
    def period():
        for qd in range(4):
            D = (qd + 3) & 3
            if qd == 0:
                p(f"buffer_load_dword v{vPol}, v{vZ}, {srd(sFL)}, s{sFo} offen sc1"); T['poll'] = vm.issue()
            if qd == 1:
                p(f"s_add_u32 s{sCol}, s{sCol}, 256\ns_cmp_ge_u32 s{sIt}, {LAG}\ns_cbranch_scc1 L_T_ck")
                p("L_T_ckb:")
                T['pollw'] = vm.n - T['poll']
            if qd == PQ:
                p(f"s_lshl_b32 s{sT2}, s{sIt}, 7\ns_sub_u32 s{sT2}, s{sT2}, 128\ns_cbranch_scc1 L_T_np"); call(p, "S_post"); p("L_T_np:")
            if qd == 3:
                p(f"s_lshl_b32 s{sPd}, s{sIt}, 8\ns_sub_u32 s{sPd}, s{sPd}, {256*LAG}\ns_cselect_b32 s{sPd}, 0, s{sPd}\ns_cbranch_scc1 L_T_no\nv_mov_b32 v{vOo2}, v{vOfo}\nv_mov_b32 v{vOo3}, v{vOf3}")
                p("L_T_no:")
            p(f"s_add_u32 s{sPa}, s{sRa}, {REG[D]}\ns_add_u32 s{sPb}, s{sCol}, {(D&1)*256*1280}\ns_add_u32 s{sRb}, s{sPb}, {8*1280}")
            vmo = []
            lds_ = list(LSET[qd - 1]) if qd >= 1 else []
            for i in range(8):
                im = (i >> 1) * 1280
                vmo.append(("VM", f"s_add_u32 m0, s{sPa}, {i*PCS-im}\nbuffer_load_dwordx4 v{vWoA if D < 2 else vWoB}, {srd(sWO)}, s{sRb if i & 1 else sPb} offen offset:{im} lds", ('d', D)))
                if i % 2 and lds_: vmo.append(("VM", ld_op(lds_.pop(0)), ('l', qd - 1)))
            if WQ == 3:
                vmo.append(("VM", f"s_add_u32 s{sT}, s{sRc}, {qd*128*1280}\nbuffer_load_dwordx4 {vr(212,4)}, v{vWarm}, {srd(sWO)}, s{sT} offen", None))
                if qd == 0: p(f"s_add_u32 s{sRc}, s{sIt}, 2\ns_min_u32 s{sRc}, s{sRc}, 4\ns_lshl_b32 s{sRc}, s{sRc}, 8")
            streams = []
            if qd == 0: streams.append((split(st_ops(1, vSt2, True) + [f"v_mov_b32 v{vSt2}, v{vSt}\ns_mul_i32 s{sSt}, s{sIt}, 40960"]), list(range(13, 49))))
            if qd == 3: streams.append((split(st_ops(0, vSt, False)), list(range(53, 80))))
            streams.append((split(vmo), list(range(0, 78))))
            rk = (qd + 1) & 3
            if rk < 3: streams.append(([(("W", ('l', rk)), 1)] + [(o, 1) for o in red_ops(rk)[0]], list(range(30, 50))))
            else: streams.append((split([o for k in range(3) for o in red_ops(k)[1]]), list(range(0, 78))))
            def rdtxt(m, e):
                f = m - 2; Jp = f >> 3; ts = (f >> 1) & 3; h = f & 1
                return f"ds_read_b64_tr_b16 {ar(FB(m)+2*e,2)}, v{TBr[qd]} offset:{ts*SLOT+e*256+Jp*64+h*8}"
            gunit(rdtxt, lambda m, t: (tmf(qd, m - 2, m) if m >= 2 else tmf((qd - 1) & 3, 14 + m, m))[t], streams, vm, T)
            need = T.get(('d', (qd + 1) & 3), 0)
            if qd == PQ - 1: need = max(need, T['ps'])
            if qd == 1: need = max(need, T['poll'])
            vm.wait(need)
            if qd == 3: p(f"s_add_u32 s{sIt}, s{sIt}, 1\ns_cmp_lt_u32 s{sIt}, 5")
            p("s_waitcnt lgkmcnt(0)\ns_barrier")
    mark = len(p.ins)
    period()
    del p.ins[mark:]
    p("L_T_loop:")
    stamp_it(p, 2, "t", [(0, 2), (1, 3), (2, 4), (3, 5), (4, 6)])
    period()
    p("s_cbranch_scc1 L_T_loop")
    side("L_T_ck:")
    side(f"s_waitcnt vmcnt({min(63, T['pollw'])})"); call(side, "S_spinc")
    side(f"s_sub_u32 s{sPc}, s{sIt}, {LAG}\ns_mul_i32 s{sPc}, s{sPc}, 40960\ns_add_u32 s{sFo}, s{sFo}, 128\nv_mov_b32 v{vOs2}, v{vOfs}")
    side(f"s_cmp_lg_u32 s{sIt}, 4\ns_cbranch_scc1 L_T_ckb")
    side(f"v_mov_b32 v{vWoA}, {OOB}\nv_mov_b32 v{vWoB}, {OOB}\ns_mov_b32 s{sRa}, 0x28000\ns_branch L_T_ckb")
    for m in range(2):
        for o in tmf(3, 14 + m, m): p(o)
    p(f"s_movk_i32 s{sFo}, 384\nbuffer_load_dword v{vPol}, v{vZ}, {srd(sFL)}, s{sFo} offen sc1")
    for o in st_ops(1, vSt, True): p(o if isinstance(o, str) else o[1])
    stamp(p, 7); stamp(p, 7, 2)
    p("s_waitcnt vmcnt(5)"); call(p, "S_redb")
    rest = list(range(5 - LAG, 4))
    p("s_waitcnt vmcnt(3)\ns_barrier")
    p(f"s_movk_i32 s{sT2}, 512"); call(p, "S_post")
    call(p, "S_spinc")
    for i, g in enumerate(rest[1:]):
        p(f"s_mov_b32 s{sPc}, {g*40960}")
        for li in range(10): p(ld_op(li).replace(vr(RB + 4 * li, 4), vr(40 * i + 4 * li, 4)))
    reduce_group(rest[0])
    for i, g in enumerate(rest[1:]):
        for r in range(0, 40, 2): p(f"v_mov_b64 {vr(RB+r,2)}, {vr(40*i+r,2)}")
        p(f"s_movk_i32 s{sPd}, {g*256}"); call(p, "S_reda")
    p(f"s_movk_i32 s{sFo}, 512"); call(p, "S_spin")
    reduce_group(4)
    if PROF:
        p("s_waitcnt vmcnt(0)\ns_mov_b32 s96, s65")
        stamp(p, 9)
        p("s_memrealtime s[100:101]\ns_waitcnt lgkmcnt(0)")
        if opts.get('dbg'):
            p(f"s_lshl_b32 s{sT}, s2, 3\ns_add_u32 s{sT}, s{sT}, s{sWave}\ns_cmp_lg_u32 s{sT}, {8*opts['dbg']+1}\ns_cbranch_scc1 L_exit")
            for i, k in enumerate((1, 2, 3, 4, 5, 6, 7, 9)):
                p(f"s_sub_u32 s{sT}, s{80+2*k}, s80\nv_mov_b32 v1, s{sT}\nbuffer_store_dword v1, v{vZ}, {srd(sDBG)}, 0 offen offset:{8*i+4}")
            p("s_endpgm")
        p(f"s_lshl_b32 s{sT}, s2, 3\ns_add_u32 s{sT}, s{sT}, s{sWave}\ns_lshl_b32 s{sT}, s{sT}, 6")
        p(f"s_add_u32 s4, s66, 0x4000000\ns_addc_u32 s5, s67, 0\ns_mov_b32 s6, 0x100000\ns_mov_b32 s7, 0x20000\nv_mov_b32 v0, s{sT}")
        for i in range(11):
            p(f"v_mov_b32 v1, s{80+2*i}\nbuffer_store_dword v1, v0, s[4:7], 0 offen offset:{4*i}\nbuffer_store_dword v1, v0, s[4:7], 0 offen offset:{256+4*i}")
    p("L_exit:")
    p("s_endpgm")
    if opts.get('nodma'): p.ins = [x for x in p.ins if not (x.kind == 'dma' and (srd(sK) in x.text or srd(sV) in x.text))]
    if opts.get('bprof'):
        a, b = {1: ('L_Q_loop', 'L_A_m2'), 2: ('L_T_loop', 'L_exit'), 3: ('L_A_l1', 'L_A_e13')}[opts['bprof']]
        new = []; on = False; k = 0
        def wrap(x, acc):
            for t in ["s_cselect_b32 s99, 1, 0", "s_memtime s[78:79]".replace("78:79", "2:3") if False else "s_memtime s[100:101]", "s_waitcnt lgkmcnt(0)", f"s_sub_u32 s{acc}, s{acc}, s100"]: new.append(Ins(t))
            new.append(x)
            for t in ["s_memtime s[100:101]", "s_waitcnt lgkmcnt(0)", f"s_add_u32 s{acc}, s{acc}, s100", "s_cmp_lg_u32 s99, 0"]: new.append(Ins(t))
        for x in p.ins:
            if x.label == b or (on and x.text.startswith('s_cbranch_scc1 L_T_loop')): on = False
            if on and x.op == 's_barrier': wrap(x, 82)
            elif on and x.op == 's_waitcnt' and 'vmcnt' in x.text:
                wrap(x, 84 + 2 * min(k, 5)); print("site", min(k, 5), x.text, file=sys.stderr); k += 1
            else: new.append(x)
            if x.label == a: on = True
        p.ins = new
    p.ins += q.ins + side.ins
    n = p.fix_hazards(verbose=opts.get('verbose', False))
    print("hazard nops inserted:", n, "instrs:", len(p.ins), file=sys.stderr)
    hdr = open('standalone__mha_block_cached__near_ridge.s.ref').read().split('\n')
    hdr = [l for l in hdr if l.startswith(';') and '@launch' not in l and not l.startswith('; Override') and not l.startswith('; grid=ceil')]
    out = "\n".join(hdr) + "\n"
    out += f"; @launch grid=(256,1,1) block=(256,1,1) lds={LDS_BYTES}\n"
    out += '.amdgcn_target "amdgcn-amd-amdhsa--gfx950"\n.text\n'
    out += f".globl {KN}\n.p2align 8\n.type {KN},@function\n" + p.text()
    out += f""".section .rodata,"a"
.p2align 6
.amdhsa_kernel {KN}
  .amdhsa_next_free_vgpr 512
  .amdhsa_next_free_sgpr {102 if PROF else 80}
  .amdhsa_accum_offset 256
  .amdhsa_group_segment_fixed_size 0
  .amdhsa_kernarg_size 64
  .amdhsa_user_sgpr_count 2
  .amdhsa_user_sgpr_kernarg_segment_ptr 1
  .amdhsa_system_sgpr_workgroup_id_x 1
.end_amdhsa_kernel
"""
    return out

if __name__ == "__main__":
    opts = {}
    for a in sys.argv[2:]:
        k, v = a.split('='); opts[k] = int(v)
    open(sys.argv[1], 'w').write(gen(opts))
```

```python
import sys, math, struct
sys.path.insert(0, 'dev')
from asmlib import Prog, Q, Ins

KN = "standalone__mha_block_cached__near_ridge_kernel"
SLOT = 8448; PCS = 1056
K0 = 0; V0 = 4 * SLOT; K1 = 8 * SLOT; V1 = 12 * SLOT; XR = 14 * SLOT; DUMS = 16 * SLOT
EXA = [V0, V1, V1 + 20480, V1 + 40960]
LDS_BYTES = 163840 - 1024
SLAB = 204800; FLG = 256 * SLAB

QR = 0; SS = [80, 120]; NM = 160; LL = 180; ONE = 200; FACS = [218, 220, 246, 248, 250]; TT = 232; WD = 252
XB = 0; XT = 80
TA = 80; RB = 160; RD = 200; SEL = 224; TMP = 232; vOo3 = 222; vOf3 = 223
aACC = 0; aSV = 160; aF = 240
(vLin, vKa0, vKa1, vVa, vDk, vDv, vXd, vWd, vXa0, vXa1, tA, tB, tC, vTl) = range(204, 218)
vOfs, vOfo, vWarm, vWoA, vWoB, vSt, vSt2, vOs2, vOo2, vZ, vPol, t0, vR0, vR1, vR2, vR3 = range(240, 256)

sK, sV, sWQ, sWO, sX, sPO, sPA, sOUT, sDBG, sFL = 4, 8, 12, 16, 20, 24, 60, 72, 76, 68
sWave, sB, sHG, sIt, sMK, sMV, sRnd, sR0, sCur, sHS, sGB = 28, 29, 30, 31, 32, 33, 34, 35, 36, 37, 38
sT, sC, sBL, sPi, sPa, sT2, sT3, sPb, sCol = 39, 40, 41, 42, 43, 44, 45, 46, 47
sRa, sRb, sRet, sRc, sXl, sXg, sPc, sPd, sMsk, sSt, sFo = 48, 49, 50, 52, 53, 54, 55, 56, 57, 58, 59
sDry = 64
sZ, sMK2, sMV2 = 3, 64, 47
OOB = 0x7ff00000

SCALE = math.log2(math.e) / math.sqrt(128.0)
def f2u(x): return struct.unpack('<I', struct.pack('<f', x))[0]
def vr(b, n): return f"v[{b}:{b+n-1}]"
def ar(b, n): return f"a[{b}:{b+n-1}]"
def srd(b): return f"s[{b}:{b+3}]"
def m16(d, a, b, c=None): return f"v_mfma_f32_16x16x32_bf16 {d}, {a}, {b}, {d if c is None else c}"
def mksrd(p, s, lo, off, size):
    p(f"s_add_u32 s{s}, s{lo}, {off}\ns_addc_u32 s{s+1}, s{lo+1}, 0\ns_mov_b32 s{s+2}, {size}\ns_mov_b32 s{s+3}, 0x20000")
def call(p, name): p(f"s_call_b64 s[{sRet}:{sRet+1}], {name}")
def ret(p, name): p(f"s_setpc_b64 s[{sRet}:{sRet+1}] ; ret={name}")
def spread(seq, gaps):
    tot = sum(c for _, c in seq); out = {}; acc = 0
    for it, c in seq:
        g = gaps[min(int((acc + c * 0.5) * len(gaps) / tot), len(gaps) - 1)]
        out.setdefault(g, []).append(it); acc += c
    return out
class Gaps:
    def __init__(self, n=80): self.n = n; self.items = [[] for _ in range(n)]; self.load = [0.0] * n
    def pin(self, g, it, c=1): self.items[g].append(it); self.load[g] += c
    def reserve(self, g, c=1): self.load[g] += c
    def stream(self, seq, gaps):
        tot = sum(c for _, c in seq)
        lo, hi = 0.0, 50.0
        for _ in range(40):
            mid = (lo + hi) / 2
            if sum(max(0.0, mid - self.load[g]) for g in gaps) >= tot: hi = mid
            else: lo = mid
        room = [max(0.0, hi - self.load[g]) for g in gaps]
        cum = 0.0; edges = []
        for r in room: cum += r; edges.append(cum)
        acc = 0.0; k = 0
        for it, c in seq:
            pos = acc + c * 0.5
            while k < len(gaps) - 1 and edges[k] < pos: k += 1
            self.pin(gaps[k], it, c); acc += c
def greedy(order, cap, streams):
    out = {g: [] for g in order}; ptr = [0] * len(streams); where = {}
    for pos, g in enumerate(order):
        room = cap[g]
        while True:
            best = None
            for si, st in enumerate(streams):
                k = ptr[si]
                if k >= len(st['items']) or pos < st['lo']: continue
                it, c, dep = st['items'][k]
                if dep is not None and where.get(dep, 10**9) >= pos and pos < st['hi']: continue
                lag = (pos + 1 - st['lo']) / (st['hi'] + 1 - st['lo']) - k / len(st['items'])
                late = lag * len(st['items'])
                if c > room and late < 1.5 and pos < st['hi']: continue
                if late < -1.0: continue
                if best is None or late > best[0]: best = (late, si)
            if best is None: break
            si = best[1]; it, c, dep = streams[si]['items'][ptr[si]]
            out[g].append(it); where[(si, ptr[si])] = pos; ptr[si] += 1; room -= c
    assert all(ptr[i] == len(st['items']) for i, st in enumerate(streams)), ptr
    return out
def split(ops, tag=None):
    out = []
    for o in ops:
        tg = tag
        if isinstance(o, tuple): tg = o[2]; o = o[1]
        for l in o.split("\n"):
            if l == "s_nop 0": continue
            out.append((("VM", l, tg), 1.5) if l.startswith("buffer_") else (l, 1))
    return out
FB = lambda m: aF + 4 * (m & 3)
oacc = lambda dt, t: aACC + 4 * (dt * 5 + t)

def gen(opts):
    p = Prog(); side = Prog(); q = Prog()
    PROF = opts.get('prof', 0)
    PST = opts.get('pst', 0)
    def stamp_it(pp, mode, tag, vals):
        if PROF and PST == mode:
            pp("s_cselect_b32 s99, 1, 0")
            for v, i in vals:
                pp(f"s_cmp_lg_u32 s{sIt}, {v}\ns_cbranch_scc1 L_si{tag}{v}"); stamp(pp, i, mode); pp(f"L_si{tag}{v}:")
            pp("s_cmp_lg_u32 s99, 0")
    def stamp(pp, i, mode=0):
        if PROF and (PST == mode or i in (0, 9)):
            pp(f"{'s_memrealtime' if opts.get('rt') else 's_memtime'} s[{80+2*i}:{81+2*i}]\ns_waitcnt lgkmcnt(0)")
    def stamp_r(pp, i0, i1, tag):
        if PROF and PST == 0:
            pp(f"s_cmp_eq_u32 s{sRnd}, 0\ns_cbranch_scc0 L_st{tag}a"); stamp(pp, i0); pp(f"s_branch L_st{tag}b\nL_st{tag}a:"); stamp(pp, i1); pp(f"L_st{tag}b:")
    p(f"{KN}:")
    p("s_cmp_ge_u32 s2, 256\ns_cbranch_scc1 L_exit")
    p("s_load_dwordx8 s[56:63], s[0:1], 0\ns_load_dwordx8 s[64:71], s[0:1], 32")
    if PROF:
        for i in range(10): p(f"s_mov_b32 s{80+2*i}, 0")
        p("s_memrealtime s[100:101]")
    stamp(p, 0)
    p(f"v_lshrrev_b32 v1, 6, v0\nv_and_b32 v0, 63, v0\nv_lshlrev_b32 v{vLin}, 4, v0")
    p(f"v_readfirstlane_b32 s{sWave}, v1")
    p(f"s_bfe_u32 s{sB}, s2, 0x20001\ns_lshl_b32 s{sB}, s{sB}, 3\ns_lshr_b32 s{sBL}, s2, 5\ns_add_u32 s{sB}, s{sB}, s{sBL}")
    p(f"s_and_b32 s{sHG}, s2, 1\ns_lshl_b32 s{sHG}, s{sHG}, 2\ns_bfe_u32 s{sT3}, s2, 0x20003\ns_add_u32 s{sHG}, s{sHG}, s{sT3}")
    p(f"s_add_u32 s{sT3}, s{sT3}, s{sBL}")
    p(f"s_mul_i32 s{sT2}, s{sT3}, 205\ns_lshr_b32 s{sT2}, s{sT2}, 10\ns_mul_i32 s{sT2}, s{sT2}, 5\ns_sub_u32 s{sR0}, s{sT3}, s{sT2}")
    p(f"s_lshr_b32 s{sPi}, s{sWave}, 1")
    p(f"v_lshrrev_b32 v1, 4, v0\nv_and_b32 v2, 0xf0, v{vLin}\nv_and_b32 v3, 1, v1\nv_lshrrev_b32 v5, 1, v1")
    p(f"v_lshl_add_u32 v4, v3, 1, v5\nv_mul_u32_u24 v{vXd}, {8*1280}, v4\nv_lshlrev_b32 v4, 4, v3\nv_xor_b32 v4, v4, v2\nv_add_u32 v{vXd}, v{vXd}, v4")
    p(f"v_lshl_add_u32 v4, v5, 2, v3\nv_lshl_add_u32 v{vWd}, v4, 15, v2")
    p(f"s_mul_i32 s{sXl}, s{sWave}, {2*PCS}\ns_mul_i32 s{sXg}, s{sWave}, 1280")
    p(f"s_mul_i32 s{sHS}, s{sWave}, {SLOT}")
    p(f"s_and_b32 s{sT}, s{sWave}, 1\ns_lshl_b32 s{sGB}, s{sT}, 18\ns_lshl_b32 s{sT}, s{sPi}, 8\ns_add_u32 s{sGB}, s{sGB}, s{sT}")
    p(f"s_mul_i32 s{sT2}, s{sB}, 204800\ns_lshl_b32 s{sT3}, s{sHG}, 10\ns_sub_u32 s{sIt}, 5242880, s{sT3}\ns_mov_b32 s{sRnd}, 0")
    ZM = 0
    p({0: f"s_mov_b32 s{sZ}, 0", 1: f"s_and_b32 s{sZ}, s{sHG}, 1", 2: f"s_and_b32 s{sZ}, s{sBL}, 1", 3: f"s_mov_b32 s{sZ}, 1"}[ZM])
    p(f"s_lshl_b32 s{sZ}, s{sZ}, 1\ns_lshl_b32 s{sT}, s{sZ}, 8\ns_add_u32 s{sGB}, s{sGB}, s{sT}")
    p("s_waitcnt lgkmcnt(0)")
    stamp(p, 1, 4)
    mksrd(p, sX, 56, f"s{sT2}", 204800)
    mksrd(p, sWQ, 62, f"s{sT3}", f"s{sIt}")
    call(p, "S_qpx")
    p("s_branch L_setup")
    def xops():
        o = []
        for t in range(5):
            for hh in range(2):
                o.append(f"s_add_u32 m0, s{sXl}, {XR+t*SLOT+hh*PCS}\ns_add_u32 s{sT}, s{sPc}, {(32*t+4*hh)*1280}\nbuffer_load_dwordx4 v{vXd}, {srd(sX)}, s{sT} offen lds")
        return o
    xpre = f"s_lshl_b32 s{sPc}, s{sCur}, 8\ns_add_u32 s{sPc}, s{sPc}, s{sXg}"
    def wops(pa=sPa, add=0):
        return [f"s_add_u32 m0, s{pa}, {pc*PCS}\ns_add_u32 s{sT}, s{sPb}, {(8*(pc&1)+(pc>>1))*8192+add}\nbuffer_load_dwordx4 v{vWd}, {srd(sWQ)}, s{sT} offen lds" for pc in range(8)]
    def wpre(reg, u):
        return f"s_add_u32 s{sPa}, s{sHS}, {reg}\ns_lshl_b32 s{sPb}, s{sCur}, 20\ns_add_u32 s{sPb}, s{sPb}, s{sGB}" + (f"\ns_add_u32 s{sPb}, s{sPb}, {64*8192}" if u else "")
    p("S_qpx:")
    p(f"s_mov_b32 s{sCur}, s{sR0}"); p(xpre)
    for o in xops(): p(o)
    p(wpre(K0, 0))
    for o in wops()[:opts.get('iw', 4)]: p(o)
    ret(p, "S_qpx")
    p("L_setup:")
    stamp(p, 2, 4)
    PR = 4 if opts.get('nat', 1) else 8
    if opts.get('nat', 1): p("v_lshl_add_u32 v4, v3, 1, v5\nv_lshlrev_b32 v4, 1, v4")
    p(f"v_mul_u32_u24 v{vWoA}, {4*1280}, v4\nv_add_u32 v{vWoA}, v{vWoA}, v2\nv_bfe_u32 v6, v0, 3, 1\nv_mul_u32_u24 v6, {128*1280}, v6")
    p(f"v_sub_u32 v{vWoB}, v{vWoA}, v6\nv_add_u32 v{vWoB}, {128*1280}, v{vWoB}\nv_add_u32 v{vWoA}, v{vWoA}, v6")
    p(f"v_mul_u32_u24 v{vWarm}, 1280, v1\nv_add_u32 v{vWarm}, v{vWarm}, v2")
    p(f"s_lshl_b32 s{sT}, s{sBL}, 2\ns_add_u32 s{sT}, s{sT}, s{sWave}\ns_mul_i32 s{sT}, s{sT}, {4*1280}\nv_add_u32 v{vWarm}, s{sT}, v{vWarm}")
    mksrd(p, sOUT, 66, f"s{sT2}", 204800)
    p(f"s_mov_b32 s{sDBG}, s68\ns_mov_b32 s{sDBG+1}, s69\ns_mov_b32 s{sDBG+2}, 256\ns_mov_b32 s{sDBG+3}, 0x20000")
    p("s_mov_b32 s66, s70\ns_mov_b32 s67, s71")
    p(f"s_lshl_b32 s{sT}, s{sB}, 3\ns_add_u32 s{sT}, s{sT}, s{sHG}\ns_lshl_b32 s{sT3}, s{sT}, 19\ns_lshl_b32 s{sPa}, s{sPi}, 17\ns_add_u32 s{sT3}, s{sT3}, s{sPa}")
    mksrd(p, sK, 58, f"s{sT3}", 131072); mksrd(p, sV, 60, f"s{sT3}", 131072)
    p(f"s_mul_i32 s{sT3}, s{sT}, {SLAB}"); mksrd(p, sPO, 66, f"s{sT3}", SLAB)
    p(f"s_lshl_b32 s{sT2}, s{sT2}, 3"); mksrd(p, sPA, 66, f"s{sT2}", 8 * SLAB)
    p(f"s_lshl_b32 s{sT2}, s{sB}, 10\ns_add_u32 s{sT2}, s{sT2}, {FLG}"); mksrd(p, sFL, 66, f"s{sT2}", 1024)
    p(f"s_mul_i32 s{sT2}, s{sHG}, {512*1280}"); mksrd(p, sWO, 64, f"s{sT2}", 512 * 1280)
    if PROF: p("s_mov_b32 s65, s100")
    p(f"s_mov_b32 s{sC}, {f2u(SCALE)}\ns_mov_b32 s{sMsk}, 0xffff0000")
    p(f"v_bfe_u32 v4, v0, 2, 2\nv_lshl_add_u32 v4, v4, 1, v3\nv_mul_u32_u24 v{vTl}, {PCS}, v4\nv_lshl_add_u32 v{vTl}, v5, 9, v{vTl}")
    NAT = opts.get('nat', 1); vTn = 219 if NAT else vTl
    p(f"v_and_b32 v4, 0x30, v{vLin}")
    if NAT: p(f"v_lshrrev_b32 v6, 1, v4\nv_add_u32 v{vTn}, v{vTl}, v6")
    p(f"v_add_u32 v{vTl}, v{vTl}, v4")
    HS = 32 if NAT else 8
    p(f"v_and_b32 v4, 3, v0\nv_bfe_u32 v6, v0, 2, 1\nv_lshl_add_u32 v4, v4, 1, v6\nv_mul_u32_u24 v7, {PCS}, v4\nv_bfe_u32 v6, v0, 3, 1\nv_lshl_add_u32 v7, v6, 9, v7")
    p(f"v_xor_b32 v6, 1, v1\nv_lshl_add_u32 v8, v6, 4, v7\nv_add_u32 v8, 256, v8\nv_lshl_add_u32 v7, v1, 4, v7")
    p(f"s_mul_i32 s{sMK}, s{sPi}, {K1}")
    p(f"v_add_u32 v{vKa0}, s{sMK}, v7\nv_add_u32 v{vKa1}, s{sMK}, v8\ns_add_u32 s{sMV}, s{sMK}, {V0}\nv_add_u32 v{vVa}, s{sMV}, v{vTn}")
    p(f"s_and_b32 s{sT}, s{sWave}, 1\ns_mul_i32 s{sT2}, s{sT}, {4*PCS}\ns_add_u32 s{sMK}, s{sMK}, s{sT2}\ns_add_u32 s{sMV}, s{sMV}, s{sT2}")
    p(f"v_add_u32 v{vXa0}, {XR}, v7\nv_add_u32 v{vXa1}, {XR}, v8")
    p(f"s_cmp_eq_u32 s{sT}, 0\ns_cbranch_scc1 L_x0")
    p(f"v_add_u32 v{vXa0}, {XR+2*SLOT}, v8\nv_add_u32 v{vXa1}, {XR+3*SLOT}, v7")
    p("L_x0:")
    p(f"s_mul_i32 s{sT2}, s{sT}, 20480\ns_lshl_b32 s{sT3}, s{sPi}, 11\ns_add_u32 s{sT2}, s{sT2}, s{sT3}\nv_add_u32 v{vSt}, s{sT2}, v{vLin}")
    p(f"s_lshr_b32 s{sT2}, s{sHG}, 2\ns_and_b32 s{sT3}, s{sHG}, 3\ns_lshl_b32 s{sT3}, s{sT3}, 2\ns_add_u32 s{sT3}, s{sT3}, s{sWave}")
    p(f"s_mul_i32 s{sPa}, s{sT2}, 20480\ns_lshl_b32 s{sPb}, s{sT3}, 8\ns_add_u32 s{sPa}, s{sPa}, s{sPb}\ns_mov_b32 s{sPb}, {SLAB}")
    p(f"v_mul_lo_u32 v{vOfs}, s{sPb}, v1\nv_add3_u32 v{vOfs}, v{vOfs}, v2, s{sPa}")
    p(f"s_mul_i32 s{sPa}, s{sT2}, {80*1280}\ns_lshl_b32 s{sPb}, s{sT3}, 4\ns_add_u32 s{sPa}, s{sPa}, s{sPb}")
    if NAT: p(f"s_lshl_b32 s{sPb}, s{sWave}, 3\ns_sub_u32 s{sPa}, s{sPa}, s{sPb}")
    p(f"v_and_b32 v4, 15, v0\nv_lshl_add_u32 v6, v5, 4, v4\nv_mul_u32_u24 v{vOfo}, 1280, v6\nv_lshl_add_u32 v{vOfo}, v3, {5 if NAT else 3}, v{vOfo}\nv_add_u32 v{vOfo}, s{sPa}, v{vOfo}")
    p(f"v_mov_b32 v6, {OOB}\nv_cmp_gt_u32 s[{sT2}:{sT2+1}], 32, v0\nv_cndmask_b32 v{vOf3}, v6, v{vOfo}, s[{sT2}:{sT2+1}]")
    p(f"v_and_b32 v6, 1, v0\nv_lshlrev_b32 v6, 4, v6\nv_mov_b32 v9, 0x3f80\nv_lshlrev_b32 v6, v6, v9\nv_lshrrev_b32 v4, 1, v4")
    for r in range(8):
        p(f"v_cmp_eq_u32 s[{sT2}:{sT2+1}], {r}, v4\nv_cndmask_b32 v{SEL+r}, 0, v6, s[{sT2}:{sT2+1}]")
    for r in range(4): p(f"v_mov_b32 v{ONE+r}, 0x3f803f80")
    p(f"v_mov_b32 v{vZ}, 0\nv_mov_b64 {vr(TT,2)}, 0\nv_mov_b64 {vr(TT+2,2)}, 0")
    zacc = [f"v_mfma_f32_32x32x16_bf16 {vr(16*i,16)}, {vr(TT,4)}, {vr(TT,4)}, 0" for i in range(10)]
    p(f"s_lshl_b32 s{sT}, s{sHG}, 3\ns_add_u32 s{sT}, s{sT}, s{sWave}\ns_cmp_eq_u32 s{sT}, 1\ns_cbranch_scc1 L_fi")
    p("L_fib:")
    if opts.get('cw', 1):
        p(f"s_getpc_b64 s[{sT2}:{sT2+1}]")
        p("L_pc:")
        p(f"s_sub_u32 s{sT2}, s{sT2}, L_pc-{KN}\ns_subb_u32 s{sT2+1}, s{sT2+1}, 0")
        p(f"s_lshr_b32 s{sT}, s2, 3\ns_lshl_b32 s{sT}, s{sT}, 1\ns_add_u32 s{sT}, s{sT}, s{sPi}\ns_lshl_b32 s{sT}, s{sT}, 10\ns_min_u32 s{sT}, s{sT}, L_code_end-{KN}-1024")
        p(f"v_add_u32 v196, s{sT}, v{vLin}\ns_bitcmp1_b32 s{sWave}, 0\ns_cbranch_scc1 L_ncw")
        p(f"global_load_dwordx4 {vr(WD,4)}, v196, s[{sT2}:{sT2+1}]")
        p("L_ncw:")
    DRY = opts.get('dry', 0)
    if DRY:
        for z in zacc: p(z)
        p(f"v_mfma_f32_32x32x16_bf16 {vr(160,16)}, {vr(TT,4)}, {vr(TT,4)}, 0\nv_mfma_f32_32x32x16_bf16 {vr(176,16)}, {vr(TT,4)}, {vr(TT,4)}, 0")
        p(f"v_mov_b32 v{vDk}, {OOB}\nv_mov_b32 v{vDv}, {OOB}\ns_mov_b32 s{sRa}, s{sMK}\ns_mov_b32 s{sRb}, s{sMV}\ns_mov_b32 s{sMK}, 0x30000\ns_mov_b32 s{sMV}, 0x30000\ns_mov_b32 s{sDry}, 1\ns_mov_b64 vcc, 0")
        for w, l in ((1, "l1"), (2, "l3"), (3, "e13")): p(f"s_cmp_eq_u32 s{sWave}, {w}\ns_cbranch_scc1 L_A_{l}")
        p("s_branch L_A_m2")
        p("L_dry_done:")
        p(f"s_mov_b32 s{sMK}, s{sRa}\ns_mov_b32 s{sMV}, s{sRb}\ns_mov_b32 s{sDry}, 0\ns_waitcnt lgkmcnt(0)")
    side("L_fi:")
    side(f"buffer_store_dwordx4 {vr(TT,4)}, v{vLin}, {srd(sFL)}, 0 offen sc1\ns_waitcnt vmcnt(0)")
    side(f"s_lshl_b32 s{sT}, s{sB}, 3\nv_mov_b32 v196, s{sT}\nv_mov_b32 v197, 1\ns_mov_b64 exec, 1")
    side(f"buffer_atomic_add v197, v196, {srd(sDBG)}, 0 offen sc1\ns_mov_b64 exec, -1\ns_branch L_fib")

    def kv_ops(isk, tile4):
        base, vo, sr = (sMK, vDk, sK) if isk else (sMV, vDv, sV)
        slot = tile4 & 3 if isk else (tile4 + 2) & 3
        o = [f"s_add_u32 m0, s{base}, {slot*SLOT+32*j}\ns_nop 0\nbuffer_load_dwordx4 v{vo}, {srd(sr)}, 0 offen offset:{1024*j} nt lds" for j in range(4)]
        o[-1] += f"\nv_add_u32 v{vo}, 0x2000, v{vo}"
        return o

    stamp(p, 3, 4)
    if PST == 4:
        p("s_waitcnt vmcnt(26)"); stamp(p, 4, 4); p("s_waitcnt vmcnt(17)"); stamp(p, 5, 4); p("s_waitcnt vmcnt(9)"); stamp(p, 6, 4); p("s_waitcnt vmcnt(0)"); stamp(p, 7, 4)
    p(f"s_mov_b32 s{sMK2}, s{sMK}\ns_mov_b32 s{sMV2}, s{sMV}")
    p("L_round:")
    kvinit = f"s_and_b32 s{sT}, s{sWave}, 1\ns_lshl_b32 s{sT}, s{sT}, 12\nv_add_u32 v{vDv}, s{sT}, v{vLin}\nv_bfe_u32 v{t0}, v{vLin}, 8, 1\nv_lshlrev_b32 v{t0}, 4, v{t0}\nv_xor_b32 v{vDk}, v{t0}, v{vDv}"
    kvadv = "\n".join(f"s_add_u32 s{s_}, s{s_}, 262144\ns_addc_u32 s{s_+1}, s{s_+1}, 0" for s_ in (sK, sV))
    p(kvinit)
    p(f"s_cmp_eq_u32 s{sZ}, 2\ns_cselect_b32 s{sMK}, 0x30000, s{sMK2}\ns_cselect_b32 s{sMV}, 0x30000, s{sMV2}\ns_cbranch_scc0 L_z1")
    p(f"v_mov_b32 v{vDk}, {OOB}\nv_mov_b32 v{vDv}, {OOB}")
    p("L_z1:")
    p(f"s_mul_i32 s{sT}, s{sPi}, {2*SLOT}\nv_add_u32 v{tA}, s{sT}, v{vTl}\nv_add_u32 v{tB}, {K1}, v{tA}\nv_add_u32 v{tC}, {V0}, v{tA}")
    p(f"s_add_u32 s{sRa}, s{sHS}, {K0}\ns_add_u32 s{sRb}, s{sHS}, {K1}\ns_add_u32 s{sRc}, s{sHS}, {V0}\ns_mov_b32 s{sIt}, 0")
    p(f"v_mov_b64 {vr(TT,2)}, 0\nv_mov_b64 {vr(TT+2,2)}, 0")
    for z in zacc: p(z)
    xb = lambda t, j: 16 * t + 4 * j
    xt = lambda t, j: 80 + 8 * t + 4 * (j - 2)
    qacc = lambda nt, t: 32 * t + 4 * nt
    for r in range(8): p(f"v_accvgpr_write_b32 a{aF+r}, 0")
    for t in range(5):
        for r in range(4): p(f"v_accvgpr_write_b32 a{xb(t,3)+r}, 0")
    p(f"s_cmp_eq_u32 s{sRnd}, 1\ns_cbranch_scc1 L_rw")
    p(wpre(K0, 0))
    for o in wops()[opts.get('iw', 4):]: p(o)
    p("L_rw:")
    p("s_waitcnt vmcnt(0)\ns_barrier")
    stamp_r(p, 1, 4, "q"); stamp(p, 1, 1)
    def xread(t, j): return f"ds_read_b128 {ar(xb(t,j) if j < 2 else xt(t,j),4)}, v{[vXa0,vXa1][t&1]} offset:{(t>>1)*SLOT+64*j}"
    for j in range(4):
        for t in range(5): p(xread(t, j))
        if j == 1: p("s_waitcnt lgkmcnt(0)")
    p(f"s_cmp_eq_u32 s{sRnd}, 1\ns_cbranch_scc1 L_rw2")
    for o in wops(sRb, 64 * 8192): p(o)
    p("L_rw2:")
    p("s_waitcnt lgkmcnt(0)\ns_barrier")
    HQ = 2
    NS = opts.get('ns', 3)
    def gunit(rdtxt, mf, streams, vm=None, T=None):
        lg = Q(p, "lgkmcnt", 15); tok = {0: 0, 1: 0}
        G = Gaps()
        for m in range(14):
            for e in range(2): G.pin(5 * m + 5 + e, ("RD", m + 4, e))
        for m in range(2, 16): G.reserve(5 * m - 1)
        for seq, gaps in streams: G.stream(seq, gaps)
        def rd(m, e): lg.room(1); p(rdtxt(m, e)); tok[m] = lg.issue()
        for m in (2, 3):
            for e in range(2): rd(m, e)
        for m in range(16):
            lg.wait(tok[m])
            for t in range(5):
                p(mf(m, t))
                for o in G.items[5 * m + t]:
                    if isinstance(o, str): p(o)
                    elif o[0] == "RD": rd(o[1], o[2])
                    elif o[0] == "DS": lg.room(1); p(o[1]); lg.issue()
                    elif o[0] == "W": vm.wait(T.get(o[1], 0))
                    else:
                        p(o[1])
                        if vm:
                            tk = vm.issue()
                            if o[2]: T[o[2]] = tk
    def qunit(u, dm, fill, endw, span=76):
        def rdtxt(m, e):
            f = m - HQ; ks = f >> 3; nt = f & 7
            return f"ds_read_b64_tr_b16 {ar(FB(m)+2*e,2)}, v{[tA,tB][u]} offset:{ks*SLOT+e*256+(nt>>1)*64+(nt&1)*8}"
        def mf(m, t):
            f = m - HQ
            j = (2 * u + (f >> 3)) & 3 if f >= 0 else (2 * u - 1) & 3
            return m16(vr(qacc(f & 7, t), 4), ar(FB(m), 4), ar(xb(t, j), 4))
        gunit(rdtxt, mf, [(split(dm), list(range(0, span)))] + fill)
        p(endw)
    movs = [([(f"v_accvgpr_mov_b32 a{xb(t,j)+r}, a{xt(t,j)+r}", 1) for j in (2, 3) for t in range(5) for r in range(4)], list(range(0, 79)))]
    xrd = [([(("DS", xread(t, j)), 1) for j in (2, 3, 0, 1) for t in range(5)], list(range(1, 70)))]
    rot = (f"v_mov_b32 v{t0}, v{tC}\nv_mov_b32 v{tC}, v{tB}\nv_mov_b32 v{tB}, v{tA}\nv_mov_b32 v{tA}, v{t0}\n"
           f"s_mov_b32 s{sT}, s{sRc}\ns_mov_b32 s{sRc}, s{sRb}\ns_mov_b32 s{sRb}, s{sRa}\ns_mov_b32 s{sRa}, s{sT}")
    WQ = opts.get('wq', 0)
    vWm2 = 219
    wmo = [f"s_add_u32 s{sT}, s{sSt}, {k*128*1280}\nbuffer_load_dwordx4 {vr(TMP,4)}, v{vWm2}, {srd(sWO)}, s{sT} offen" for k in range(4)] if WQ == 1 else []
    p("L_Q_loop:")
    p(f"s_lshl_b32 s{sSt}, s{sIt}, 8")
    stamp_it(p, 1, "q", [(0, 2), (2, 3)])
    p(f"s_add_u32 s{sCur}, s{sCur}, 1\ns_cmp_ge_u32 s{sCur}, 5\ns_cselect_b32 s{sCur}, 0, s{sCur}")
    p(xpre); p(f"s_lshl_b32 s{sPb}, s{sCur}, 20\ns_add_u32 s{sPb}, s{sPb}, s{sGB}")
    p(f"s_cmp_eq_u32 s{sIt}, 3\ns_cselect_b32 s{sPa}, 0x30000, s{sRa}")
    qunit(0, xops() + wops(sRc)[:NS], movs, f"s_waitcnt vmcnt({NS}) lgkmcnt(0)\ns_barrier", span=70)
    qunit(1, wops(sRc)[NS:] + wops(sPa, 64 * 8192) + wmo, xrd, rot + f"\ns_add_u32 s{sIt}, s{sIt}, 1\ns_cmp_lt_u32 s{sIt}, 4\ns_waitcnt vmcnt({8+len(wmo)}) lgkmcnt(0)\ns_barrier")
    p("s_cbranch_scc1 L_Q_loop")
    stamp(p, 4, 1)
    p(f"s_add_u32 s{sPa}, s{sHS}, {XR}\ns_mul_i32 s{sT}, s{sPi}, {2*SLOT}\ns_add_u32 s{sT}, s{sT}, {XR}\nv_add_u32 v{tB}, s{sT}, v{vTl}")
    kpre = kv_ops(True, 0) + kv_ops(True, 1) + kv_ops(True, 2) + kv_ops(True, 3)
    qunit(0, wops(sPa, 64 * 8192) + kpre[:8], movs, "s_waitcnt vmcnt(8) lgkmcnt(0)\ns_barrier")
    p(f"s_movk_i32 s{sSt}, 1024")
    qunit(1, wmo + kpre[8:], [], f"s_waitcnt vmcnt({12+len(wmo)}) lgkmcnt(0)\ns_barrier")
    stamp(p, 5, 1)
    vpre = [o for k in range(3) for o in kv_ops(False, k)]
    for m in range(HQ):
        for t in range(5): p(m16(vr(qacc(6 + m, t), 4), ar(FB(m), 4), ar(xb(t, 3), 4)))
    for r in range(0, 20, 2): p(f"v_mov_b64 {vr(NM+r,2)}, 0")
    for i in range(80):
        p(f"v_pk_mul_f32 {vr(2*i,2)}, {vr(2*i,2)}, s[{sC}:{sC+1}] op_sel_hi:[1,0]")
        if i >= 2: p(f"v_cvt_pk_bf16_f32 v{i-2}, v{2*i-4}, v{2*i-3}")
        if i % 6 == 0 and i // 6 < 12: p(vpre[i // 6])
    p("v_cvt_pk_bf16_f32 v78, v156, v157\nv_cvt_pk_bf16_f32 v79, v158, v159")
    p(f"s_cmp_eq_u32 s{sZ}, 2\ns_cbranch_scc1 L_zsave")
    stamp(p, 6, 1); stamp(p, 7, 1)
    stamp_r(p, 2, 5, "a")

    HB = 2
    DRYN = {"m2": "L_A_m1", "m1": "L_A_z0", "z0": "L_dry_done", "l1": "L_A_l2", "l2": "L_dry_done", "l3": "L_A_l0", "l0": "L_dry_done", "e13": "L_A_e14", "e15": "L_dry_done"}
    def sm_ops(b):
        seq = []
        for k in range(43):
            if k < 40: seq.append((f"v_exp_f32 v{b+k}, v{b+k}", 2))
            if k >= 4 and k % 2 == 0:
                i = (k - 4) // 2
                seq.append((f"v_cvt_pk_bf16_f32 v{b+8*(i>>2)+(i&3)}, v{b+2*i}, v{b+2*i+1}", 1))
        return seq
    W1 = list(range(24, 80)) + list(range(0, 9))
    def oops(vo): return [f"s_add_u32 m0, s{sPa}, {pc*PCS}\ns_add_u32 s{sT}, s{sPb}, {(PR*(pc&1)+(pc>>1))*1280}\nbuffer_load_dwordx4 v{vo}, {srd(sWO)}, s{sT} offen lds" for pc in range(8)]
    r0 = xops() + wops(sPa) + wops(sRa, 64 * 8192)
    r0[0] = f"s_add_u32 s{sGB}, s{sGB}, 512\ns_mov_b32 s{sCur}, s{sR0}\n{xpre}\n{wpre(K0, 0)}\ns_add_u32 s{sRa}, s{sHS}, {K1}\n" + r0[0]
    r0s = [r0[4*i:4*i+4] for i in range(6)] + [r0[24:26], [], []]
    wm = [f"s_mov_b32 s{sT}, {(k>>2)*256+(k&3)*128*1280}\nbuffer_load_dwordx4 {vr(WD,4)}, v{vWarm}, {srd(sWO)}, s{sT} offen" for k in range(20)]
    o0 = oops(vWoA); o1 = oops(vWoA)
    o0[0] = f"s_mul_i32 s{sGB}, s{sWave}, {32*1280}\ns_add_u32 s{sPa}, s{sHS}, {K0}\ns_mov_b32 s{sPb}, s{sGB}\n" + o0[0]
    o1[0] = f"s_add_u32 s{sPa}, s{sHS}, {K1}\ns_add_u32 s{sPb}, s{sGB}, {256*1280}\n" + o1[0]
    r1s = [wm[0:4], wm[4:7], wm[7:10], wm[10:13], wm[13:16], wm[16:20], [], o0, o1]
    r2s = [[kvadv, kvinit] + kv_ops(True, 0), kv_ops(True, 1), kv_ops(True, 2), kv_ops(True, 3), kv_ops(False, 0), kv_ops(False, 1), [], [], []]
    def site(k):
        p(f"s_or_b32 s{sT}, s{sRnd}, s{sZ}\ns_cbranch_scc1 L_s{k}a")
        for o in r0s[k]: p(o)
        p(f"L_s{k}b:")
        side(f"L_s{k}a:")
        side(f"s_cmp_eq_u32 s{sZ}, 1\ns_cbranch_scc1 L_s{k}c")
        for o in r1s[k]: side(o)
        side(f"s_branch L_s{k}b")
        side(f"L_s{k}c:")
        for o in r2s[k]: side(o)
        side(f"s_branch L_s{k}b")
    POS = []
    for m in range(16):
        POS += [(m, t) for t in range(5)]
        if 3 <= m < 8: POS.append(('L', m - 3))
    NPOS = len(POS); first_of = {m: POS.index((m, 0)) for m in range(16)}
    cap = {x: 2.0 for x in range(NPOS)}; pins = {x: [] for x in range(NPOS)}
    for m in range(14):
        x = POS.index((m, 4)) + 1
        for e in range(2 if m + 4 < 10 else 1): pins[x + e].append(('RD', m + 4, e)); cap[x + e] -= 1
    for m in range(2, 16): cap[first_of[m] - 1] -= 1
    XC = opts.get('xc', 24); XP = first_of[10] + 4
    pins[XC].append('CHECK'); cap[XC] -= 2; pins[XP].append('PT2'); cap[XP] -= 1
    order = list(range(XC + 1, NPOS)) + list(range(0, XC + 1)); n1 = NPOS - XC - 1
    mreg = [8 * t + r for t in range(5) for r in range(4)] + [8 * t + 4 + r for t in range(5) for r in range(4)]
    mx = [('MX', TT, None, mreg[0:3]), ('MX', TT + 1, None, mreg[3:6])] + [('MX', TT + ((i >> 1) & 1), 1, mreg[i:i+2]) for i in range(6, 40, 2)] + [('MF',)]
    tmpl = greedy(order, cap, [
        dict(items=[(('EX', k), 2, None) for k in range(40)], lo=0, hi=n1 + 8),
        dict(items=[(('CV', i), 1, (0, 2 * i + 1)) for i in range(20)], lo=3, hi=n1 + 10),
        dict(items=[(o, 1, None) for o in mx[:9]], lo=n1 + 2, hi=n1 + 13),
        dict(items=[(o, 1, None) for o in mx[9:]], lo=n1 + 14, hi=n1 + XC - 1),
        dict(items=[(('DM', i), 1, (4, i - 1) if i % 2 else None) for i in range(6)], lo=n1, hi=n1 + XC - 1),
        dict(items=[(('DM', i), 1, (5, i - 7) if i % 2 else None) for i in range(6, 16)], lo=0, hi=n1 - 4)])
    def abody(tag, nm, held=True, pv=True, qk=True, zc=False, first=False, dma=True, smt=True, smh=True, endw="vmcnt(16)", bar=True, sites={}, fill={}):
        Sn = SS[nm & 1]; Sn1 = SS[(nm + 1) & 1]
        lg = Q(p, "lgkmcnt", 15); tok = {0: 0, 1: 0}
        p(f"L_A_{tag}:")
        slot = (nm + 2) & 3
        ms = ([0, 1] if held else []) + (list(range(2, 10)) + ['L'] if pv else []) + (list(range(10, 16)) if qk else [])
        done = set()
        def rd(m, e):
            if (m, e) in done or (m < 10 and not pv) or (m >= 10 and not qk): return
            done.add((m, e)); lg.room(1)
            if m < 10:
                dt = m - 2
                p(f"ds_read_b64_tr_b16 {ar(FB(m)+2*e,2)}, v{vVa} offset:{slot*SLOT+e*256+(dt>>1)*64+(dt&1)*HS}")
            else:
                k = m - 10
                p(f"ds_read_b128 {ar(FB(m),4)}, v{[vKa0,vKa1][k>>2]} offset:{slot*SLOT+64*(k&3)}")
            tok[m] = lg.issue()
        dm = []
        if dma:
            for o in kv_ops(True, nm + 1) + (kv_ops(False, nm + 3) if dma != 'k' else []):
                l = o.replace("s_nop 0\n", "").split("\n"); dm += [l[0], "\n".join(l[1:])]
        for m in ((2, 3) if pv else (10, 11)):
            for e in range(2 if pv else 1): rd(m, e)
        for x, (m, t) in enumerate(POS):
            if m in ms:
                if m == 'L': p(m16(vr(LL + 4 * t, 4), vr(ONE, 4), vr(Sn + 8 * t, 4), '0' if zc else None))
                else:
                    if t == 0: lg.wait(tok[m])
                    if m < 2: p(m16(vr(Sn1 + 8 * t + 4, 4), ar(FB(m), 4), vr(QR + 16 * t + 4 * (2 + m), 4)))
                    elif m < 10: p(m16(ar(oacc(m - 2, t), 4), ar(FB(m), 4), vr(Sn + 8 * t, 4), '0' if zc else None))
                    else:
                        k = m - 10
                        p(m16(vr(Sn + 8 * t + 4 * (k >> 2), 4), ar(FB(m), 4), vr(QR + 16 * t + 4 * (k & 3), 4), vr(NM + 4 * t, 4) if k & 3 == 0 else None))
            b = Sn1 if x > XC else Sn; on = smh if x > XC else smt
            for o in tmpl[x] + pins[x]:
                if o == 'CHECK':
                    if first: call(p, "S_first")
                    elif smh:
                        p(f"v_cmp_lt_f32 vcc, 0x41000000, v{TT}\ns_cbranch_vccnz L_rr{tag}")
                        p(f"L_rb{tag}:")
                        side(f"L_rr{tag}:"); call(side, f"S_rare{(nm+1)&1}"); side(f"s_branch L_rb{tag}")
                elif o == 'PT2':
                    if smh and not first:
                        p(f"s_cbranch_vccnz L_p2{tag}")
                        p(f"L_pb{tag}:")
                        side(f"L_p2{tag}:"); call(side, "S_scale"); side(f"s_branch L_pb{tag}")
                elif o[0] == 'RD': rd(o[1], o[2])
                elif o[0] == 'EX':
                    if on: p(f"v_exp_f32 v{b+o[1]}, v{b+o[1]}")
                elif o[0] == 'CV':
                    i = o[1]
                    if on: p(f"v_cvt_pk_bf16_f32 v{b+8*(i>>2)+(i&3)}, v{b+2*i}, v{b+2*i+1}")
                elif o[0] == 'MX':
                    if smh and not first: p(f"v_max3_f32 v{o[1]}, " + ", ".join(([f"v{o[1]}"] if o[2] else []) + [f"v{Sn1+r}" for r in o[3]]))
                elif o[0] == 'MF':
                    if smh and not first: p(f"v_max_f32 v{TT}, v{TT}, v{TT+1}")
                elif o[0] == 'DM':
                    if o[1] < len(dm): p(dm[o[1]])
            if x in sites: site(sites[x])
            for o in fill.get(x, []): p(o)
        if bar: p(f"s_waitcnt {endw} lgkmcnt(0)")
    def xl(op, a, b):
        return (f"v_mov_b32 v{b}, v{a}\nv_permlane16_swap_b32 v{a}, v{b}\n{op} v{a}, v{a}, v{b}\n"
                f"v_mov_b32 v{b}, v{a}\nv_permlane32_swap_b32 v{a}, v{b}\n{op} v{a}, v{a}, v{b}")
    def shiftsub(name, n, first):
        q(f"{name}:")
        for t in range(5):
            b = n + 8 * t
            q(f"v_max3_f32 v{TT}, v{b}, v{b+1}, v{b+2}\nv_max3_f32 v{TT}, v{TT}, v{b+3}, v{b+4}\nv_max3_f32 v{TT}, v{TT}, v{b+5}, v{b+6}\nv_max_f32 v{TT}, v{TT}, v{b+7}")
            q(xl("v_max_f32", TT, TT + 1))
            if not first: q(f"v_max_f32 v{TT}, 0, v{TT}\nv_exp_f32 v{FACS[t]}, -v{TT}")
            for r in range(8): q(f"v_sub_f32 v{b+r}, v{b+r}, v{TT}")
            for r in range(4): q(f"v_sub_f32 v{NM+4*t+r}, v{NM+4*t+r}, v{TT}")
        ret(q, name)
    shiftsub("S_rare0", SS[0], False); shiftsub("S_rare1", SS[1], False); shiftsub("S_first", SS[0], True)
    q("S_scale:")
    for dt in range(8):
        for t in range(5):
            a = oacc(dt, t)
            for r in range(4): q(f"v_accvgpr_read_b32 v{TT+4+r}, a{a+r}")
            for r in (0, 2): q(f"v_pk_mul_f32 {vr(TT+4+r,2)}, {vr(TT+4+r,2)}, {vr(FACS[t],2)} op_sel_hi:[1,0]")
            for r in range(4): q(f"v_accvgpr_write_b32 a{a+r}, v{TT+4+r}")
    for t in range(5):
        for r in (0, 2): q(f"v_pk_mul_f32 {vr(LL+4*t+r,2)}, {vr(LL+4*t+r,2)}, {vr(FACS[t],2)} op_sel_hi:[1,0]")
    ret(q, "S_scale")
    stamp(p, 1, 3)
    abody("m2", 2, held=False, pv=False, smt=False, smh=False, dma=False, endw="vmcnt(20)"); p("s_barrier")
    abody("m1", 3, pv=False, smt=False, first=True, dma='k', endw="vmcnt(12)"); p("s_barrier")
    abody("z0", 0, zc=True); p(f"s_mov_b32 s{sIt}, 0\ns_barrier"); stamp(p, 2, 3)
    for nm in (1, 2, 3, 0):
        abody(f"l{nm}", nm)
        if nm == 0: p(f"s_add_u32 s{sIt}, s{sIt}, 1\ns_cmp_lt_u32 s{sIt}, 3")
        p("s_barrier")
    p("s_cbranch_scc1 L_A_l1")
    stamp(p, 3, 3)
    abody("e13", 1, dma=False, endw="vmcnt(0)"); p("s_barrier")
    stamp(p, 4, 3)
    abody("e14", 2, qk=False, dma=False, bar=False, sites={1: 0, 20: 1, 40: 2, 65: 3})
    def prd(J, t):
        tm = PT[(J, t)]
        return [f"v_accvgpr_read_b32 v{tm+4*h+r}, a{oacc(2*J+h,t)+r}" for h in range(2) for r in range(4)]
    PT = {}
    for t in range(5): PT[(0, t)] = SS[0] + 8 * t; PT[(1, t)] = QR + 16 * t + 8
    early = [o for J in range(2) for t in range(5) for o in prd(J, t)]
    xa = first_of[4] + 2; xb_ = first_of[6] + 2; xe = first_of[10]
    fl = spread([(o, 1) for o in early[:40]], list(range(xa, xb_ + 8)))
    for g, l in spread([(o, 1) for o in early[40:]], list(range(xb_ + 8, xe))).items(): fl.setdefault(g, []).extend(l)
    abody("e15", 3, held=False, qk=False, dma=False, smh=False, bar=False, sites={12: 4, 35: 5}, fill=fl)
    stamp(p, 5, 3)
    for t in range(5): p(f"v_rcp_f32 v{FACS[t]}, v{LL+4*t}")
    for J in range(4):
        if J < 3: site(6 + J)
        for t in range(5):
            if J >= 2:
                PT[(J, t)] = SS[1] + 8 * t if J == 2 else SS[0] + 8 * t
                for o in prd(J, t): p(o)
            tm = PT[(J, t)]
            for r in range(0, 8, 2): p(f"v_pk_mul_f32 {vr(tm+r,2)}, {vr(tm+r,2)}, {vr(FACS[t],2)} op_sel_hi:[1,0]")
            for r in range(4): p(f"v_cvt_pk_bf16_f32 v{QR+16*t+4*J+r}, v{tm+2*r}, v{tm+2*r+1}")
    stamp_r(p, 3, 6, "e"); stamp(p, 6, 3); stamp(p, 7, 3)
    p(f"s_cmp_eq_u32 s{sRnd}, 1\ns_cbranch_scc1 L_T")
    p(f"s_mov_b32 s{sRnd}, 1\ns_cmp_eq_u32 s{sZ}, 1\ns_cbranch_scc1 L_zswap")
    p(kvadv)
    p("L_zsave:")
    for r in range(80): p(f"v_accvgpr_write_b32 a{aSV+r}, v{QR+r}")
    p(f"s_cmp_eq_u32 s{sZ}, 1\ns_cbranch_scc1 L_zswap2\ns_lshr_b32 s{sZ}, s{sZ}, 1\ns_branch L_round")
    p("L_zswap:")
    p("s_waitcnt vmcnt(20)\ns_barrier")
    for o in kv_ops(False, 2): p(o)
    for r in range(80): p(f"v_accvgpr_read_b32 v{80+r}, a{aSV+r}")
    p("s_branch L_zsave")
    p("L_zswap2:")
    for r in range(0, 80, 2): p(f"v_mov_b64 {vr(QR+r,2)}, {vr(80+r,2)}")
    for r in range(0, 20, 2): p(f"v_mov_b64 {vr(NM+r,2)}, 0")
    p(f"s_mov_b32 s{sZ}, 0\ns_branch L_A_m2")

    q("S_odmb:")
    for o in oops(vWoB): q(o)
    ret(q, "S_odmb")
    SLP = opts.get('slp', 4)
    q("S_spin:")
    q(f"buffer_load_dword v{vPol}, v{vZ}, {srd(sFL)}, s{sFo} offen sc1\ns_waitcnt vmcnt(0)")
    q("S_spinc:")
    q(f"v_readfirstlane_b32 s{sT}, v{vPol}\ns_cmp_eq_u32 s{sT}, 8\ns_cbranch_scc1 L_spr\ns_sleep {SLP}\ns_branch S_spin")
    q("L_spr:"); ret(q, "S_spin|S_spinc")
    q("S_post:")
    q(f"s_cmp_lg_u32 s{sWave}, 0\ns_cbranch_scc1 L_pr\nv_mov_b32 v{t0}, 1\ns_mov_b64 exec, 1")
    q(f"buffer_atomic_add v{t0}, v{vZ}, {srd(sFL)}, s{sT2} offen sc1\ns_mov_b64 exec, -1")
    q("L_pr:"); ret(q, "S_post")
    def ld_op(li):
        sg = li >> 1; h = li & 1
        return f"s_add_u32 s{sT}, s{sPc}, {sg*4096+h*4*SLAB}\nbuffer_load_dwordx4 {vr(RB+4*li,4)}, v{vOs2}, {srd(sPA)}, s{sT} offen sc1"
    LSET = [range(0, 4), range(4, 8), range(8, 10)]
    def red_ops(k):
        d = RD + 4 * k
        o = [m16(vr(d, 4), vr(SEL + 4 * ((li >> 1) & 1), 4), vr(RB + 4 * li, 4), '0' if li % 4 == 0 else None) for li in LSET[k]]
        o2 = [f"v_cvt_pk_bf16_f32 v{d}, v{d}, v{d+1}", f"v_cvt_pk_bf16_f32 v{d+1}, v{d+2}, v{d+3}",
              ("VM", f"s_add_u32 s{sT2}, s{sPd}, {k*32*1280}\nbuffer_store_dwordx2 {vr(d,2)}, v{vOo3 if k == 2 else vOo2}, {srd(sOUT)}, s{sT2} offen", None)]
        return o, o2
    q("S_ld:")
    for li in range(10): q(ld_op(li))
    q("s_waitcnt vmcnt(0)")
    q("S_reda:")
    for o in red_ops(0)[0]: q(o)
    q("S_redb:")
    for k in (1, 2):
        for o in red_ops(k)[0]: q(o)
    for k in range(3):
        for o in red_ops(k)[1]: q(o if isinstance(o, str) else o[1])
    ret(q, "S_ld|S_reda|S_redb")
    def reduce_group(g):
        p(f"s_mov_b32 s{sPc}, {g*40960}\ns_movk_i32 s{sPd}, {g*256}"); call(p, "S_ld")

    p("L_T:")
    stamp(p, 1, 2)
    p("s_waitcnt vmcnt(16)")
    p(f"s_mov_b32 s{sT}, {EXA[0]}\ns_mul_i32 s{sT2}, s{sWave}, 20480\ns_add_u32 s{sT2}, s{sT2}, {V1-20480}\ns_cmp_eq_u32 s{sWave}, 0\ns_cselect_b32 s{sT2}, s{sT}, s{sT2}")
    p(f"v_add_u32 v{vR0}, s{sT2}, v{vLin}")
    p(f"s_xor_b32 s{sT3}, s{sWave}, 2\ns_mul_i32 s{sT2}, s{sT3}, 20480\ns_add_u32 s{sT2}, s{sT2}, {V1-20480}\ns_cmp_eq_u32 s{sT3}, 0\ns_cselect_b32 s{sT2}, s{sT}, s{sT2}")
    p(f"v_add_u32 v{vR1}, s{sT2}, v{vLin}")
    p(f"s_lshl_b32 s{sT}, s{sB}, 3\nv_mov_b32 v{t0}, s{sT}")
    p("L_isp:")
    p(f"buffer_load_dword v{vPol}, v{t0}, {srd(sDBG)}, 0 offen sc1")
    p("s_barrier")
    for step in range(2):
        for i in range(20):
            p(f"ds_write_b128 v{vR0}, {ar(aSV+4*i,4) if step == 0 else vr(QR+4*i,4)} offset:{1024*i}")
            if i % 10 == 9: p("s_waitcnt lgkmcnt(0)")
        p("s_barrier")
        for i in range(20):
            p(f"ds_read_b128 {ar(80*step+4*i,4)}, v{vR1} offset:{1024*i}")
            if i % 10 == 9: p("s_waitcnt lgkmcnt(0)")
        if step == 1:
            p("s_waitcnt vmcnt(0)")
            p("L_ick:")
            p(f"v_readfirstlane_b32 s{sT}, v{vPol}\ns_cmp_eq_u32 s{sT}, 1\ns_cbranch_scc1 L_iok")
            p(f"s_sleep 8\nbuffer_load_dword v{vPol}, v{t0}, {srd(sDBG)}, 0 offen sc1\ns_waitcnt vmcnt(0)\ns_branch L_ick")
            p("L_iok:")
        p("s_barrier")
    REG = [K0, K1, V0, V1]; TBr = [vR0, vR1, vR2, vR3]
    p(f"s_lshl_b32 s{sT}, s{sPi}, 7\nv_add_u32 v{vR0}, s{sT}, v{vTn}\nv_add_u32 v{vR1}, {K1}, v{vR0}\nv_add_u32 v{vR2}, {V0}, v{vR0}\nv_add_u32 v{vR3}, {V1}, v{vR0}")
    p(f"s_add_u32 s{sPa}, s{sHS}, {V0}\ns_mov_b32 s{sPb}, s{sGB}"); call(p, "S_odmb")
    p(f"v_mov_b32 v{vSt2}, {OOB}\nv_mov_b32 v{vOs2}, {OOB}\nv_mov_b32 v{vOo2}, {OOB}\nv_mov_b32 v{vOo3}, {OOB}")
    p(f"s_mov_b32 s{sIt}, 0\ns_mov_b32 s{sSt}, 0\ns_mov_b32 s{sPc}, 0\ns_mov_b32 s{sPd}, 0\ns_mov_b32 s{sFo}, 0\ns_mov_b32 s{sCol}, s{sGB}\ns_mov_b32 s{sRa}, s{sHS}")
    Bop = lambda qd, t, ts: [ar(aSV + 16 * t + 4 * ts, 4), vr(QR + 16 * t + 4 * ts, 4), ar(16 * t + 4 * ts, 4), ar(80 + 16 * t + 4 * ts, 4)][qd]
    tacc = lambda Jp, t, h: TA + 40 * Jp + 8 * t + 4 * h
    def st_ops(Jp, vo, back):
        o = []
        for t in range(5):
            tm = TMP + 4 * (t & 1); a = tacc(Jp, t, 0)
            o += [f"v_cvt_pk_bf16_f32 v{tm+i}, v{a+2*i}, v{a+2*i+1}" for i in range(4)]
            o.append(("VM", f"s_add_u32 s{sT3}, s{sSt}, {t*4096}\nbuffer_store_dwordx4 {vr(tm,4)}, v{vo}, {srd(sPO)}, s{sT3} offen offset:{1024*Jp} sc1", 'ps'))
        return o
    vm = Q(p, "vmcnt", 63); T = {}
    def tmf(qd, f, m):
        Jp = f >> 3; ts = (f >> 1) & 3; h = f & 1
        return [m16(vr(tacc(Jp, t, h), 4), ar(FB(m), 4), Bop(qd, t, ts), '0' if qd == 0 and ts == 0 else None) for t in range(5)]
    LAG = opts.get('lag', 2); PQ = opts.get('pq', 2)
    def period():
        for qd in range(4):
            D = (qd + 3) & 3
            if qd == 0:
                p(f"buffer_load_dword v{vPol}, v{vZ}, {srd(sFL)}, s{sFo} offen sc1"); T['poll'] = vm.issue()
            if qd == 1:
                p(f"s_add_u32 s{sCol}, s{sCol}, 256\ns_cmp_ge_u32 s{sIt}, {LAG}\ns_cbranch_scc1 L_T_ck")
                p("L_T_ckb:")
                T['pollw'] = vm.n - T['poll']
            if qd == PQ:
                p(f"s_lshl_b32 s{sT2}, s{sIt}, 7\ns_sub_u32 s{sT2}, s{sT2}, 128\ns_cbranch_scc1 L_T_np"); call(p, "S_post"); p("L_T_np:")
            if qd == 3:
                p(f"s_lshl_b32 s{sPd}, s{sIt}, 8\ns_sub_u32 s{sPd}, s{sPd}, {256*LAG}\ns_cselect_b32 s{sPd}, 0, s{sPd}\ns_cbranch_scc1 L_T_no\nv_mov_b32 v{vOo2}, v{vOfo}\nv_mov_b32 v{vOo3}, v{vOf3}")
                p("L_T_no:")
            p(f"s_add_u32 s{sPa}, s{sRa}, {REG[D]}\ns_add_u32 s{sPb}, s{sCol}, {(D&1)*256*1280}\ns_add_u32 s{sRb}, s{sPb}, {PR*1280}")
            vmo = []
            lds_ = list(LSET[qd - 1]) if qd >= 1 else []
            BU = opts.get('burst', 2)
            if BU:
                lds_ = []
                if qd == 1 and BU == 1: vmo += [("VM", ld_op(li), 'lb') for li in range(10)]
            for i in range(8):
                im = (i >> 1) * 1280
                vmo.append(("VM", f"s_add_u32 m0, s{sPa}, {i*PCS-im}\nbuffer_load_dwordx4 v{vWoA if D < 2 else vWoB}, {srd(sWO)}, s{sRb if i & 1 else sPb} offen offset:{im} lds", ('d', D)))
                if i % 2 and lds_: vmo.append(("VM", ld_op(lds_.pop(0)), ('l', qd - 1)))
            if WQ == 3:
                vmo.append(("VM", f"s_add_u32 s{sT}, s{sRc}, {qd*128*1280}\nbuffer_load_dwordx4 {vr(212,4)}, v{vWarm}, {srd(sWO)}, s{sT} offen", None))
                if qd == 0: p(f"s_add_u32 s{sRc}, s{sIt}, 2\ns_min_u32 s{sRc}, s{sRc}, 4\ns_lshl_b32 s{sRc}, s{sRc}, 8")
            if BU == 2 and qd == 1: vmo += [("VM", ld_op(li), 'lb') for li in range(10)]
            streams = []
            if qd == 0: streams.append((split(st_ops(1, vSt2, True) + [f"v_mov_b32 v{vSt2}, v{vSt}\ns_mul_i32 s{sSt}, s{sIt}, 40960"]), list(range(13, 49))))
            if qd == 3: streams.append((split(st_ops(0, vSt, False)), list(range(53, 80))))
            streams.append((split(vmo), list(range(0, 78))))
            rk = (qd + 1) & 3
            if BU:
                if qd == 0: streams.append(([(("W", 'lb'), 1)] + [(o, 1) for k in range(3) for o in red_ops(k)[0]], list(range(50, 78))))
                if rk == 3: streams.append((split([o for k in range(3) for o in red_ops(k)[1]]), list(range(0, 78))))
            elif rk < 3: streams.append(([(("W", ('l', rk)), 1)] + [(o, 1) for o in red_ops(rk)[0]], list(range(30, 50))))
            else: streams.append((split([o for k in range(3) for o in red_ops(k)[1]]), list(range(0, 78))))
            def rdtxt(m, e):
                f = m - 2; Jp = f >> 3; ts = (f >> 1) & 3; h = f & 1
                return f"ds_read_b64_tr_b16 {ar(FB(m)+2*e,2)}, v{TBr[qd]} offset:{ts*SLOT+e*256+Jp*64+h*HS}"
            gunit(rdtxt, lambda m, t: (tmf(qd, m - 2, m) if m >= 2 else tmf((qd - 1) & 3, 14 + m, m))[t], streams, vm, T)
            need = T.get(('d', (qd + 1) & 3), 0)
            if qd == PQ - 1: need = max(need, T['ps'])
            if qd == 1: need = max(need, T['poll'])
            vm.wait(need)
            if qd == 3: p(f"s_add_u32 s{sIt}, s{sIt}, 1\ns_cmp_lt_u32 s{sIt}, 5")
            p("s_waitcnt lgkmcnt(0)\ns_barrier")
    mark = len(p.ins)
    period()
    del p.ins[mark:]
    p("L_T_loop:")
    stamp_it(p, 2, "t", [(0, 2), (1, 3), (2, 4), (3, 5), (4, 6)])
    period()
    p("s_cbranch_scc1 L_T_loop")
    side("L_T_ck:")
    side(f"s_waitcnt vmcnt({min(63, T['pollw'])})"); call(side, "S_spinc")
    side(f"s_sub_u32 s{sPc}, s{sIt}, {LAG}\ns_mul_i32 s{sPc}, s{sPc}, 40960\ns_add_u32 s{sFo}, s{sFo}, 128\nv_mov_b32 v{vOs2}, v{vOfs}")
    side(f"s_cmp_lg_u32 s{sIt}, 4\ns_cbranch_scc1 L_T_ckb")
    side(f"v_mov_b32 v{vWoA}, {OOB}\nv_mov_b32 v{vWoB}, {OOB}\ns_mov_b32 s{sRa}, 0x28000\ns_branch L_T_ckb")
    for m in range(2):
        for o in tmf(3, 14 + m, m): p(o)
    p(f"s_movk_i32 s{sFo}, 384\nbuffer_load_dword v{vPol}, v{vZ}, {srd(sFL)}, s{sFo} offen sc1")
    for o in st_ops(1, vSt, True): p(o if isinstance(o, str) else o[1])
    stamp(p, 7); stamp(p, 7, 2)
    p("s_waitcnt vmcnt(5)"); call(p, "S_reda" if opts.get('burst', 2) else "S_redb")
    rest = list(range(5 - LAG, 4))
    p("s_waitcnt vmcnt(3)\ns_barrier")
    p(f"s_movk_i32 s{sT2}, 512"); call(p, "S_post")
    call(p, "S_spinc")
    for i, g in enumerate(rest[1:]):
        p(f"s_mov_b32 s{sPc}, {g*40960}")
        for li in range(10): p(ld_op(li).replace(vr(RB + 4 * li, 4), vr(40 * i + 4 * li, 4)))
    reduce_group(rest[0])
    for i, g in enumerate(rest[1:]):
        for r in range(0, 40, 2): p(f"v_mov_b64 {vr(RB+r,2)}, {vr(40*i+r,2)}")
        p(f"s_movk_i32 s{sPd}, {g*256}"); call(p, "S_reda")
    p(f"s_movk_i32 s{sFo}, 512"); call(p, "S_spin")
    reduce_group(4)
    if PROF:
        p("s_waitcnt vmcnt(0)\ns_mov_b32 s96, s65")
        stamp(p, 9)
        p("s_memrealtime s[100:101]\ns_waitcnt lgkmcnt(0)")
        if opts.get('dbg'):
            p(f"s_lshl_b32 s{sT}, s2, 3\ns_add_u32 s{sT}, s{sT}, s{sWave}\ns_cmp_lg_u32 s{sT}, {8*opts['dbg']+1}\ns_cbranch_scc1 L_exit")
            for i, k in enumerate((1, 2, 3, 4, 5, 6, 7, 9)):
                p(f"s_sub_u32 s{sT}, s{80+2*k}, s80\nv_mov_b32 v1, s{sT}\nbuffer_store_dword v1, v{vZ}, {srd(sDBG)}, 0 offen offset:{8*i+4}")
            p("s_endpgm")
        p(f"s_lshl_b32 s{sT}, s2, 3\ns_add_u32 s{sT}, s{sT}, s{sWave}\ns_lshl_b32 s{sT}, s{sT}, 6")
        p(f"s_add_u32 s4, s66, 0x4000000\ns_addc_u32 s5, s67, 0\ns_mov_b32 s6, 0x100000\ns_mov_b32 s7, 0x20000\nv_mov_b32 v0, s{sT}")
        for i in range(11):
            p(f"v_mov_b32 v1, s{80+2*i}\nbuffer_store_dword v1, v0, s[4:7], 0 offen offset:{4*i}\nbuffer_store_dword v1, v0, s[4:7], 0 offen offset:{256+4*i}")
    p("L_exit:")
    p("s_endpgm")
    if opts.get('nodma'): p.ins = [x for x in p.ins if not (x.kind == 'dma' and (srd(sK) in x.text or srd(sV) in x.text))]
    def strip(a, b, pred):
        i0 = [i for i, x in enumerate(p.ins) if x.label == a][0]; i1 = [i for i, x in enumerate(p.ins) if x.text.startswith(b) and i > i0][0]
        p.ins = [x for i, x in enumerate(p.ins) if not (i0 < i < i1 and pred(x))]
    ab = opts.get('abl', 0)
    for a, b in (('L_Q_loop', 's_cbranch_scc1 L_Q_loop'), ('L_T_loop', 's_cbranch_scc1 L_T_loop')):
        if ab & 1: strip(a, b, lambda x: x.op == 'v_accvgpr_mov_b32' or x.op == 'v_cvt_pk_bf16_f32')
        if ab & 2: strip(a, b, lambda x: x.kind == 'dma' or x.op.startswith('buffer_store') or x.op == 'buffer_load_dwordx4')
        if ab & 4: strip(a, b, lambda x: x.op == 's_barrier')
        if ab & 8: strip(a, b, lambda x: x.op == 's_waitcnt' and ('lgkmcnt(0)' not in x.text))
        if ab & 16: strip(a, b, lambda x: x.text.startswith('s_add_u32 m0') or x.text.startswith(f's_add_u32 s{sT},') or x.text.startswith(f's_add_u32 s{sT3},'))
        if ab & 32: strip(a, b, lambda x: x.kind == 'ds')
    if opts.get('bprof'):
        a, b = {1: ('L_Q_loop', 'L_A_m2'), 2: ('L_T_loop', 'L_exit'), 3: ('L_A_l1', 'L_A_e13')}[opts['bprof']]
        new = []; on = False; k = 0
        def wrap(x, acc):
            for t in ["s_cselect_b32 s99, 1, 0", "s_memtime s[78:79]".replace("78:79", "2:3") if False else "s_memtime s[100:101]", "s_waitcnt lgkmcnt(0)", f"s_sub_u32 s{acc}, s{acc}, s100"]: new.append(Ins(t))
            new.append(x)
            for t in ["s_memtime s[100:101]", "s_waitcnt lgkmcnt(0)", f"s_add_u32 s{acc}, s{acc}, s100", "s_cmp_lg_u32 s99, 0"]: new.append(Ins(t))
        for x in p.ins:
            if x.label == b or (on and x.text.startswith('s_cbranch_scc1 L_T_loop')): on = False
            if on and x.op == 's_barrier': wrap(x, 82)
            elif on and x.op == 's_waitcnt' and 'vmcnt' in x.text:
                wrap(x, 84 + 2 * min(k, 5)); print("site", min(k, 5), x.text, file=sys.stderr); k += 1
            else: new.append(x)
            if x.label == a: on = True
        p.ins = new
    p.ins += q.ins + side.ins
    p("L_code_end:")
    p("s_endpgm")
    n = p.fix_hazards(verbose=opts.get('verbose', False))
    print("hazard nops inserted:", n, "instrs:", len(p.ins), file=sys.stderr)
    hdr = open('standalone__mha_block_cached__near_ridge.s.ref').read().split('\n')
    hdr = [l for l in hdr if l.startswith(';') and '@launch' not in l and not l.startswith('; Override') and not l.startswith('; grid=ceil')]
    out = "\n".join(hdr) + "\n"
    out += f"; @launch grid=(256,1,1) block=(256,1,1) lds={LDS_BYTES}\n"
    out += '.amdgcn_target "amdgcn-amd-amdhsa--gfx950"\n.text\n'
    out += f".globl {KN}\n.p2align 8\n.type {KN},@function\n" + p.text()
    out += f""".section .rodata,"a"
.p2align 6
.amdhsa_kernel {KN}
  .amdhsa_next_free_vgpr 512
  .amdhsa_next_free_sgpr {102 if PROF else 80}
  .amdhsa_accum_offset 256
  .amdhsa_group_segment_fixed_size 0
  .amdhsa_kernarg_size 64
  .amdhsa_user_sgpr_count 2
  .amdhsa_user_sgpr_kernarg_segment_ptr 1
  .amdhsa_system_sgpr_workgroup_id_x 1
.end_amdhsa_kernel
"""
    return out

if __name__ == "__main__":
    opts = {}
    for a in sys.argv[2:]:
        k, v = a.split('='); opts[k] = int(v)
    open(sys.argv[1], 'w').write(gen(opts))
```

```python
import sys, math, struct
sys.path.insert(0, 'dev')
from asmlib import Prog, Q, Ins

KN = "standalone__mha_block_cached__near_ridge_kernel"
SLOT = 8448; PCS = 1056
K0 = 0; V0 = 4 * SLOT; K1 = 8 * SLOT; V1 = 12 * SLOT; XR = 14 * SLOT; DUMS = 16 * SLOT
EXA = [V0, V1, V1 + 20480, V1 + 40960]
LDS_BYTES = 163840 - 1024
SLAB = 204800; FLG = 256 * SLAB

QR = 0; SS = [80, 120]; NM = 160; LL = 180; ONE = 200; FACS = [218, 220, 246, 248, 250]; TT = 232; WD = 252
XB = 0; XT = 80
TA = 80; RB = 160; RD = 200; SEL = 224; TMP = 232; vOo3 = 222; vOf3 = 223
aACC = 0; aSV = 160; aF = 240
(vLin, vKa0, vKa1, vVa, vDk, vDv, vXd, vWd, vXa0, vXa1, tA, tB, tC, vTl) = range(204, 218)
vOfs, vOfo, vWarm, vWoA, vWoB, vSt, vSt2, vOs2, vOo2, vZ, vPol, t0, vR0, vR1, vR2, vR3 = range(240, 256)

sK, sV, sWQ, sWO, sX, sPO, sPA, sOUT, sDBG, sFL = 4, 8, 12, 16, 20, 24, 60, 72, 76, 68
sWave, sB, sHG, sIt, sMK, sMV, sRnd, sR0, sCur, sHS, sGB = 28, 29, 30, 31, 32, 33, 34, 35, 36, 37, 38
sT, sC, sBL, sPi, sPa, sT2, sT3, sPb, sCol = 39, 40, 41, 42, 43, 44, 45, 46, 47
sRa, sRb, sRet, sRc, sXl, sXg, sPc, sPd, sMsk, sSt, sFo = 48, 49, 50, 52, 53, 54, 55, 56, 57, 58, 59
sDry = 64
sZ, sMK2, sMV2 = 3, 64, 47
OOB = 0x7ff00000

SCALE = math.log2(math.e) / math.sqrt(128.0)
def f2u(x): return struct.unpack('<I', struct.pack('<f', x))[0]
def vr(b, n): return f"v[{b}:{b+n-1}]"
def ar(b, n): return f"a[{b}:{b+n-1}]"
def srd(b): return f"s[{b}:{b+3}]"
def m16(d, a, b, c=None): return f"v_mfma_f32_16x16x32_bf16 {d}, {a}, {b}, {d if c is None else c}"
def mksrd(p, s, lo, off, size):
    p(f"s_add_u32 s{s}, s{lo}, {off}\ns_addc_u32 s{s+1}, s{lo+1}, 0\ns_mov_b32 s{s+2}, {size}\ns_mov_b32 s{s+3}, 0x20000")
def call(p, name): p(f"s_call_b64 s[{sRet}:{sRet+1}], {name}")
def ret(p, name): p(f"s_setpc_b64 s[{sRet}:{sRet+1}] ; ret={name}")
def spread(seq, gaps):
    tot = sum(c for _, c in seq); out = {}; acc = 0
    for it, c in seq:
        g = gaps[min(int((acc + c * 0.5) * len(gaps) / tot), len(gaps) - 1)]
        out.setdefault(g, []).append(it); acc += c
    return out
class Gaps:
    def __init__(self, n=80): self.n = n; self.items = [[] for _ in range(n)]; self.load = [0.0] * n
    def pin(self, g, it, c=1): self.items[g].append(it); self.load[g] += c
    def reserve(self, g, c=1): self.load[g] += c
    def stream(self, seq, gaps):
        tot = sum(c for _, c in seq)
        lo, hi = 0.0, 50.0
        for _ in range(40):
            mid = (lo + hi) / 2
            if sum(max(0.0, mid - self.load[g]) for g in gaps) >= tot: hi = mid
            else: lo = mid
        room = [max(0.0, hi - self.load[g]) for g in gaps]
        cum = 0.0; edges = []
        for r in room: cum += r; edges.append(cum)
        acc = 0.0; k = 0
        for it, c in seq:
            pos = acc + c * 0.5
            while k < len(gaps) - 1 and edges[k] < pos: k += 1
            self.pin(gaps[k], it, c); acc += c
def greedy(order, cap, streams):
    out = {g: [] for g in order}; ptr = [0] * len(streams); where = {}
    for pos, g in enumerate(order):
        room = cap[g]
        while True:
            best = None
            for si, st in enumerate(streams):
                k = ptr[si]
                if k >= len(st['items']) or pos < st['lo']: continue
                it, c, dep = st['items'][k]
                if dep is not None and where.get(dep, 10**9) >= pos and pos < st['hi']: continue
                lag = (pos + 1 - st['lo']) / (st['hi'] + 1 - st['lo']) - k / len(st['items'])
                late = lag * len(st['items'])
                if c > room and late < 1.5 and pos < st['hi']: continue
                if late < -1.0: continue
                if best is None or late > best[0]: best = (late, si)
            if best is None: break
            si = best[1]; it, c, dep = streams[si]['items'][ptr[si]]
            out[g].append(it); where[(si, ptr[si])] = pos; ptr[si] += 1; room -= c
    assert all(ptr[i] == len(st['items']) for i, st in enumerate(streams)), ptr
    return out
def split(ops, tag=None):
    out = []
    for o in ops:
        tg = tag
        if isinstance(o, tuple): tg = o[2]; o = o[1]
        for l in o.split("\n"):
            if l == "s_nop 0": continue
            out.append((("VM", l, tg), 1.5) if l.startswith("buffer_") else (l, 1))
    return out
FB = lambda m: aF + 4 * (m & 3)
oacc = lambda dt, t: aACC + 4 * (dt * 5 + t)

def gen(opts):
    p = Prog(); side = Prog(); q = Prog()
    PROF = opts.get('prof', 0)
    PST = opts.get('pst', 0)
    def stamp_it(pp, mode, tag, vals):
        if PROF and PST == mode:
            pp("s_cselect_b32 s99, 1, 0")
            for v, i in vals:
                pp(f"s_cmp_lg_u32 s{sIt}, {v}\ns_cbranch_scc1 L_si{tag}{v}"); stamp(pp, i, mode); pp(f"L_si{tag}{v}:")
            pp("s_cmp_lg_u32 s99, 0")
    def stamp(pp, i, mode=0):
        if PROF and (PST == mode or i in (0, 9)):
            pp(f"{'s_memrealtime' if opts.get('rt') else 's_memtime'} s[{80+2*i}:{81+2*i}]\ns_waitcnt lgkmcnt(0)")
    def stamp_r(pp, i0, i1, tag):
        if PROF and PST == 0:
            pp(f"s_cmp_eq_u32 s{sRnd}, 0\ns_cbranch_scc0 L_st{tag}a"); stamp(pp, i0); pp(f"s_branch L_st{tag}b\nL_st{tag}a:"); stamp(pp, i1); pp(f"L_st{tag}b:")
    p(f"{KN}:")
    p("s_cmp_ge_u32 s2, 256\ns_cbranch_scc1 L_exit")
    p("s_load_dwordx8 s[56:63], s[0:1], 0\ns_load_dwordx8 s[64:71], s[0:1], 32")
    if PROF:
        for i in range(10): p(f"s_mov_b32 s{80+2*i}, 0")
        p("s_memrealtime s[100:101]")
    stamp(p, 0)
    p(f"v_lshrrev_b32 v1, 6, v0\nv_and_b32 v0, 63, v0\nv_lshlrev_b32 v{vLin}, 4, v0")
    p(f"v_readfirstlane_b32 s{sWave}, v1")
    p(f"s_bfe_u32 s{sB}, s2, 0x20001\ns_lshl_b32 s{sB}, s{sB}, 3\ns_lshr_b32 s{sBL}, s2, 5\ns_add_u32 s{sB}, s{sB}, s{sBL}")
    p(f"s_and_b32 s{sHG}, s2, 1\ns_lshl_b32 s{sHG}, s{sHG}, 2\ns_bfe_u32 s{sT3}, s2, 0x20003\ns_add_u32 s{sHG}, s{sHG}, s{sT3}")
    p(f"s_add_u32 s{sT3}, s{sT3}, s{sBL}")
    p(f"s_mul_i32 s{sT2}, s{sT3}, 205\ns_lshr_b32 s{sT2}, s{sT2}, 10\ns_mul_i32 s{sT2}, s{sT2}, 5\ns_sub_u32 s{sR0}, s{sT3}, s{sT2}")
    p(f"s_lshr_b32 s{sPi}, s{sWave}, 1")
    p(f"v_lshrrev_b32 v1, 4, v0\nv_and_b32 v2, 0xf0, v{vLin}\nv_and_b32 v3, 1, v1\nv_lshrrev_b32 v5, 1, v1")
    p(f"v_lshl_add_u32 v4, v3, 1, v5\nv_mul_u32_u24 v{vXd}, {8*1280}, v4\nv_lshlrev_b32 v4, 4, v3\nv_xor_b32 v4, v4, v2\nv_add_u32 v{vXd}, v{vXd}, v4")
    p(f"v_lshl_add_u32 v4, v5, 2, v3\nv_lshl_add_u32 v{vWd}, v4, 15, v2")
    p(f"s_mul_i32 s{sXl}, s{sWave}, {2*PCS}\ns_mul_i32 s{sXg}, s{sWave}, 1280")
    p(f"s_mul_i32 s{sHS}, s{sWave}, {SLOT}")
    p(f"s_and_b32 s{sT}, s{sWave}, 1\ns_lshl_b32 s{sGB}, s{sT}, 18\ns_lshl_b32 s{sT}, s{sPi}, 8\ns_add_u32 s{sGB}, s{sGB}, s{sT}")
    p(f"s_mul_i32 s{sT2}, s{sB}, 204800\ns_lshl_b32 s{sT3}, s{sHG}, 10\ns_sub_u32 s{sIt}, 5242880, s{sT3}\ns_mov_b32 s{sRnd}, 0")
    ZM = 0
    p({0: f"s_mov_b32 s{sZ}, 0", 1: f"s_and_b32 s{sZ}, s{sHG}, 1", 2: f"s_and_b32 s{sZ}, s{sBL}, 1", 3: f"s_mov_b32 s{sZ}, 1"}[ZM])
    p(f"s_lshl_b32 s{sZ}, s{sZ}, 1\ns_lshl_b32 s{sT}, s{sZ}, 8\ns_add_u32 s{sGB}, s{sGB}, s{sT}")
    p("s_waitcnt lgkmcnt(0)")
    stamp(p, 1, 4)
    mksrd(p, sX, 56, f"s{sT2}", 204800)
    mksrd(p, sWQ, 62, f"s{sT3}", f"s{sIt}")
    call(p, "S_qpx")
    p("s_branch L_setup")
    def xops():
        o = []
        for t in range(5):
            for hh in range(2):
                o.append(f"s_add_u32 m0, s{sXl}, {XR+t*SLOT+hh*PCS}\ns_add_u32 s{sT}, s{sPc}, {(32*t+4*hh)*1280}\nbuffer_load_dwordx4 v{vXd}, {srd(sX)}, s{sT} offen lds")
        return o
    xpre = f"s_lshl_b32 s{sPc}, s{sCur}, 8\ns_add_u32 s{sPc}, s{sPc}, s{sXg}"
    def wops(pa=sPa, add=0):
        return [f"s_add_u32 m0, s{pa}, {pc*PCS}\ns_add_u32 s{sT}, s{sPb}, {(8*(pc&1)+(pc>>1))*8192+add}\nbuffer_load_dwordx4 v{vWd}, {srd(sWQ)}, s{sT} offen lds" for pc in range(8)]
    def wpre(reg, u):
        return f"s_add_u32 s{sPa}, s{sHS}, {reg}\ns_lshl_b32 s{sPb}, s{sCur}, 20\ns_add_u32 s{sPb}, s{sPb}, s{sGB}" + (f"\ns_add_u32 s{sPb}, s{sPb}, {64*8192}" if u else "")
    p("S_qpx:")
    p(f"s_mov_b32 s{sCur}, s{sR0}"); p(xpre)
    for o in xops(): p(o)
    p(wpre(K0, 0))
    for o in wops()[:opts.get('iw', 4)]: p(o)
    ret(p, "S_qpx")
    p("L_setup:")
    stamp(p, 2, 4)
    PR = 4 if opts.get('nat', 1) else 8
    if opts.get('nat', 1): p("v_lshl_add_u32 v4, v3, 1, v5\nv_lshlrev_b32 v4, 1, v4")
    p(f"v_mul_u32_u24 v{vWoA}, {4*1280}, v4\nv_add_u32 v{vWoA}, v{vWoA}, v2\nv_bfe_u32 v6, v0, 3, 1\nv_mul_u32_u24 v6, {128*1280}, v6")
    p(f"v_sub_u32 v{vWoB}, v{vWoA}, v6\nv_add_u32 v{vWoB}, {128*1280}, v{vWoB}\nv_add_u32 v{vWoA}, v{vWoA}, v6")
    p(f"v_mul_u32_u24 v{vWarm}, 1280, v1\nv_add_u32 v{vWarm}, v{vWarm}, v2")
    p(f"s_lshl_b32 s{sT}, s{sBL}, 2\ns_add_u32 s{sT}, s{sT}, s{sWave}\ns_mul_i32 s{sT}, s{sT}, {4*1280}\nv_add_u32 v{vWarm}, s{sT}, v{vWarm}")
    mksrd(p, sOUT, 66, f"s{sT2}", 204800)
    p(f"s_mov_b32 s{sDBG}, s68\ns_mov_b32 s{sDBG+1}, s69\ns_mov_b32 s{sDBG+2}, 256\ns_mov_b32 s{sDBG+3}, 0x20000")
    p("s_mov_b32 s66, s70\ns_mov_b32 s67, s71")
    p(f"s_lshl_b32 s{sT}, s{sB}, 3\ns_add_u32 s{sT}, s{sT}, s{sHG}\ns_lshl_b32 s{sT3}, s{sT}, 19\ns_lshl_b32 s{sPa}, s{sPi}, 17\ns_add_u32 s{sT3}, s{sT3}, s{sPa}")
    mksrd(p, sK, 58, f"s{sT3}", 131072); mksrd(p, sV, 60, f"s{sT3}", 131072)
    p(f"s_mul_i32 s{sT3}, s{sT}, {SLAB}"); mksrd(p, sPO, 66, f"s{sT3}", SLAB)
    p(f"s_lshl_b32 s{sT2}, s{sT2}, 3"); mksrd(p, sPA, 66, f"s{sT2}", 8 * SLAB)
    p(f"s_lshl_b32 s{sT2}, s{sB}, 10\ns_add_u32 s{sT2}, s{sT2}, {FLG}"); mksrd(p, sFL, 66, f"s{sT2}", 1024)
    p(f"s_mul_i32 s{sT2}, s{sHG}, {512*1280}"); mksrd(p, sWO, 64, f"s{sT2}", 512 * 1280)
    if PROF: p("s_mov_b32 s65, s100")
    p(f"s_mov_b32 s{sC}, {f2u(SCALE)}\ns_mov_b32 s{sMsk}, 0xffff0000")
    p(f"v_bfe_u32 v4, v0, 2, 2\nv_lshl_add_u32 v4, v4, 1, v3\nv_mul_u32_u24 v{vTl}, {PCS}, v4\nv_lshl_add_u32 v{vTl}, v5, 9, v{vTl}")
    NAT = opts.get('nat', 1); vTn = 219 if NAT else vTl
    p(f"v_and_b32 v4, 0x30, v{vLin}")
    if NAT: p(f"v_lshrrev_b32 v6, 1, v4\nv_add_u32 v{vTn}, v{vTl}, v6")
    p(f"v_add_u32 v{vTl}, v{vTl}, v4")
    HS = 32 if NAT else 8
    p(f"v_and_b32 v4, 3, v0\nv_bfe_u32 v6, v0, 2, 1\nv_lshl_add_u32 v4, v4, 1, v6\nv_mul_u32_u24 v7, {PCS}, v4\nv_bfe_u32 v6, v0, 3, 1\nv_lshl_add_u32 v7, v6, 9, v7")
    p(f"v_xor_b32 v6, 1, v1\nv_lshl_add_u32 v8, v6, 4, v7\nv_add_u32 v8, 256, v8\nv_lshl_add_u32 v7, v1, 4, v7")
    p(f"s_mul_i32 s{sMK}, s{sPi}, {K1}")
    p(f"v_add_u32 v{vKa0}, s{sMK}, v7\nv_add_u32 v{vKa1}, s{sMK}, v8\ns_add_u32 s{sMV}, s{sMK}, {V0}\nv_add_u32 v{vVa}, s{sMV}, v{vTn}")
    p(f"s_and_b32 s{sT}, s{sWave}, 1\ns_mul_i32 s{sT2}, s{sT}, {4*PCS}\ns_add_u32 s{sMK}, s{sMK}, s{sT2}\ns_add_u32 s{sMV}, s{sMV}, s{sT2}")
    p(f"v_add_u32 v{vXa0}, {XR}, v7\nv_add_u32 v{vXa1}, {XR}, v8")
    p(f"s_cmp_eq_u32 s{sT}, 0\ns_cbranch_scc1 L_x0")
    p(f"v_add_u32 v{vXa0}, {XR+2*SLOT}, v8\nv_add_u32 v{vXa1}, {XR+3*SLOT}, v7")
    p("L_x0:")
    p(f"s_mul_i32 s{sT2}, s{sT}, 20480\ns_lshl_b32 s{sT3}, s{sPi}, 11\ns_add_u32 s{sT2}, s{sT2}, s{sT3}\nv_add_u32 v{vSt}, s{sT2}, v{vLin}")
    p(f"s_lshr_b32 s{sT2}, s{sHG}, 2\ns_and_b32 s{sT3}, s{sHG}, 3\ns_lshl_b32 s{sT3}, s{sT3}, 2\ns_add_u32 s{sT3}, s{sT3}, s{sWave}")
    p(f"s_mul_i32 s{sPa}, s{sT2}, 20480\ns_lshl_b32 s{sPb}, s{sT3}, 8\ns_add_u32 s{sPa}, s{sPa}, s{sPb}\ns_mov_b32 s{sPb}, {SLAB}")
    p(f"v_mul_lo_u32 v{vOfs}, s{sPb}, v1\nv_add3_u32 v{vOfs}, v{vOfs}, v2, s{sPa}")
    p(f"s_mul_i32 s{sPa}, s{sT2}, {80*1280}\ns_lshl_b32 s{sPb}, s{sT3}, 4\ns_add_u32 s{sPa}, s{sPa}, s{sPb}")
    if NAT: p(f"s_lshl_b32 s{sPb}, s{sWave}, 3\ns_sub_u32 s{sPa}, s{sPa}, s{sPb}")
    p(f"v_and_b32 v4, 15, v0\nv_lshl_add_u32 v6, v5, 4, v4\nv_mul_u32_u24 v{vOfo}, 1280, v6\nv_lshl_add_u32 v{vOfo}, v3, {5 if NAT else 3}, v{vOfo}\nv_add_u32 v{vOfo}, s{sPa}, v{vOfo}")
    p(f"v_mov_b32 v6, {OOB}\nv_cmp_gt_u32 s[{sT2}:{sT2+1}], 32, v0\nv_cndmask_b32 v{vOf3}, v6, v{vOfo}, s[{sT2}:{sT2+1}]")
    p(f"v_and_b32 v6, 1, v0\nv_lshlrev_b32 v6, 4, v6\nv_mov_b32 v9, 0x3f80\nv_lshlrev_b32 v6, v6, v9\nv_lshrrev_b32 v4, 1, v4")
    for r in range(8):
        p(f"v_cmp_eq_u32 s[{sT2}:{sT2+1}], {r}, v4\nv_cndmask_b32 v{SEL+r}, 0, v6, s[{sT2}:{sT2+1}]")
    for r in range(4): p(f"v_mov_b32 v{ONE+r}, 0x3f803f80")
    p(f"v_mov_b32 v{vZ}, 0\nv_mov_b64 {vr(TT,2)}, 0\nv_mov_b64 {vr(TT+2,2)}, 0")
    zacc = [f"v_mfma_f32_32x32x16_bf16 {vr(16*i,16)}, {vr(TT,4)}, {vr(TT,4)}, 0" for i in range(10)]
    p(f"s_lshl_b32 s{sT}, s{sHG}, 3\ns_add_u32 s{sT}, s{sT}, s{sWave}\ns_cmp_eq_u32 s{sT}, 1\ns_cbranch_scc1 L_fi")
    p("L_fib:")
    if opts.get('cw', 1):
        p(f"s_getpc_b64 s[{sT2}:{sT2+1}]")
        p("L_pc:")
        p(f"s_sub_u32 s{sT2}, s{sT2}, L_pc-{KN}\ns_subb_u32 s{sT2+1}, s{sT2+1}, 0")
        p(f"s_lshr_b32 s{sT}, s2, 3\ns_lshl_b32 s{sT}, s{sT}, 1\ns_add_u32 s{sT}, s{sT}, s{sPi}\ns_lshl_b32 s{sT}, s{sT}, 10\ns_min_u32 s{sT}, s{sT}, L_code_end-{KN}-1024")
        p(f"v_add_u32 v196, s{sT}, v{vLin}\ns_bitcmp1_b32 s{sWave}, 0\ns_cbranch_scc1 L_ncw")
        p(f"global_load_dwordx4 {vr(WD,4)}, v196, s[{sT2}:{sT2+1}]")
        p("L_ncw:")
    DRY = opts.get('dry', 0)
    if DRY:
        for z in zacc: p(z)
        p(f"v_mfma_f32_32x32x16_bf16 {vr(160,16)}, {vr(TT,4)}, {vr(TT,4)}, 0\nv_mfma_f32_32x32x16_bf16 {vr(176,16)}, {vr(TT,4)}, {vr(TT,4)}, 0")
        p(f"v_mov_b32 v{vDk}, {OOB}\nv_mov_b32 v{vDv}, {OOB}\ns_mov_b32 s{sRa}, s{sMK}\ns_mov_b32 s{sRb}, s{sMV}\ns_mov_b32 s{sMK}, 0x30000\ns_mov_b32 s{sMV}, 0x30000\ns_mov_b32 s{sDry}, 1\ns_mov_b64 vcc, 0")
        for w, l in ((1, "l1"), (2, "l3"), (3, "e13")): p(f"s_cmp_eq_u32 s{sWave}, {w}\ns_cbranch_scc1 L_A_{l}")
        p("s_branch L_A_m2")
        p("L_dry_done:")
        p(f"s_mov_b32 s{sMK}, s{sRa}\ns_mov_b32 s{sMV}, s{sRb}\ns_mov_b32 s{sDry}, 0\ns_waitcnt lgkmcnt(0)")
    side("L_fi:")
    side(f"buffer_store_dwordx4 {vr(TT,4)}, v{vLin}, {srd(sFL)}, 0 offen sc1\ns_waitcnt vmcnt(0)")
    side(f"s_lshl_b32 s{sT}, s{sB}, 3\nv_mov_b32 v196, s{sT}\nv_mov_b32 v197, 1\ns_mov_b64 exec, 1")
    side(f"buffer_atomic_add v197, v196, {srd(sDBG)}, 0 offen sc1\ns_mov_b64 exec, -1\ns_branch L_fib")

    def kv_ops(isk, tile4):
        base, vo, sr = (sMK, vDk, sK) if isk else (sMV, vDv, sV)
        slot = tile4 & 3 if isk else (tile4 + 2) & 3
        o = [f"s_add_u32 m0, s{base}, {slot*SLOT+32*j}\ns_nop 0\nbuffer_load_dwordx4 v{vo}, {srd(sr)}, 0 offen offset:{1024*j} nt lds" for j in range(4)]
        o[-1] += f"\nv_add_u32 v{vo}, 0x2000, v{vo}"
        return o

    stamp(p, 3, 4)
    if PST == 4:
        p("s_waitcnt vmcnt(26)"); stamp(p, 4, 4); p("s_waitcnt vmcnt(17)"); stamp(p, 5, 4); p("s_waitcnt vmcnt(9)"); stamp(p, 6, 4); p("s_waitcnt vmcnt(0)"); stamp(p, 7, 4)
    p(f"s_mov_b32 s{sMK2}, s{sMK}\ns_mov_b32 s{sMV2}, s{sMV}")
    p("L_round:")
    kvinit = f"s_and_b32 s{sT}, s{sWave}, 1\ns_lshl_b32 s{sT}, s{sT}, 12\nv_add_u32 v{vDv}, s{sT}, v{vLin}\nv_bfe_u32 v{t0}, v{vLin}, 8, 1\nv_lshlrev_b32 v{t0}, 4, v{t0}\nv_xor_b32 v{vDk}, v{t0}, v{vDv}"
    kvadv = "\n".join(f"s_add_u32 s{s_}, s{s_}, 262144\ns_addc_u32 s{s_+1}, s{s_+1}, 0" for s_ in (sK, sV))
    p(kvinit)
    p(f"s_cmp_eq_u32 s{sZ}, 2\ns_cselect_b32 s{sMK}, 0x30000, s{sMK2}\ns_cselect_b32 s{sMV}, 0x30000, s{sMV2}\ns_cbranch_scc0 L_z1")
    p(f"v_mov_b32 v{vDk}, {OOB}\nv_mov_b32 v{vDv}, {OOB}")
    p("L_z1:")
    p(f"s_mul_i32 s{sT}, s{sPi}, {2*SLOT}\nv_add_u32 v{tA}, s{sT}, v{vTl}\nv_add_u32 v{tB}, {K1}, v{tA}\nv_add_u32 v{tC}, {V0}, v{tA}")
    p(f"s_add_u32 s{sRa}, s{sHS}, {K0}\ns_add_u32 s{sRb}, s{sHS}, {K1}\ns_add_u32 s{sRc}, s{sHS}, {V0}\ns_mov_b32 s{sIt}, 0")
    p(f"v_mov_b64 {vr(TT,2)}, 0\nv_mov_b64 {vr(TT+2,2)}, 0")
    for z in zacc: p(z)
    xb = lambda t, j: 16 * t + 4 * j
    xt = lambda t, j: 80 + 8 * t + 4 * (j - 2)
    qacc = lambda nt, t: 32 * t + 4 * nt
    for r in range(8): p(f"v_accvgpr_write_b32 a{aF+r}, 0")
    for t in range(5):
        for r in range(4): p(f"v_accvgpr_write_b32 a{xb(t,3)+r}, 0")
    p(f"s_cmp_eq_u32 s{sRnd}, 1\ns_cbranch_scc1 L_rw")
    p(wpre(K0, 0))
    for o in wops()[opts.get('iw', 4):]: p(o)
    p("L_rw:")
    p("s_waitcnt vmcnt(0)\ns_barrier")
    stamp_r(p, 1, 4, "q"); stamp(p, 1, 1)
    def xread(t, j): return f"ds_read_b128 {ar(xb(t,j) if j < 2 else xt(t,j),4)}, v{[vXa0,vXa1][t&1]} offset:{(t>>1)*SLOT+64*j}"
    for j in range(4):
        for t in range(5): p(xread(t, j))
        if j == 1: p("s_waitcnt lgkmcnt(0)")
    p(f"s_cmp_eq_u32 s{sRnd}, 1\ns_cbranch_scc1 L_rw2")
    for o in wops(sRb, 64 * 8192): p(o)
    p("L_rw2:")
    p("s_waitcnt lgkmcnt(0)\ns_barrier")
    HQ = 2
    NS = opts.get('ns', 3)
    def gunit(rdtxt, mf, streams, vm=None, T=None):
        lg = Q(p, "lgkmcnt", 15); tok = {0: 0, 1: 0}
        G = Gaps()
        for m in range(14):
            for e in range(2): G.pin(5 * m + 5 + e, ("RD", m + 4, e))
        for m in range(2, 16): G.reserve(5 * m - 1)
        for seq, gaps in streams: G.stream(seq, gaps)
        def rd(m, e): lg.room(1); p(rdtxt(m, e)); tok[m] = lg.issue()
        for m in (2, 3):
            for e in range(2): rd(m, e)
        for m in range(16):
            lg.wait(tok[m])
            for t in range(5):
                p(mf(m, t))
                for o in G.items[5 * m + t]:
                    if isinstance(o, str): p(o)
                    elif o[0] == "RD": rd(o[1], o[2])
                    elif o[0] == "DS": lg.room(1); p(o[1]); lg.issue()
                    elif o[0] == "W": vm.wait(T.get(o[1], 0))
                    else:
                        p(o[1])
                        if vm:
                            tk = vm.issue()
                            if o[2]: T[o[2]] = tk
    def qunit(u, dm, fill, endw, span=76):
        def rdtxt(m, e):
            f = m - HQ; ks = f >> 3; nt = f & 7
            return f"ds_read_b64_tr_b16 {ar(FB(m)+2*e,2)}, v{[tA,tB][u]} offset:{ks*SLOT+e*256+(nt>>1)*64+(nt&1)*8}"
        def mf(m, t):
            f = m - HQ
            j = (2 * u + (f >> 3)) & 3 if f >= 0 else (2 * u - 1) & 3
            return m16(vr(qacc(f & 7, t), 4), ar(FB(m), 4), ar(xb(t, j), 4))
        gunit(rdtxt, mf, [(split(dm), list(range(0, span)))] + fill)
        p(endw)
    movs = [([(f"v_accvgpr_mov_b32 a{xb(t,j)+r}, a{xt(t,j)+r}", 1) for j in (2, 3) for t in range(5) for r in range(4)], list(range(0, 79)))]
    xrd = [([(("DS", xread(t, j)), 1) for j in (2, 3, 0, 1) for t in range(5)], list(range(1, 70)))]
    rot = (f"v_mov_b32 v{t0}, v{tC}\nv_mov_b32 v{tC}, v{tB}\nv_mov_b32 v{tB}, v{tA}\nv_mov_b32 v{tA}, v{t0}\n"
           f"s_mov_b32 s{sT}, s{sRc}\ns_mov_b32 s{sRc}, s{sRb}\ns_mov_b32 s{sRb}, s{sRa}\ns_mov_b32 s{sRa}, s{sT}")
    WQ = 0
    vPv, vPk, vWv, vWk = 221, 247, 218, 220
    LR = 160; aSR = 120
    kvs = []
    for i in range(10):
        kvs += [(f"v_accvgpr_write_b32 a{aSR+4*i+r}, v{LR+4*i+r}", 1) for r in range(4)]
        if i < 8: kvs.append((("VM", f"buffer_load_dwordx4 {vr(LR+4*i,4)}, v{vPv}, {srd(sV)}, {'s%d' % sSt if i >= 4 else '0'} offen offset:{1024*(i&3)} nt", None), 1.5))
        else: kvs.append((("VM", f"buffer_load_dwordx4 {vr(LR+4*i,4)}, v{vPk}, {srd(sK)}, 0 offen offset:{1024*(i&1)} nt", None), 1.5))
    kvs += [(f"v_add_u32 v{vPv}, 0x4000, v{vPv}", 1), (f"v_add_u32 v{vPk}, 0x800, v{vPk}", 1)]
    p(f"v_mov_b32 v{vPv}, {OOB}\nv_mov_b32 v{vPk}, {OOB}\ns_movk_i32 s{sSt}, 0x2000")
    p("L_Q_loop:")
    stamp_it(p, 1, "q", [(0, 2), (2, 3)])
    p(f"s_add_u32 s{sCur}, s{sCur}, 1\ns_cmp_ge_u32 s{sCur}, 5\ns_cselect_b32 s{sCur}, 0, s{sCur}")
    p(xpre); p(f"s_lshl_b32 s{sPb}, s{sCur}, 20\ns_add_u32 s{sPb}, s{sPb}, s{sGB}")
    p(f"s_cmp_eq_u32 s{sIt}, 3\ns_cselect_b32 s{sPa}, 0x30000, s{sRa}")
    p(f"s_cmp_eq_u32 s{sIt}, 2\ns_cbranch_scc1 L_Q_en")
    p("L_Q_enb:")
    side("L_Q_en:"); side(f"v_mov_b32 v{vPv}, v{vDv}\nv_add_u32 v{vPk}, 0x6000, v{vDk}\ns_branch L_Q_enb")
    qunit(0, xops() + wops(sRc), movs, f"s_waitcnt vmcnt(8) lgkmcnt(0)\ns_barrier", span=76)
    qunit(1, wops(sPa, 64 * 8192), xrd + [(kvs, list(range(0, opts.get('kvspan', 60))))], rot + f"\ns_add_u32 s{sIt}, s{sIt}, 1\ns_cmp_lt_u32 s{sIt}, 4\ns_waitcnt vmcnt(18) lgkmcnt(0)\ns_barrier")
    p("s_cbranch_scc1 L_Q_loop")
    stamp(p, 4, 1)
    p(f"s_add_u32 s{sPa}, s{sHS}, {XR}\ns_mul_i32 s{sT}, s{sPi}, {2*SLOT}\ns_add_u32 s{sT}, s{sT}, {XR}\nv_add_u32 v{tB}, s{sT}, v{vTl}")
    p(f"v_add_u32 v{vWv}, s{sMV}, v{vLin}\nv_add_u32 v{vWk}, s{sMK}, v{vLin}\nv_add_u32 v{vDv}, 0x8000, v{vDv}")
    kpre = kv_ops(True, 0) + kv_ops(True, 1) + kv_ops(True, 2) + [f"v_add_u32 v{vDk}, 0x2000, v{vDk}"]
    def kvw(st, i):
        src = ar(aSR + 4 * i, 4) if st == 0 else vr(LR + 4 * i, 4)
        if i < 8: return f"ds_write_b128 v{vWv}, {src} offset:{((2*st+(i>>2)+2)&3)*SLOT+(i&3)*PCS}"
        return f"ds_write_b128 v{vWk}, {src} offset:{3*SLOT+(2*st+(i&1))*PCS}"
    NPF = opts.get('npf', 0); pfm = " nt" if opts.get('pfnt', 1) else ""
    pf = []
    for k in range(NPF):
        for isk in (True, False):
            for jj in range(4):
                pf.append((f"s_mov_b32 s{sT3}, {(3+k if False else 4+k)*8192}\n" if jj == 0 and isk else "") + f"buffer_load_dwordx4 {vr(WD,4)}, v{vPv}, {srd(sK if isk else sV)}, s{sT3} offen offset:{1024*jj}{pfm}")
    q4 = len(pf) // 4
    p(f"v_subrev_u32 v{vPv}, 0x8000, v{vDv}")
    kw = [(("DS", kvw(st, i)), 2) for st in range(2) for i in (8, 9)]
    qunit(0, wops(sPa, 64 * 8192) + kpre[:8], movs, "s_waitcnt vmcnt(8) lgkmcnt(0)\ns_barrier")
    qunit(1, kpre[8:] + pf[:q4], [(kw, list(range(0, 60)))], f"s_waitcnt vmcnt({8+q4}) lgkmcnt(0)\ns_barrier")
    stamp(p, 5, 1)
    vw = [kvw(st, i) for st in range(2) for i in range(8)]
    for m in range(HQ):
        for t in range(5): p(m16(vr(qacc(6 + m, t), 4), ar(FB(m), 4), ar(xb(t, 3), 4)))
    for i in range(80):
        p(f"v_pk_mul_f32 {vr(2*i,2)}, {vr(2*i,2)}, s[{sC}:{sC+1}] op_sel_hi:[1,0]")
        if i >= 2: p(f"v_cvt_pk_bf16_f32 v{i-2}, v{2*i-4}, v{2*i-3}")
        if i % 5 == 0:
            if i == 40: p("s_waitcnt lgkmcnt(0)")
            p(vw[i // 5])
        if i % 10 == 3 and i // 10 < q4: p(pf[q4 + i // 10])
    p("v_cvt_pk_bf16_f32 v78, v156, v157\nv_cvt_pk_bf16_f32 v79, v158, v159\ns_waitcnt lgkmcnt(0)")
    for r in range(0, 20, 2): p(f"v_mov_b64 {vr(NM+r,2)}, 0")
    p(f"s_cmp_eq_u32 s{sZ}, 2\ns_cbranch_scc1 L_zsave")
    stamp(p, 6, 1); stamp(p, 7, 1)
    stamp_r(p, 2, 5, "a")

    HB = 2
    DRYN = {"m2": "L_A_m1", "m1": "L_A_z0", "z0": "L_dry_done", "l1": "L_A_l2", "l2": "L_dry_done", "l3": "L_A_l0", "l0": "L_dry_done", "e13": "L_A_e14", "e15": "L_dry_done"}
    def sm_ops(b):
        seq = []
        for k in range(43):
            if k < 40: seq.append((f"v_exp_f32 v{b+k}, v{b+k}", 2))
            if k >= 4 and k % 2 == 0:
                i = (k - 4) // 2
                seq.append((f"v_cvt_pk_bf16_f32 v{b+8*(i>>2)+(i&3)}, v{b+2*i}, v{b+2*i+1}", 1))
        return seq
    W1 = list(range(24, 80)) + list(range(0, 9))
    def oops(vo): return [f"s_add_u32 m0, s{sPa}, {pc*PCS}\ns_add_u32 s{sT}, s{sPb}, {(PR*(pc&1)+(pc>>1))*1280}\nbuffer_load_dwordx4 v{vo}, {srd(sWO)}, s{sT} offen lds" for pc in range(8)]
    r0 = xops() + wops(sPa) + wops(sRa, 64 * 8192)
    r0[0] = f"s_add_u32 s{sGB}, s{sGB}, 512\ns_mov_b32 s{sCur}, s{sR0}\n{xpre}\n{wpre(K0, 0)}\ns_add_u32 s{sRa}, s{sHS}, {K1}\n" + r0[0]
    r0s = [r0[4*i:4*i+4] for i in range(6)] + [r0[24:26], [], []]
    wm = [f"s_mov_b32 s{sT}, {(k>>2)*256+(k&3)*128*1280}\nbuffer_load_dwordx4 {vr(WD,4)}, v{vWarm}, {srd(sWO)}, s{sT} offen" for k in range(20)]
    o0 = oops(vWoA); o1 = oops(vWoA)
    o0[0] = f"s_mul_i32 s{sGB}, s{sWave}, {32*1280}\ns_add_u32 s{sPa}, s{sHS}, {K0}\ns_mov_b32 s{sPb}, s{sGB}\n" + o0[0]
    o1[0] = f"s_add_u32 s{sPa}, s{sHS}, {K1}\ns_add_u32 s{sPb}, s{sGB}, {256*1280}\n" + o1[0]
    r1s = [wm[0:4], wm[4:7], wm[7:10], wm[10:13], wm[13:16], wm[16:20], [], o0, o1]
    r2s = [[kvadv, kvinit] + kv_ops(True, 0), kv_ops(True, 1), kv_ops(True, 2), kv_ops(True, 3), kv_ops(False, 0), kv_ops(False, 1), [], [], []]
    def site(k):
        p(f"s_or_b32 s{sT}, s{sRnd}, s{sZ}\ns_cbranch_scc1 L_s{k}a")
        for o in r0s[k]: p(o)
        p(f"L_s{k}b:")
        side(f"L_s{k}a:")
        side(f"s_cmp_eq_u32 s{sZ}, 1\ns_cbranch_scc1 L_s{k}c")
        for o in r1s[k]: side(o)
        side(f"s_branch L_s{k}b")
        side(f"L_s{k}c:")
        for o in r2s[k]: side(o)
        side(f"s_branch L_s{k}b")
    POS = []
    for m in range(16):
        POS += [(m, t) for t in range(5)]
        if 3 <= m < 8: POS.append(('L', m - 3))
    NPOS = len(POS); first_of = {m: POS.index((m, 0)) for m in range(16)}
    cap = {x: 2.0 for x in range(NPOS)}; pins = {x: [] for x in range(NPOS)}
    for m in range(14):
        x = POS.index((m, 4)) + 1
        for e in range(2 if m + 4 < 10 else 1): pins[x + e].append(('RD', m + 4, e)); cap[x + e] -= 1
    for m in range(2, 16): cap[first_of[m] - 1] -= 1
    XC = opts.get('xc', 24); XP = first_of[10] + 4
    pins[XC].append('CHECK'); cap[XC] -= 2; pins[XP].append('PT2'); cap[XP] -= 1
    order = list(range(XC + 1, NPOS)) + list(range(0, XC + 1)); n1 = NPOS - XC - 1
    mreg = [8 * t + r for t in range(5) for r in range(4)] + [8 * t + 4 + r for t in range(5) for r in range(4)]
    mx = [('MX', TT, None, mreg[0:3]), ('MX', TT + 1, None, mreg[3:6])] + [('MX', TT + ((i >> 1) & 1), 1, mreg[i:i+2]) for i in range(6, 40, 2)] + [('MF',)]
    tmpl = greedy(order, cap, [
        dict(items=[(('EX', k), 2, None) for k in range(40)], lo=0, hi=n1 + 8),
        dict(items=[(('CV', i), 1, (0, 2 * i + 1)) for i in range(20)], lo=3, hi=n1 + 10),
        dict(items=[(o, 1, None) for o in mx[:9]], lo=n1 + 2, hi=n1 + 13),
        dict(items=[(o, 1, None) for o in mx[9:]], lo=n1 + 14, hi=n1 + XC - 1),
        dict(items=[(('DM', i), 1, (4, i - 1) if i % 2 else None) for i in range(6)], lo=n1, hi=n1 + XC - 1),
        dict(items=[(('DM', i), 1, (5, i - 7) if i % 2 else None) for i in range(6, 16)], lo=0, hi=n1 - 4)])
    def abody(tag, nm, held=True, pv=True, qk=True, zc=False, first=False, dma=True, smt=True, smh=True, endw="vmcnt(16)", bar=True, sites={}, fill={}):
        Sn = SS[nm & 1]; Sn1 = SS[(nm + 1) & 1]
        lg = Q(p, "lgkmcnt", 15); tok = {0: 0, 1: 0}
        p(f"L_A_{tag}:")
        slot = (nm + 2) & 3
        ms = ([0, 1] if held else []) + (list(range(2, 10)) + ['L'] if pv else []) + (list(range(10, 16)) if qk else [])
        done = set()
        def rd(m, e):
            if (m, e) in done or (m < 10 and not pv) or (m >= 10 and not qk): return
            done.add((m, e)); lg.room(1)
            if m < 10:
                dt = m - 2
                p(f"ds_read_b64_tr_b16 {ar(FB(m)+2*e,2)}, v{vVa} offset:{slot*SLOT+e*256+(dt>>1)*64+(dt&1)*HS}")
            else:
                k = m - 10
                p(f"ds_read_b128 {ar(FB(m),4)}, v{[vKa0,vKa1][k>>2]} offset:{slot*SLOT+64*(k&3)}")
            tok[m] = lg.issue()
        dm = []
        if dma:
            for o in kv_ops(True, nm + 1) + (kv_ops(False, nm + 3) if dma != 'k' else []):
                l = o.replace("s_nop 0\n", "").split("\n"); dm += [l[0], "\n".join(l[1:])]
        for m in ((2, 3) if pv else (10, 11)):
            for e in range(2 if pv else 1): rd(m, e)
        for x, (m, t) in enumerate(POS):
            if m in ms:
                if m == 'L': p(m16(vr(LL + 4 * t, 4), vr(ONE, 4), vr(Sn + 8 * t, 4), '0' if zc else None))
                else:
                    if t == 0: lg.wait(tok[m])
                    if m < 2: p(m16(vr(Sn1 + 8 * t + 4, 4), ar(FB(m), 4), vr(QR + 16 * t + 4 * (2 + m), 4)))
                    elif m < 10: p(m16(ar(oacc(m - 2, t), 4), ar(FB(m), 4), vr(Sn + 8 * t, 4), '0' if zc else None))
                    else:
                        k = m - 10
                        p(m16(vr(Sn + 8 * t + 4 * (k >> 2), 4), ar(FB(m), 4), vr(QR + 16 * t + 4 * (k & 3), 4), vr(NM + 4 * t, 4) if k & 3 == 0 else None))
            b = Sn1 if x > XC else Sn; on = smh if x > XC else smt
            for o in tmpl[x] + pins[x]:
                if o == 'CHECK':
                    if first: call(p, "S_first")
                    elif smh:
                        p(f"v_cmp_lt_f32 vcc, 0x41000000, v{TT}\ns_cbranch_vccnz L_rr{tag}")
                        p(f"L_rb{tag}:")
                        side(f"L_rr{tag}:"); call(side, f"S_rare{(nm+1)&1}"); side(f"s_branch L_rb{tag}")
                elif o == 'PT2':
                    if smh and not first:
                        p(f"s_cbranch_vccnz L_p2{tag}")
                        p(f"L_pb{tag}:")
                        side(f"L_p2{tag}:"); call(side, "S_scale"); side(f"s_branch L_pb{tag}")
                elif o[0] == 'RD': rd(o[1], o[2])
                elif o[0] == 'EX':
                    if on: p(f"v_exp_f32 v{b+o[1]}, v{b+o[1]}")
                elif o[0] == 'CV':
                    i = o[1]
                    if on: p(f"v_cvt_pk_bf16_f32 v{b+8*(i>>2)+(i&3)}, v{b+2*i}, v{b+2*i+1}")
                elif o[0] == 'MX':
                    if smh and not first: p(f"v_max3_f32 v{o[1]}, " + ", ".join(([f"v{o[1]}"] if o[2] else []) + [f"v{Sn1+r}" for r in o[3]]))
                elif o[0] == 'MF':
                    if smh and not first: p(f"v_max_f32 v{TT}, v{TT}, v{TT+1}")
                elif o[0] == 'DM':
                    if o[1] < len(dm): p(dm[o[1]])
            if x in sites: site(sites[x])
            for o in fill.get(x, []): p(o)
        if bar: p(f"s_waitcnt {endw} lgkmcnt(0)")
    def xl(op, a, b):
        return (f"v_mov_b32 v{b}, v{a}\nv_permlane16_swap_b32 v{a}, v{b}\n{op} v{a}, v{a}, v{b}\n"
                f"v_mov_b32 v{b}, v{a}\nv_permlane32_swap_b32 v{a}, v{b}\n{op} v{a}, v{a}, v{b}")
    def shiftsub(name, n, first):
        q(f"{name}:")
        for t in range(5):
            b = n + 8 * t
            q(f"v_max3_f32 v{TT}, v{b}, v{b+1}, v{b+2}\nv_max3_f32 v{TT}, v{TT}, v{b+3}, v{b+4}\nv_max3_f32 v{TT}, v{TT}, v{b+5}, v{b+6}\nv_max_f32 v{TT}, v{TT}, v{b+7}")
            q(xl("v_max_f32", TT, TT + 1))
            if not first: q(f"v_max_f32 v{TT}, 0, v{TT}\nv_exp_f32 v{FACS[t]}, -v{TT}")
            for r in range(8): q(f"v_sub_f32 v{b+r}, v{b+r}, v{TT}")
            for r in range(4): q(f"v_sub_f32 v{NM+4*t+r}, v{NM+4*t+r}, v{TT}")
        ret(q, name)
    shiftsub("S_rare0", SS[0], False); shiftsub("S_rare1", SS[1], False); shiftsub("S_first", SS[0], True)
    q("S_scale:")
    for dt in range(8):
        for t in range(5):
            a = oacc(dt, t)
            for r in range(4): q(f"v_accvgpr_read_b32 v{TT+4+r}, a{a+r}")
            for r in (0, 2): q(f"v_pk_mul_f32 {vr(TT+4+r,2)}, {vr(TT+4+r,2)}, {vr(FACS[t],2)} op_sel_hi:[1,0]")
            for r in range(4): q(f"v_accvgpr_write_b32 a{a+r}, v{TT+4+r}")
    for t in range(5):
        for r in (0, 2): q(f"v_pk_mul_f32 {vr(LL+4*t+r,2)}, {vr(LL+4*t+r,2)}, {vr(FACS[t],2)} op_sel_hi:[1,0]")
    ret(q, "S_scale")
    stamp(p, 1, 3)
    abody("m2", 2, held=False, pv=False, smt=False, smh=False, dma=False, endw=f"vmcnt({4+2*q4})"); p("s_barrier")
    abody("m1", 3, pv=False, smt=False, first=True, dma='k', endw=f"vmcnt({4+3*q4})", fill=spread([(o, 1) for o in pf[2*q4:3*q4]], list(range(45, 84))) if q4 else {}); p("s_barrier")
    abody("z0", 0, zc=True, dma='k', endw="vmcnt(63)", fill=spread([(o, 1) for o in (pf[3*q4:] if q4 >= 4 else pf[3*q4:] + [f"buffer_load_dword v{WD}, v{vPv}, {srd(sV)}, 0 offen"] * 4)], list(range(45, 84)))); p(f"s_mov_b32 s{sIt}, 0\ns_barrier"); stamp(p, 2, 3)
    for nm in (1, 2, 3, 0):
        abody(f"l{nm}", nm)
        if nm == 0: p(f"s_add_u32 s{sIt}, s{sIt}, 1\ns_cmp_lt_u32 s{sIt}, 3")
        p("s_barrier")
    p("s_cbranch_scc1 L_A_l1")
    stamp(p, 3, 3)
    abody("e13", 1, dma=False, endw="vmcnt(0)"); p("s_barrier")
    stamp(p, 4, 3)
    abody("e14", 2, qk=False, dma=False, bar=False, sites={1: 0, 20: 1, 40: 2, 65: 3})
    def prd(J, t):
        tm = PT[(J, t)]
        return [f"v_accvgpr_read_b32 v{tm+4*h+r}, a{oacc(2*J+h,t)+r}" for h in range(2) for r in range(4)]
    PT = {}
    for t in range(5): PT[(0, t)] = SS[0] + 8 * t; PT[(1, t)] = QR + 16 * t + 8
    early = [o for J in range(2) for t in range(5) for o in prd(J, t)]
    xa = first_of[4] + 2; xb_ = first_of[6] + 2; xe = first_of[10]
    fl = spread([(o, 1) for o in early[:40]], list(range(xa, xb_ + 8)))
    for g, l in spread([(o, 1) for o in early[40:]], list(range(xb_ + 8, xe))).items(): fl.setdefault(g, []).extend(l)
    abody("e15", 3, held=False, qk=False, dma=False, smh=False, bar=False, sites={12: 4, 35: 5}, fill=fl)
    stamp(p, 5, 3)
    for t in range(5): p(f"v_rcp_f32 v{FACS[t]}, v{LL+4*t}")
    for J in range(4):
        if J < 3: site(6 + J)
        for t in range(5):
            if J >= 2:
                PT[(J, t)] = SS[1] + 8 * t if J == 2 else SS[0] + 8 * t
                for o in prd(J, t): p(o)
            tm = PT[(J, t)]
            for r in range(0, 8, 2): p(f"v_pk_mul_f32 {vr(tm+r,2)}, {vr(tm+r,2)}, {vr(FACS[t],2)} op_sel_hi:[1,0]")
            for r in range(4): p(f"v_cvt_pk_bf16_f32 v{QR+16*t+4*J+r}, v{tm+2*r}, v{tm+2*r+1}")
    stamp_r(p, 3, 6, "e"); stamp(p, 6, 3); stamp(p, 7, 3)
    p(f"s_cmp_eq_u32 s{sRnd}, 1\ns_cbranch_scc1 L_T")
    p(f"s_mov_b32 s{sRnd}, 1\ns_cmp_eq_u32 s{sZ}, 1\ns_cbranch_scc1 L_zswap")
    p(kvadv)
    p("L_zsave:")
    for r in range(80): p(f"v_accvgpr_write_b32 a{aSV+r}, v{QR+r}")
    p(f"s_cmp_eq_u32 s{sZ}, 1\ns_cbranch_scc1 L_zswap2\ns_lshr_b32 s{sZ}, s{sZ}, 1\ns_branch L_round")
    p("L_zswap:")
    p("s_waitcnt vmcnt(20)\ns_barrier")
    for o in kv_ops(False, 2): p(o)
    for r in range(80): p(f"v_accvgpr_read_b32 v{80+r}, a{aSV+r}")
    p("s_branch L_zsave")
    p("L_zswap2:")
    for r in range(0, 80, 2): p(f"v_mov_b64 {vr(QR+r,2)}, {vr(80+r,2)}")
    for r in range(0, 20, 2): p(f"v_mov_b64 {vr(NM+r,2)}, 0")
    p(f"s_mov_b32 s{sZ}, 0\ns_branch L_A_m2")

    q("S_odmb:")
    for o in oops(vWoB): q(o)
    ret(q, "S_odmb")
    SLP = opts.get('slp', 4)
    q("S_spin:")
    q(f"buffer_load_dword v{vPol}, v{vZ}, {srd(sFL)}, s{sFo} offen sc1\ns_waitcnt vmcnt(0)")
    q("S_spinc:")
    q(f"v_readfirstlane_b32 s{sT}, v{vPol}\ns_cmp_eq_u32 s{sT}, 8\ns_cbranch_scc1 L_spr\ns_sleep {SLP}\ns_branch S_spin")
    q("L_spr:"); ret(q, "S_spin|S_spinc")
    q("S_post:")
    q(f"s_cmp_lg_u32 s{sWave}, 0\ns_cbranch_scc1 L_pr\nv_mov_b32 v{t0}, 1\ns_mov_b64 exec, 1")
    q(f"buffer_atomic_add v{t0}, v{vZ}, {srd(sFL)}, s{sT2} offen sc1\ns_mov_b64 exec, -1")
    q("L_pr:"); ret(q, "S_post")
    def ld_op(li):
        sg = li >> 1; h = li & 1
        return f"s_add_u32 s{sT}, s{sPc}, {sg*4096+h*4*SLAB}\nbuffer_load_dwordx4 {vr(RB+4*li,4)}, v{vOs2}, {srd(sPA)}, s{sT} offen sc1"
    LSET = [range(0, 4), range(4, 8), range(8, 10)]
    def red_ops(k):
        d = RD + 4 * k
        o = [m16(vr(d, 4), vr(SEL + 4 * ((li >> 1) & 1), 4), vr(RB + 4 * li, 4), '0' if li % 4 == 0 else None) for li in LSET[k]]
        o2 = [f"v_cvt_pk_bf16_f32 v{d}, v{d}, v{d+1}", f"v_cvt_pk_bf16_f32 v{d+1}, v{d+2}, v{d+3}",
              ("VM", f"s_add_u32 s{sT2}, s{sPd}, {k*32*1280}\nbuffer_store_dwordx2 {vr(d,2)}, v{vOo3 if k == 2 else vOo2}, {srd(sOUT)}, s{sT2} offen", None)]
        return o, o2
    q("S_ld:")
    for li in range(10): q(ld_op(li))
    q("s_waitcnt vmcnt(0)")
    q("S_reda:")
    for o in red_ops(0)[0]: q(o)
    q("S_redb:")
    for k in (1, 2):
        for o in red_ops(k)[0]: q(o)
    for k in range(3):
        for o in red_ops(k)[1]: q(o if isinstance(o, str) else o[1])
    ret(q, "S_ld|S_reda|S_redb")
    def reduce_group(g):
        p(f"s_mov_b32 s{sPc}, {g*40960}\ns_movk_i32 s{sPd}, {g*256}"); call(p, "S_ld")

    p("L_T:")
    stamp(p, 1, 2)
    p("s_waitcnt vmcnt(16)")
    p(f"s_mov_b32 s{sT}, {EXA[0]}\ns_mul_i32 s{sT2}, s{sWave}, 20480\ns_add_u32 s{sT2}, s{sT2}, {V1-20480}\ns_cmp_eq_u32 s{sWave}, 0\ns_cselect_b32 s{sT2}, s{sT}, s{sT2}")
    p(f"v_add_u32 v{vR0}, s{sT2}, v{vLin}")
    p(f"s_xor_b32 s{sT3}, s{sWave}, 2\ns_mul_i32 s{sT2}, s{sT3}, 20480\ns_add_u32 s{sT2}, s{sT2}, {V1-20480}\ns_cmp_eq_u32 s{sT3}, 0\ns_cselect_b32 s{sT2}, s{sT}, s{sT2}")
    p(f"v_add_u32 v{vR1}, s{sT2}, v{vLin}")
    p(f"s_lshl_b32 s{sT}, s{sB}, 3\nv_mov_b32 v{t0}, s{sT}")
    p("L_isp:")
    p(f"buffer_load_dword v{vPol}, v{t0}, {srd(sDBG)}, 0 offen sc1")
    p("s_barrier")
    for step in range(2):
        for i in range(20):
            p(f"ds_write_b128 v{vR0}, {ar(aSV+4*i,4) if step == 0 else vr(QR+4*i,4)} offset:{1024*i}")
            if i % 10 == 9: p("s_waitcnt lgkmcnt(0)")
        p("s_barrier")
        for i in range(20):
            p(f"ds_read_b128 {ar(80*step+4*i,4)}, v{vR1} offset:{1024*i}")
            if i % 10 == 9: p("s_waitcnt lgkmcnt(0)")
        if step == 1:
            p("s_waitcnt vmcnt(0)")
            p("L_ick:")
            p(f"v_readfirstlane_b32 s{sT}, v{vPol}\ns_cmp_eq_u32 s{sT}, 1\ns_cbranch_scc1 L_iok")
            p(f"s_sleep 8\nbuffer_load_dword v{vPol}, v{t0}, {srd(sDBG)}, 0 offen sc1\ns_waitcnt vmcnt(0)\ns_branch L_ick")
            p("L_iok:")
        p("s_barrier")
    REG = [K0, K1, V0, V1]; TBr = [vR0, vR1, vR2, vR3]
    p(f"s_lshl_b32 s{sT}, s{sPi}, 7\nv_add_u32 v{vR0}, s{sT}, v{vTn}\nv_add_u32 v{vR1}, {K1}, v{vR0}\nv_add_u32 v{vR2}, {V0}, v{vR0}\nv_add_u32 v{vR3}, {V1}, v{vR0}")
    p(f"s_add_u32 s{sPa}, s{sHS}, {V0}\ns_mov_b32 s{sPb}, s{sGB}"); call(p, "S_odmb")
    p(f"v_mov_b32 v{vSt2}, {OOB}\nv_mov_b32 v{vOs2}, {OOB}\nv_mov_b32 v{vOo2}, {OOB}\nv_mov_b32 v{vOo3}, {OOB}")
    p(f"s_mov_b32 s{sIt}, 0\ns_mov_b32 s{sSt}, 0\ns_mov_b32 s{sPc}, 0\ns_mov_b32 s{sPd}, 0\ns_mov_b32 s{sFo}, 0\ns_mov_b32 s{sCol}, s{sGB}\ns_mov_b32 s{sRa}, s{sHS}")
    Bop = lambda qd, t, ts: [ar(aSV + 16 * t + 4 * ts, 4), vr(QR + 16 * t + 4 * ts, 4), ar(16 * t + 4 * ts, 4), ar(80 + 16 * t + 4 * ts, 4)][qd]
    tacc = lambda Jp, t, h: TA + 40 * Jp + 8 * t + 4 * h
    def st_ops(Jp, vo, back):
        o = []
        for t in range(5):
            tm = TMP + 4 * (t & 1); a = tacc(Jp, t, 0)
            o += [f"v_cvt_pk_bf16_f32 v{tm+i}, v{a+2*i}, v{a+2*i+1}" for i in range(4)]
            o.append(("VM", f"s_add_u32 s{sT3}, s{sSt}, {t*4096}\nbuffer_store_dwordx4 {vr(tm,4)}, v{vo}, {srd(sPO)}, s{sT3} offen offset:{1024*Jp} sc1", 'ps'))
        return o
    vm = Q(p, "vmcnt", 63); T = {}
    def tmf(qd, f, m):
        Jp = f >> 3; ts = (f >> 1) & 3; h = f & 1
        return [m16(vr(tacc(Jp, t, h), 4), ar(FB(m), 4), Bop(qd, t, ts), '0' if qd == 0 and ts == 0 else None) for t in range(5)]
    LAG = opts.get('lag', 2); PQ = opts.get('pq', 2)
    def period():
        for qd in range(4):
            D = (qd + 3) & 3
            if qd == 0:
                p(f"buffer_load_dword v{vPol}, v{vZ}, {srd(sFL)}, s{sFo} offen sc1"); T['poll'] = vm.issue()
            if qd == 1:
                p(f"s_add_u32 s{sCol}, s{sCol}, 256\ns_cmp_ge_u32 s{sIt}, {LAG}\ns_cbranch_scc1 L_T_ck")
                p("L_T_ckb:")
                T['pollw'] = vm.n - T['poll']
            if qd == PQ:
                p(f"s_lshl_b32 s{sT2}, s{sIt}, 7\ns_sub_u32 s{sT2}, s{sT2}, 128\ns_cbranch_scc1 L_T_np"); call(p, "S_post"); p("L_T_np:")
            if qd == 3:
                p(f"s_lshl_b32 s{sPd}, s{sIt}, 8\ns_sub_u32 s{sPd}, s{sPd}, {256*LAG}\ns_cselect_b32 s{sPd}, 0, s{sPd}\ns_cbranch_scc1 L_T_no\nv_mov_b32 v{vOo2}, v{vOfo}\nv_mov_b32 v{vOo3}, v{vOf3}")
                p("L_T_no:")
            p(f"s_add_u32 s{sPa}, s{sRa}, {REG[D]}\ns_add_u32 s{sPb}, s{sCol}, {(D&1)*256*1280}\ns_add_u32 s{sRb}, s{sPb}, {PR*1280}")
            vmo = []
            lds_ = list(LSET[qd - 1]) if qd >= 1 else []
            BU = opts.get('burst', 2)
            if BU:
                lds_ = []
                if qd == 1 and BU == 1: vmo += [("VM", ld_op(li), 'lb') for li in range(10)]
            for i in range(8):
                im = (i >> 1) * 1280
                vmo.append(("VM", f"s_add_u32 m0, s{sPa}, {i*PCS-im}\nbuffer_load_dwordx4 v{vWoA if D < 2 else vWoB}, {srd(sWO)}, s{sRb if i & 1 else sPb} offen offset:{im} lds", ('d', D)))
                if i % 2 and lds_: vmo.append(("VM", ld_op(lds_.pop(0)), ('l', qd - 1)))
            if WQ == 3:
                vmo.append(("VM", f"s_add_u32 s{sT}, s{sRc}, {qd*128*1280}\nbuffer_load_dwordx4 {vr(212,4)}, v{vWarm}, {srd(sWO)}, s{sT} offen", None))
                if qd == 0: p(f"s_add_u32 s{sRc}, s{sIt}, 2\ns_min_u32 s{sRc}, s{sRc}, 4\ns_lshl_b32 s{sRc}, s{sRc}, 8")
            if BU == 2 and qd == 1: vmo += [("VM", ld_op(li), 'lb') for li in range(10)]
            streams = []
            if qd == 0: streams.append((split(st_ops(1, vSt2, True) + [f"v_mov_b32 v{vSt2}, v{vSt}\ns_mul_i32 s{sSt}, s{sIt}, 40960"]), list(range(13, 49))))
            if qd == 3: streams.append((split(st_ops(0, vSt, False)), list(range(53, 80))))
            streams.append((split(vmo), list(range(0, 78))))
            rk = (qd + 1) & 3
            if BU:
                if qd == 0: streams.append(([(("W", 'lb'), 1)] + [(o, 1) for k in range(3) for o in red_ops(k)[0]], list(range(50, 78))))
                if rk == 3: streams.append((split([o for k in range(3) for o in red_ops(k)[1]]), list(range(0, 78))))
            elif rk < 3: streams.append(([(("W", ('l', rk)), 1)] + [(o, 1) for o in red_ops(rk)[0]], list(range(30, 50))))
            else: streams.append((split([o for k in range(3) for o in red_ops(k)[1]]), list(range(0, 78))))
            def rdtxt(m, e):
                f = m - 2; Jp = f >> 3; ts = (f >> 1) & 3; h = f & 1
                return f"ds_read_b64_tr_b16 {ar(FB(m)+2*e,2)}, v{TBr[qd]} offset:{ts*SLOT+e*256+Jp*64+h*HS}"
            gunit(rdtxt, lambda m, t: (tmf(qd, m - 2, m) if m >= 2 else tmf((qd - 1) & 3, 14 + m, m))[t], streams, vm, T)
            need = T.get(('d', (qd + 1) & 3), 0)
            if qd == PQ - 1: need = max(need, T['ps'])
            if qd == 1: need = max(need, T['poll'])
            vm.wait(need)
            if qd == 3: p(f"s_add_u32 s{sIt}, s{sIt}, 1\ns_cmp_lt_u32 s{sIt}, 5")
            p("s_waitcnt lgkmcnt(0)\ns_barrier")
    mark = len(p.ins)
    period()
    del p.ins[mark:]
    p("L_T_loop:")
    stamp_it(p, 2, "t", [(0, 2), (1, 3), (2, 4), (3, 5), (4, 6)])
    period()
    p("s_cbranch_scc1 L_T_loop")
    side("L_T_ck:")
    side(f"s_waitcnt vmcnt({min(63, T['pollw'])})"); call(side, "S_spinc")
    side(f"s_sub_u32 s{sPc}, s{sIt}, {LAG}\ns_mul_i32 s{sPc}, s{sPc}, 40960\ns_add_u32 s{sFo}, s{sFo}, 128\nv_mov_b32 v{vOs2}, v{vOfs}")
    side(f"s_cmp_lg_u32 s{sIt}, 4\ns_cbranch_scc1 L_T_ckb")
    side(f"v_mov_b32 v{vWoA}, {OOB}\nv_mov_b32 v{vWoB}, {OOB}\ns_mov_b32 s{sRa}, 0x28000\ns_branch L_T_ckb")
    for m in range(2):
        for o in tmf(3, 14 + m, m): p(o)
    p(f"s_movk_i32 s{sFo}, 384\nbuffer_load_dword v{vPol}, v{vZ}, {srd(sFL)}, s{sFo} offen sc1")
    for o in st_ops(1, vSt, True): p(o if isinstance(o, str) else o[1])
    stamp(p, 7); stamp(p, 7, 2)
    p("s_waitcnt vmcnt(5)"); call(p, "S_reda" if opts.get('burst', 2) else "S_redb")
    rest = list(range(5 - LAG, 4))
    p("s_waitcnt vmcnt(3)\ns_barrier")
    p(f"s_movk_i32 s{sT2}, 512"); call(p, "S_post")
    call(p, "S_spinc")
    for i, g in enumerate(rest[1:]):
        p(f"s_mov_b32 s{sPc}, {g*40960}")
        for li in range(10): p(ld_op(li).replace(vr(RB + 4 * li, 4), vr(40 * i + 4 * li, 4)))
    reduce_group(rest[0])
    for i, g in enumerate(rest[1:]):
        for r in range(0, 40, 2): p(f"v_mov_b64 {vr(RB+r,2)}, {vr(40*i+r,2)}")
        p(f"s_movk_i32 s{sPd}, {g*256}"); call(p, "S_reda")
    p(f"s_movk_i32 s{sFo}, 512"); call(p, "S_spin")
    reduce_group(4)
    if PROF:
        p("s_waitcnt vmcnt(0)\ns_mov_b32 s96, s65")
        stamp(p, 9)
        p("s_memrealtime s[100:101]\ns_waitcnt lgkmcnt(0)")
        if opts.get('dbg'):
            p(f"s_lshl_b32 s{sT}, s2, 3\ns_add_u32 s{sT}, s{sT}, s{sWave}\ns_cmp_lg_u32 s{sT}, {8*opts['dbg']+1}\ns_cbranch_scc1 L_exit")
            for i, k in enumerate((1, 2, 3, 4, 5, 6, 7, 9)):
                p(f"s_sub_u32 s{sT}, s{80+2*k}, s80\nv_mov_b32 v1, s{sT}\nbuffer_store_dword v1, v{vZ}, {srd(sDBG)}, 0 offen offset:{8*i+4}")
            p("s_endpgm")
        p(f"s_lshl_b32 s{sT}, s2, 3\ns_add_u32 s{sT}, s{sT}, s{sWave}\ns_lshl_b32 s{sT}, s{sT}, 6")
        p(f"s_add_u32 s4, s66, 0x4000000\ns_addc_u32 s5, s67, 0\ns_mov_b32 s6, 0x100000\ns_mov_b32 s7, 0x20000\nv_mov_b32 v0, s{sT}")
        for i in range(11):
            p(f"v_mov_b32 v1, s{80+2*i}\nbuffer_store_dword v1, v0, s[4:7], 0 offen offset:{4*i}\nbuffer_store_dword v1, v0, s[4:7], 0 offen offset:{256+4*i}")
    p("L_exit:")
    p("s_endpgm")
    if opts.get('nodma'): p.ins = [x for x in p.ins if not (x.kind == 'dma' and (srd(sK) in x.text or srd(sV) in x.text))]
    def strip(a, b, pred):
        i0 = [i for i, x in enumerate(p.ins) if x.label == a][0]; i1 = [i for i, x in enumerate(p.ins) if x.text.startswith(b) and i > i0][0]
        p.ins = [x for i, x in enumerate(p.ins) if not (i0 < i < i1 and pred(x))]
    ab = opts.get('abl', 0)
    for a, b in (('L_Q_loop', 's_cbranch_scc1 L_Q_loop'), ('L_T_loop', 's_cbranch_scc1 L_T_loop')):
        if ab & 1: strip(a, b, lambda x: x.op == 'v_accvgpr_mov_b32' or x.op == 'v_cvt_pk_bf16_f32')
        if ab & 2: strip(a, b, lambda x: x.kind == 'dma' or x.op.startswith('buffer_store') or x.op == 'buffer_load_dwordx4')
        if ab & 4: strip(a, b, lambda x: x.op == 's_barrier')
        if ab & 8: strip(a, b, lambda x: x.op == 's_waitcnt' and ('lgkmcnt(0)' not in x.text))
        if ab & 16: strip(a, b, lambda x: x.text.startswith('s_add_u32 m0') or x.text.startswith(f's_add_u32 s{sT},') or x.text.startswith(f's_add_u32 s{sT3},'))
        if ab & 32: strip(a, b, lambda x: x.kind == 'ds')
    if opts.get('bprof'):
        a, b = {1: ('L_Q_loop', 'L_A_m2'), 2: ('L_T_loop', 'L_exit'), 3: ('L_A_l1', 'L_A_e13')}[opts['bprof']]
        new = []; on = False; k = 0
        def wrap(x, acc):
            for t in ["s_cselect_b32 s99, 1, 0", "s_memtime s[78:79]".replace("78:79", "2:3") if False else "s_memtime s[100:101]", "s_waitcnt lgkmcnt(0)", f"s_sub_u32 s{acc}, s{acc}, s100"]: new.append(Ins(t))
            new.append(x)
            for t in ["s_memtime s[100:101]", "s_waitcnt lgkmcnt(0)", f"s_add_u32 s{acc}, s{acc}, s100", "s_cmp_lg_u32 s99, 0"]: new.append(Ins(t))
        for x in p.ins:
            if x.label == b or (on and x.text.startswith('s_cbranch_scc1 L_T_loop')): on = False
            if on and x.op == 's_barrier': wrap(x, 82)
            elif on and x.op == 's_waitcnt' and 'vmcnt' in x.text:
                wrap(x, 84 + 2 * min(k, 5)); print("site", min(k, 5), x.text, file=sys.stderr); k += 1
            else: new.append(x)
            if x.label == a: on = True
        p.ins = new
    p.ins += q.ins + side.ins
    p("L_code_end:")
    p("s_endpgm")
    n = p.fix_hazards(verbose=opts.get('verbose', False))
    print("hazard nops inserted:", n, "instrs:", len(p.ins), file=sys.stderr)
    hdr = open('standalone__mha_block_cached__near_ridge.s.ref').read().split('\n')
    hdr = [l for l in hdr if l.startswith(';') and '@launch' not in l and not l.startswith('; Override') and not l.startswith('; grid=ceil')]
    out = "\n".join(hdr) + "\n"
    out += f"; @launch grid=(256,1,1) block=(256,1,1) lds={LDS_BYTES}\n"
    out += '.amdgcn_target "amdgcn-amd-amdhsa--gfx950"\n.text\n'
    out += f".globl {KN}\n.p2align 8\n.type {KN},@function\n" + p.text()
    out += f""".section .rodata,"a"
.p2align 6
.amdhsa_kernel {KN}
  .amdhsa_next_free_vgpr 512
  .amdhsa_next_free_sgpr {102 if PROF else 80}
  .amdhsa_accum_offset 256
  .amdhsa_group_segment_fixed_size 0
  .amdhsa_kernarg_size 64
  .amdhsa_user_sgpr_count 2
  .amdhsa_user_sgpr_kernarg_segment_ptr 1
  .amdhsa_system_sgpr_workgroup_id_x 1
.end_amdhsa_kernel
"""
    return out

if __name__ == "__main__":
    opts = {}
    for a in sys.argv[2:]:
        k, v = a.split('='); opts[k] = int(v)
    open(sys.argv[1], 'w').write(gen(opts))
```

```python
import sys, math, struct
sys.path.insert(0, 'dev')
from asmlib import Prog, Q, Ins

KN = "standalone__mha_block_cached__near_ridge_kernel"
SLOT = 8448; PCS = 1056
K0 = 0; V0 = 4 * SLOT; K1 = 8 * SLOT; V1 = 12 * SLOT; XR = 14 * SLOT; DUMS = 16 * SLOT
EXA = [V0, V1, V1 + 20480, V1 + 40960]
LDS_BYTES = 163840 - 1024
SLAB = 204800; FLG = 256 * SLAB

QR = 0; SS = [80, 120]; NM = 160; LL = 180; ONE = 200; FACS = [218, 220, 246, 248, 250]; TT = 232; WD = 252
XB = 0; XT = 80
TA = 80; RB = 160; RD = 200; SEL = 224; TMP = 232; vOo3 = 222; vOf3 = 223
aACC = 0; aSV = 160; aF = 240
(vLin, vKa0, vKa1, vVa, vDk, vDv, vXd, vWd, vXa0, vXa1, tA, tB, tC, vTl) = range(204, 218)
vOfs, vOfo, vWarm, vWoA, vWoB, vSt, vSt2, vOs2, vOo2, vZ, vPol, t0, vR0, vR1, vR2, vR3 = range(240, 256)

sK, sV, sWQ, sWO, sX, sPO, sPA, sOUT, sDBG, sFL = 4, 8, 12, 16, 20, 24, 60, 72, 76, 68
sWave, sB, sHG, sIt, sMK, sMV, sRnd, sR0, sCur, sHS, sGB = 28, 29, 30, 31, 32, 33, 34, 35, 36, 37, 38
sT, sC, sBL, sPi, sPa, sT2, sT3, sPb, sCol = 39, 40, 41, 42, 43, 44, 45, 46, 47
sRa, sRb, sRet, sRc, sXl, sXg, sPc, sPd, sMsk, sSt, sFo = 48, 49, 50, 52, 53, 54, 55, 56, 57, 58, 59
sDry = 64
sZ, sMK2, sMV2 = 3, 64, 47
OOB = 0x7ff00000

SCALE = math.log2(math.e) / math.sqrt(128.0)
def f2u(x): return struct.unpack('<I', struct.pack('<f', x))[0]
def vr(b, n): return f"v[{b}:{b+n-1}]"
def ar(b, n): return f"a[{b}:{b+n-1}]"
def srd(b): return f"s[{b}:{b+3}]"
def m16(d, a, b, c=None): return f"v_mfma_f32_16x16x32_bf16 {d}, {a}, {b}, {d if c is None else c}"
def mksrd(p, s, lo, off, size):
    p(f"s_add_u32 s{s}, s{lo}, {off}\ns_addc_u32 s{s+1}, s{lo+1}, 0\ns_mov_b32 s{s+2}, {size}\ns_mov_b32 s{s+3}, 0x20000")
def call(p, name): p(f"s_call_b64 s[{sRet}:{sRet+1}], {name}")
def ret(p, name): p(f"s_setpc_b64 s[{sRet}:{sRet+1}] ; ret={name}")
def spread(seq, gaps):
    tot = sum(c for _, c in seq); out = {}; acc = 0
    for it, c in seq:
        g = gaps[min(int((acc + c * 0.5) * len(gaps) / tot), len(gaps) - 1)]
        out.setdefault(g, []).append(it); acc += c
    return out
class Gaps:
    def __init__(self, n=80): self.n = n; self.items = [[] for _ in range(n)]; self.load = [0.0] * n
    def pin(self, g, it, c=1): self.items[g].append(it); self.load[g] += c
    def reserve(self, g, c=1): self.load[g] += c
    def stream(self, seq, gaps):
        tot = sum(c for _, c in seq)
        lo, hi = 0.0, 50.0
        for _ in range(40):
            mid = (lo + hi) / 2
            if sum(max(0.0, mid - self.load[g]) for g in gaps) >= tot: hi = mid
            else: lo = mid
        room = [max(0.0, hi - self.load[g]) for g in gaps]
        cum = 0.0; edges = []
        for r in room: cum += r; edges.append(cum)
        acc = 0.0; k = 0
        for it, c in seq:
            pos = acc + c * 0.5
            while k < len(gaps) - 1 and edges[k] < pos: k += 1
            self.pin(gaps[k], it, c); acc += c
def greedy(order, cap, streams):
    out = {g: [] for g in order}; ptr = [0] * len(streams); where = {}
    for pos, g in enumerate(order):
        room = cap[g]
        while True:
            best = None
            for si, st in enumerate(streams):
                k = ptr[si]
                if k >= len(st['items']) or pos < st['lo']: continue
                it, c, dep = st['items'][k]
                if dep is not None and where.get(dep, 10**9) >= pos and pos < st['hi']: continue
                lag = (pos + 1 - st['lo']) / (st['hi'] + 1 - st['lo']) - k / len(st['items'])
                late = lag * len(st['items'])
                if c > room and late < 1.5 and pos < st['hi']: continue
                if late < -1.0: continue
                if best is None or late > best[0]: best = (late, si)
            if best is None: break
            si = best[1]; it, c, dep = streams[si]['items'][ptr[si]]
            out[g].append(it); where[(si, ptr[si])] = pos; ptr[si] += 1; room -= c
    assert all(ptr[i] == len(st['items']) for i, st in enumerate(streams)), ptr
    return out
def split(ops, tag=None):
    out = []
    for o in ops:
        tg = tag
        if isinstance(o, tuple): tg = o[2]; o = o[1]
        for l in o.split("\n"):
            if l == "s_nop 0": continue
            out.append((("VM", l, tg), 1.5) if l.startswith("buffer_") else (l, 1))
    return out
FB = lambda m: aF + 4 * (m & 3)
oacc = lambda dt, t: aACC + 4 * (dt * 5 + t)

def gen(opts):
    p = Prog(); side = Prog(); q = Prog()
    PROF = opts.get('prof', 0)
    PST = opts.get('pst', 0)
    def stamp_it(pp, mode, tag, vals):
        if PROF and PST == mode:
            pp("s_cselect_b32 s99, 1, 0")
            for v, i in vals:
                pp(f"s_cmp_lg_u32 s{sIt}, {v}\ns_cbranch_scc1 L_si{tag}{v}"); stamp(pp, i, mode); pp(f"L_si{tag}{v}:")
            pp("s_cmp_lg_u32 s99, 0")
    def stamp(pp, i, mode=0):
        if PROF and (PST == mode or i in (0, 9)):
            pp(f"{'s_memrealtime' if opts.get('rt') else 's_memtime'} s[{80+2*i}:{81+2*i}]\ns_waitcnt lgkmcnt(0)")
    def stamp_r(pp, i0, i1, tag):
        if PROF and PST == 0:
            pp(f"s_cmp_eq_u32 s{sRnd}, 0\ns_cbranch_scc0 L_st{tag}a"); stamp(pp, i0); pp(f"s_branch L_st{tag}b\nL_st{tag}a:"); stamp(pp, i1); pp(f"L_st{tag}b:")
    p(f"{KN}:")
    p("s_cmp_ge_u32 s2, 256\ns_cbranch_scc1 L_exit")
    p("s_load_dwordx8 s[56:63], s[0:1], 0\ns_load_dwordx8 s[64:71], s[0:1], 32")
    if PROF:
        for i in range(10): p(f"s_mov_b32 s{80+2*i}, 0")
        p("s_memrealtime s[100:101]")
    stamp(p, 0)
    p(f"v_lshrrev_b32 v1, 6, v0\nv_and_b32 v0, 63, v0\nv_lshlrev_b32 v{vLin}, 4, v0")
    p(f"v_readfirstlane_b32 s{sWave}, v1")
    p(f"s_bfe_u32 s{sB}, s2, 0x20001\ns_lshl_b32 s{sB}, s{sB}, 3\ns_lshr_b32 s{sBL}, s2, 5\ns_add_u32 s{sB}, s{sB}, s{sBL}")
    p(f"s_and_b32 s{sHG}, s2, 1\ns_lshl_b32 s{sHG}, s{sHG}, 2\ns_bfe_u32 s{sT3}, s2, 0x20003\ns_add_u32 s{sHG}, s{sHG}, s{sT3}")
    p(f"s_add_u32 s{sT3}, s{sT3}, s{sBL}")
    p(f"s_mul_i32 s{sT2}, s{sT3}, 205\ns_lshr_b32 s{sT2}, s{sT2}, 10\ns_mul_i32 s{sT2}, s{sT2}, 5\ns_sub_u32 s{sR0}, s{sT3}, s{sT2}")
    p(f"s_lshr_b32 s{sPi}, s{sWave}, 1")
    p(f"v_lshrrev_b32 v1, 4, v0\nv_and_b32 v2, 0xf0, v{vLin}\nv_and_b32 v3, 1, v1\nv_lshrrev_b32 v5, 1, v1")
    p(f"v_lshl_add_u32 v4, v3, 1, v5\nv_mul_u32_u24 v{vXd}, {8*1280}, v4\nv_lshlrev_b32 v4, 4, v3\nv_xor_b32 v4, v4, v2\nv_add_u32 v{vXd}, v{vXd}, v4")
    p(f"v_lshl_add_u32 v4, v5, 2, v3\nv_lshl_add_u32 v{vWd}, v4, 15, v2")
    p(f"s_mul_i32 s{sXl}, s{sWave}, {2*PCS}\ns_mul_i32 s{sXg}, s{sWave}, 1280")
    p(f"s_mul_i32 s{sHS}, s{sWave}, {SLOT}")
    p(f"s_and_b32 s{sT}, s{sWave}, 1\ns_lshl_b32 s{sGB}, s{sT}, 18\ns_lshl_b32 s{sT}, s{sPi}, 8\ns_add_u32 s{sGB}, s{sGB}, s{sT}")
    p(f"s_mul_i32 s{sT2}, s{sB}, 204800\ns_lshl_b32 s{sT3}, s{sHG}, 10\ns_sub_u32 s{sIt}, 5242880, s{sT3}\ns_mov_b32 s{sRnd}, 0")
    p("s_waitcnt lgkmcnt(0)")
    stamp(p, 1, 4)
    mksrd(p, sX, 56, f"s{sT2}", 204800)
    mksrd(p, sWQ, 62, f"s{sT3}", f"s{sIt}")
    call(p, "S_qpx")
    p("s_branch L_setup")
    def xops():
        o = []
        for t in range(5):
            for hh in range(2):
                o.append(f"s_add_u32 m0, s{sXl}, {XR+t*SLOT+hh*PCS}\ns_add_u32 s{sT}, s{sPc}, {(32*t+4*hh)*1280}\nbuffer_load_dwordx4 v{vXd}, {srd(sX)}, s{sT} offen lds")
        return o
    xpre = f"s_lshl_b32 s{sPc}, s{sCur}, 8\ns_add_u32 s{sPc}, s{sPc}, s{sXg}"
    def wops(pa=sPa, add=0):
        return [f"s_add_u32 m0, s{pa}, {pc*PCS}\ns_add_u32 s{sT}, s{sPb}, {(8*(pc&1)+(pc>>1))*8192+add}\nbuffer_load_dwordx4 v{vWd}, {srd(sWQ)}, s{sT} offen lds" for pc in range(8)]
    def wpre(reg, u):
        return f"s_add_u32 s{sPa}, s{sHS}, {reg}\ns_lshl_b32 s{sPb}, s{sCur}, 20\ns_add_u32 s{sPb}, s{sPb}, s{sGB}" + (f"\ns_add_u32 s{sPb}, s{sPb}, {64*8192}" if u else "")
    p("S_qpx:")
    p(f"s_mov_b32 s{sCur}, s{sR0}"); p(xpre)
    for o in xops(): p(o)
    p(wpre(K0, 0))
    for o in wops()[:opts.get('iw', 4)]: p(o)
    ret(p, "S_qpx")
    p("L_setup:")
    stamp(p, 2, 4)
    PR = 4 if opts.get('nat', 1) else 8
    if opts.get('nat', 1): p("v_lshl_add_u32 v4, v3, 1, v5\nv_lshlrev_b32 v4, 1, v4")
    p(f"v_mul_u32_u24 v{vWoA}, {4*1280}, v4\nv_add_u32 v{vWoA}, v{vWoA}, v2\nv_bfe_u32 v6, v0, 3, 1\nv_mul_u32_u24 v6, {128*1280}, v6")
    p(f"v_sub_u32 v{vWoB}, v{vWoA}, v6\nv_add_u32 v{vWoB}, {128*1280}, v{vWoB}\nv_add_u32 v{vWoA}, v{vWoA}, v6")
    p(f"v_mul_u32_u24 v{vWarm}, 1280, v1\nv_add_u32 v{vWarm}, v{vWarm}, v2")
    p(f"s_lshl_b32 s{sT}, s{sBL}, 2\ns_add_u32 s{sT}, s{sT}, s{sWave}\ns_mul_i32 s{sT}, s{sT}, {4*1280}\nv_add_u32 v{vWarm}, s{sT}, v{vWarm}")
    mksrd(p, sOUT, 66, f"s{sT2}", 204800)
    p(f"s_mov_b32 s{sDBG}, s68\ns_mov_b32 s{sDBG+1}, s69\ns_mov_b32 s{sDBG+2}, 256\ns_mov_b32 s{sDBG+3}, 0x20000")
    p("s_mov_b32 s66, s70\ns_mov_b32 s67, s71")
    p(f"s_lshl_b32 s{sT}, s{sB}, 3\ns_add_u32 s{sT}, s{sT}, s{sHG}\ns_lshl_b32 s{sT3}, s{sT}, 19\ns_lshl_b32 s{sPa}, s{sPi}, 17\ns_add_u32 s{sT3}, s{sT3}, s{sPa}")
    mksrd(p, sK, 58, f"s{sT3}", 131072); mksrd(p, sV, 60, f"s{sT3}", 131072)
    p(f"s_mul_i32 s{sT3}, s{sT}, {SLAB}"); mksrd(p, sPO, 66, f"s{sT3}", SLAB)
    p(f"s_lshl_b32 s{sT2}, s{sT2}, 3"); mksrd(p, sPA, 66, f"s{sT2}", 8 * SLAB)
    p(f"s_lshl_b32 s{sT2}, s{sB}, 10\ns_add_u32 s{sT2}, s{sT2}, {FLG}"); mksrd(p, sFL, 66, f"s{sT2}", 1024)
    p(f"s_mul_i32 s{sT2}, s{sHG}, {512*1280}"); mksrd(p, sWO, 64, f"s{sT2}", 512 * 1280)
    if PROF: p("s_mov_b32 s65, s100")
    p(f"s_mov_b32 s{sC}, {f2u(SCALE)}\ns_mov_b32 s{sMsk}, 0xffff0000")
    p(f"v_bfe_u32 v4, v0, 2, 2\nv_lshl_add_u32 v4, v4, 1, v3\nv_mul_u32_u24 v{vTl}, {PCS}, v4\nv_lshl_add_u32 v{vTl}, v5, 9, v{vTl}")
    NAT = opts.get('nat', 1); vTn = 219 if NAT else vTl
    p(f"v_and_b32 v4, 0x30, v{vLin}")
    if NAT: p(f"v_lshrrev_b32 v6, 1, v4\nv_add_u32 v{vTn}, v{vTl}, v6")
    p(f"v_add_u32 v{vTl}, v{vTl}, v4")
    HS = 32 if NAT else 8
    p(f"v_and_b32 v4, 3, v0\nv_bfe_u32 v6, v0, 2, 1\nv_lshl_add_u32 v4, v4, 1, v6\nv_mul_u32_u24 v7, {PCS}, v4\nv_bfe_u32 v6, v0, 3, 1\nv_lshl_add_u32 v7, v6, 9, v7")
    p(f"v_xor_b32 v6, 1, v1\nv_lshl_add_u32 v8, v6, 4, v7\nv_add_u32 v8, 256, v8\nv_lshl_add_u32 v7, v1, 4, v7")
    p(f"s_mul_i32 s{sMK}, s{sPi}, {K1}")
    p(f"v_add_u32 v{vKa0}, s{sMK}, v7\nv_add_u32 v{vKa1}, s{sMK}, v8\ns_add_u32 s{sMV}, s{sMK}, {V0}\nv_add_u32 v{vVa}, s{sMV}, v{vTn}")
    p(f"s_and_b32 s{sT}, s{sWave}, 1\ns_mul_i32 s{sT2}, s{sT}, {4*PCS}\ns_add_u32 s{sMK}, s{sMK}, s{sT2}\ns_add_u32 s{sMV}, s{sMV}, s{sT2}")
    p(f"v_add_u32 v{vXa0}, {XR}, v7\nv_add_u32 v{vXa1}, {XR}, v8")
    p(f"s_cmp_eq_u32 s{sT}, 0\ns_cbranch_scc1 L_x0")
    p(f"v_add_u32 v{vXa0}, {XR+2*SLOT}, v8\nv_add_u32 v{vXa1}, {XR+3*SLOT}, v7")
    p("L_x0:")
    p(f"s_mul_i32 s{sT2}, s{sT}, 20480\ns_lshl_b32 s{sT3}, s{sPi}, 11\ns_add_u32 s{sT2}, s{sT2}, s{sT3}\nv_add_u32 v{vSt}, s{sT2}, v{vLin}")
    p(f"s_lshr_b32 s{sT2}, s{sHG}, 2\ns_and_b32 s{sT3}, s{sHG}, 3\ns_lshl_b32 s{sT3}, s{sT3}, 2\ns_add_u32 s{sT3}, s{sT3}, s{sWave}")
    p(f"s_mul_i32 s{sPa}, s{sT2}, 20480\ns_lshl_b32 s{sPb}, s{sT3}, 8\ns_add_u32 s{sPa}, s{sPa}, s{sPb}\ns_mov_b32 s{sPb}, {SLAB}")
    p(f"v_mul_lo_u32 v{vOfs}, s{sPb}, v1\nv_add3_u32 v{vOfs}, v{vOfs}, v2, s{sPa}")
    p(f"s_mul_i32 s{sPa}, s{sT2}, {80*1280}\ns_lshl_b32 s{sPb}, s{sT3}, 4\ns_add_u32 s{sPa}, s{sPa}, s{sPb}")
    if NAT: p(f"s_lshl_b32 s{sPb}, s{sWave}, 3\ns_sub_u32 s{sPa}, s{sPa}, s{sPb}")
    p(f"v_and_b32 v4, 15, v0\nv_lshl_add_u32 v6, v5, 4, v4\nv_mul_u32_u24 v{vOfo}, 1280, v6\nv_lshl_add_u32 v{vOfo}, v3, {5 if NAT else 3}, v{vOfo}\nv_add_u32 v{vOfo}, s{sPa}, v{vOfo}")
    p(f"v_mov_b32 v6, {OOB}\nv_cmp_gt_u32 s[{sT2}:{sT2+1}], 32, v0\nv_cndmask_b32 v{vOf3}, v6, v{vOfo}, s[{sT2}:{sT2+1}]")
    p(f"v_and_b32 v6, 1, v0\nv_lshlrev_b32 v6, 4, v6\nv_mov_b32 v9, 0x3f80\nv_lshlrev_b32 v6, v6, v9\nv_lshrrev_b32 v4, 1, v4")
    for r in range(8):
        p(f"v_cmp_eq_u32 s[{sT2}:{sT2+1}], {r}, v4\nv_cndmask_b32 v{SEL+r}, 0, v6, s[{sT2}:{sT2+1}]")
    for r in range(4): p(f"v_mov_b32 v{ONE+r}, 0x3f803f80")
    p(f"v_mov_b32 v{vZ}, 0\nv_mov_b64 {vr(TT,2)}, 0\nv_mov_b64 {vr(TT+2,2)}, 0")
    zacc = [f"v_mfma_f32_32x32x16_bf16 {vr(16*i,16)}, {vr(TT,4)}, {vr(TT,4)}, 0" for i in range(10)]
    p(f"s_lshl_b32 s{sT}, s{sHG}, 3\ns_add_u32 s{sT}, s{sT}, s{sWave}\ns_cmp_eq_u32 s{sT}, 1\ns_cbranch_scc1 L_fi")
    p("L_fib:")
    if opts.get('cw', 1):
        p(f"s_getpc_b64 s[{sT2}:{sT2+1}]")
        p("L_pc:")
        p(f"s_sub_u32 s{sT2}, s{sT2}, L_pc-{KN}\ns_subb_u32 s{sT2+1}, s{sT2+1}, 0")
        p(f"s_lshr_b32 s{sT}, s2, 3\ns_lshl_b32 s{sT}, s{sT}, 1\ns_add_u32 s{sT}, s{sT}, s{sPi}\ns_lshl_b32 s{sT}, s{sT}, 10\ns_min_u32 s{sT}, s{sT}, L_code_end-{KN}-1024")
        p(f"v_add_u32 v196, s{sT}, v{vLin}\ns_bitcmp1_b32 s{sWave}, 0\ns_cbranch_scc1 L_ncw")
        p(f"global_load_dwordx4 {vr(WD,4)}, v196, s[{sT2}:{sT2+1}]")
        p("L_ncw:")
    side("L_fi:")
    side(f"buffer_store_dwordx4 {vr(TT,4)}, v{vLin}, {srd(sFL)}, 0 offen sc1\ns_waitcnt vmcnt(0)")
    side(f"s_lshl_b32 s{sT}, s{sB}, 3\nv_mov_b32 v196, s{sT}\nv_mov_b32 v197, 1\ns_mov_b64 exec, 1")
    side(f"buffer_atomic_add v197, v196, {srd(sDBG)}, 0 offen sc1\ns_mov_b64 exec, -1\ns_branch L_fib")

    def kv_ops(isk, tile4):
        base, vo, sr = (sMK, vDk, sK) if isk else (sMV, vDv, sV)
        slot = tile4 & 3 if isk else (tile4 + 2) & 3
        o = [f"s_add_u32 m0, s{base}, {slot*SLOT+32*j}\ns_nop 0\nbuffer_load_dwordx4 v{vo}, {srd(sr)}, 0 offen offset:{1024*j} nt lds" for j in range(4)]
        o[-1] += f"\nv_add_u32 v{vo}, 0x2000, v{vo}"
        return o

    stamp(p, 3, 4)
    if PST == 4:
        p("s_waitcnt vmcnt(26)"); stamp(p, 4, 4); p("s_waitcnt vmcnt(17)"); stamp(p, 5, 4); p("s_waitcnt vmcnt(9)"); stamp(p, 6, 4); p("s_waitcnt vmcnt(0)"); stamp(p, 7, 4)
    p("L_round:")
    kvinit = f"s_and_b32 s{sT}, s{sWave}, 1\ns_lshl_b32 s{sT}, s{sT}, 12\nv_add_u32 v{vDv}, s{sT}, v{vLin}\nv_bfe_u32 v{t0}, v{vLin}, 8, 1\nv_lshlrev_b32 v{t0}, 4, v{t0}\nv_xor_b32 v{vDk}, v{t0}, v{vDv}"
    kvadv = "\n".join(f"s_add_u32 s{s_}, s{s_}, 262144\ns_addc_u32 s{s_+1}, s{s_+1}, 0" for s_ in (sK, sV))
    p(kvinit)
    p(f"s_mul_i32 s{sT}, s{sPi}, {2*SLOT}\nv_add_u32 v{tA}, s{sT}, v{vTl}\nv_add_u32 v{tB}, {K1}, v{tA}\nv_add_u32 v{tC}, {V0}, v{tA}")
    p(f"s_add_u32 s{sRa}, s{sHS}, {K0}\ns_add_u32 s{sRb}, s{sHS}, {K1}\ns_add_u32 s{sRc}, s{sHS}, {V0}\ns_mov_b32 s{sIt}, 0")
    p(f"v_mov_b64 {vr(TT,2)}, 0\nv_mov_b64 {vr(TT+2,2)}, 0")
    for z in zacc: p(z)
    xb = lambda t, j: 16 * t + 4 * j
    xt = lambda t, j: 80 + 8 * t + 4 * (j - 2)
    qacc = lambda nt, t: 32 * t + 4 * nt
    for r in range(8): p(f"v_accvgpr_write_b32 a{aF+r}, 0")
    for t in range(5):
        for r in range(4): p(f"v_accvgpr_write_b32 a{xb(t,3)+r}, 0")
    def xread(t, j): return f"ds_read_b128 {ar(xb(t,j) if j < 2 else xt(t,j),4)}, v{[vXa0,vXa1][t&1]} offset:{(t>>1)*SLOT+64*j}"
    p(f"s_cmp_eq_u32 s{sRnd}, 1\ns_cbranch_scc1 L_rw2")
    p(wpre(K0, 0))
    for o in wops()[opts.get('iw', 4):]: p(o)
    p("s_waitcnt vmcnt(0)\ns_barrier")
    for j in range(4):
        for t in range(5): p(xread(t, j))
        if j == 1: p("s_waitcnt lgkmcnt(0)")
    for o in wops(sRb, 64 * 8192): p(o)
    p("L_rw2:")
    p("s_waitcnt lgkmcnt(0)\ns_barrier")
    stamp_r(p, 1, 4, "q"); stamp(p, 1, 1)
    HQ = 2
    NS = opts.get('ns', 3)
    def gunit(rdtxt, mf, streams, vm=None, T=None):
        lg = Q(p, "lgkmcnt", 15); tok = {0: 0, 1: 0}
        G = Gaps()
        for m in range(14):
            for e in range(2): G.pin(5 * m + 5 + e, ("RD", m + 4, e))
        for m in range(2, 16): G.reserve(5 * m - 1)
        for seq, gaps in streams: G.stream(seq, gaps)
        def rd(m, e): lg.room(1); p(rdtxt(m, e)); tok[m] = lg.issue()
        for m in (2, 3):
            for e in range(2): rd(m, e)
        for m in range(16):
            lg.wait(tok[m])
            for t in range(5):
                p(mf(m, t))
                for o in G.items[5 * m + t]:
                    if isinstance(o, str): p(o)
                    elif o[0] == "RD": rd(o[1], o[2])
                    elif o[0] == "DS": lg.room(1); p(o[1]); lg.issue()
                    elif o[0] == "W": vm.wait(T.get(o[1], 0))
                    else:
                        p(o[1])
                        if vm:
                            tk = vm.issue()
                            if o[2]: T[o[2]] = tk
    def qunit(u, dm, fill, endw, span=76):
        def rdtxt(m, e):
            f = m - HQ; ks = f >> 3; nt = f & 7
            return f"ds_read_b64_tr_b16 {ar(FB(m)+2*e,2)}, v{[tA,tB][u]} offset:{ks*SLOT+e*256+(nt>>1)*64+(nt&1)*8}"
        def mf(m, t):
            f = m - HQ
            j = (2 * u + (f >> 3)) & 3 if f >= 0 else (2 * u - 1) & 3
            return m16(vr(qacc(f & 7, t), 4), ar(FB(m), 4), ar(xb(t, j), 4))
        gunit(rdtxt, mf, [(split(dm), list(range(0, span)))] + fill)
        p(endw)
    movs = [([(f"v_accvgpr_mov_b32 a{xb(t,j)+r}, a{xt(t,j)+r}", 1) for j in (2, 3) for t in range(5) for r in range(4)], list(range(0, 79)))]
    xrd = [([(("DS", xread(t, j)), 1) for j in (2, 3, 0, 1) for t in range(5)], list(range(1, 70)))]
    rot = (f"v_mov_b32 v{t0}, v{tC}\nv_mov_b32 v{tC}, v{tB}\nv_mov_b32 v{tB}, v{tA}\nv_mov_b32 v{tA}, v{t0}\n"
           f"s_mov_b32 s{sT}, s{sRc}\ns_mov_b32 s{sRc}, s{sRb}\ns_mov_b32 s{sRb}, s{sRa}\ns_mov_b32 s{sRa}, s{sT}")
    WQ = 0
    vPv, vPk, vWv, vWk = 221, 247, 218, 220
    LR = 160; aSR = 120
    kvs = []
    for i in range(10):
        kvs += [(f"v_accvgpr_write_b32 a{aSR+4*i+r}, v{LR+4*i+r}", 1) for r in range(4)]
        if i < 8: kvs.append((("VM", f"buffer_load_dwordx4 {vr(LR+4*i,4)}, v{vPv}, {srd(sV)}, {'s%d' % sSt if i >= 4 else '0'} offen offset:{1024*(i&3)} nt", None), 1.5))
        else: kvs.append((("VM", f"buffer_load_dwordx4 {vr(LR+4*i,4)}, v{vPk}, {srd(sK)}, 0 offen offset:{1024*(i&1)} nt", None), 1.5))
    kvs += [(f"v_add_u32 v{vPv}, 0x4000, v{vPv}", 1), (f"v_add_u32 v{vPk}, 0x800, v{vPk}", 1)]
    p(f"v_mov_b32 v{vPv}, {OOB}\nv_mov_b32 v{vPk}, {OOB}\ns_movk_i32 s{sSt}, 0x2000")
    p("L_Q_loop:")
    stamp_it(p, 1, "q", [(0, 2), (2, 3)])
    p(f"s_add_u32 s{sCur}, s{sCur}, 1\ns_cmp_ge_u32 s{sCur}, 5\ns_cselect_b32 s{sCur}, 0, s{sCur}")
    p(xpre); p(f"s_lshl_b32 s{sPb}, s{sCur}, 20\ns_add_u32 s{sPb}, s{sPb}, s{sGB}")
    p(f"s_cmp_eq_u32 s{sIt}, 3\ns_cselect_b32 s{sPa}, 0x30000, s{sRa}")
    p(f"s_cmp_eq_u32 s{sIt}, 2\ns_cbranch_scc1 L_Q_en")
    p("L_Q_enb:")
    side("L_Q_en:"); side(f"v_mov_b32 v{vPv}, v{vDv}\nv_add_u32 v{vPk}, 0x6000, v{vDk}\ns_branch L_Q_enb")
    qunit(0, xops() + wops(sRc), movs, f"s_waitcnt vmcnt(8) lgkmcnt(0)\ns_barrier", span=76)
    qunit(1, wops(sPa, 64 * 8192), xrd + [(kvs, list(range(0, opts.get('kvspan', 60))))], rot + f"\ns_add_u32 s{sIt}, s{sIt}, 1\ns_cmp_lt_u32 s{sIt}, 4\ns_waitcnt vmcnt(18) lgkmcnt(0)\ns_barrier")
    p("s_cbranch_scc1 L_Q_loop")
    stamp(p, 4, 1)
    p(f"s_add_u32 s{sPa}, s{sHS}, {XR}\ns_mul_i32 s{sT}, s{sPi}, {2*SLOT}\ns_add_u32 s{sT}, s{sT}, {XR}\nv_add_u32 v{tB}, s{sT}, v{vTl}")
    p(f"v_add_u32 v{vWv}, s{sMV}, v{vLin}\nv_add_u32 v{vWk}, s{sMK}, v{vLin}\nv_add_u32 v{vDv}, 0x8000, v{vDv}")
    kpre = kv_ops(True, 0) + kv_ops(True, 1) + kv_ops(True, 2) + [f"v_add_u32 v{vDk}, 0x2000, v{vDk}"]
    def kvw(st, i):
        src = ar(aSR + 4 * i, 4) if st == 0 else vr(LR + 4 * i, 4)
        if i < 8: return f"ds_write_b128 v{vWv}, {src} offset:{((2*st+(i>>2)+2)&3)*SLOT+(i&3)*PCS}"
        return f"ds_write_b128 v{vWk}, {src} offset:{3*SLOT+(2*st+(i&1))*PCS}"
    NPF = opts.get('npf', 0); pfm = " nt" if opts.get('pfnt', 1) else ""
    pf = []
    for k in range(NPF):
        for isk in (True, False):
            for jj in range(4):
                pf.append((f"s_mov_b32 s{sT3}, {(3+k if False else 4+k)*8192}\n" if jj == 0 and isk else "") + f"buffer_load_dwordx4 {vr(WD,4)}, v{vPv}, {srd(sK if isk else sV)}, s{sT3} offen offset:{1024*jj}{pfm}")
    q4 = len(pf) // 4
    p(f"v_subrev_u32 v{vPv}, 0x8000, v{vDv}")
    kw = [(("DS", kvw(st, i)), 2) for st in range(2) for i in (8, 9)]
    qunit(0, wops(sPa, 64 * 8192) + kpre[:8], movs, "s_waitcnt vmcnt(8) lgkmcnt(0)\ns_barrier")
    qunit(1, kpre[8:] + pf[:q4], [(kw, list(range(0, 60)))], f"s_waitcnt vmcnt({8+q4}) lgkmcnt(0)\ns_barrier")
    stamp(p, 5, 1)
    vw = [kvw(st, i) for st in range(2) for i in range(8)]
    for m in range(HQ):
        for t in range(5): p(m16(vr(qacc(6 + m, t), 4), ar(FB(m), 4), ar(xb(t, 3), 4)))
    for i in range(80):
        p(f"v_pk_mul_f32 {vr(2*i,2)}, {vr(2*i,2)}, s[{sC}:{sC+1}] op_sel_hi:[1,0]")
        if i >= 2: p(f"v_cvt_pk_bf16_f32 v{i-2}, v{2*i-4}, v{2*i-3}")
        if i % 5 == 0:
            if i == 40: p("s_waitcnt lgkmcnt(0)")
            p(vw[i // 5])
        if i % 10 == 3 and i // 10 < q4: p(pf[q4 + i // 10])
    p("v_cvt_pk_bf16_f32 v78, v156, v157\nv_cvt_pk_bf16_f32 v79, v158, v159\ns_waitcnt lgkmcnt(0)")
    for r in range(0, 20, 2): p(f"v_mov_b64 {vr(NM+r,2)}, 0")
    stamp(p, 6, 1); stamp(p, 7, 1)
    stamp_r(p, 2, 5, "a")

    HB = 2
    DRYN = {"m2": "L_A_m1", "m1": "L_A_z0", "z0": "L_dry_done", "l1": "L_A_l2", "l2": "L_dry_done", "l3": "L_A_l0", "l0": "L_dry_done", "e13": "L_A_e14", "e15": "L_dry_done"}
    def sm_ops(b):
        seq = []
        for k in range(43):
            if k < 40: seq.append((f"v_exp_f32 v{b+k}, v{b+k}", 2))
            if k >= 4 and k % 2 == 0:
                i = (k - 4) // 2
                seq.append((f"v_cvt_pk_bf16_f32 v{b+8*(i>>2)+(i&3)}, v{b+2*i}, v{b+2*i+1}", 1))
        return seq
    W1 = list(range(24, 80)) + list(range(0, 9))
    def oops(vo): return [f"s_add_u32 m0, s{sPa}, {pc*PCS}\ns_add_u32 s{sT}, s{sPb}, {(PR*(pc&1)+(pc>>1))*1280}\nbuffer_load_dwordx4 v{vo}, {srd(sWO)}, s{sT} offen lds" for pc in range(8)]
    r0 = xops() + wops(sPa) + wops(sRa, 64 * 8192)
    r0[0] = f"s_add_u32 s{sGB}, s{sGB}, 512\ns_mov_b32 s{sCur}, s{sR0}\n{xpre}\n{wpre(K0, 0)}\ns_add_u32 s{sRa}, s{sHS}, {K1}\n" + r0[0]
    r0s = [r0[4*i:4*i+4] for i in range(6)] + [r0[24:26], [], []]
    wm = [f"s_mov_b32 s{sT}, {(k>>2)*256+(k&3)*128*1280}\nbuffer_load_dwordx4 {vr(WD,4)}, v{vWarm}, {srd(sWO)}, s{sT} offen" for k in range(20)]
    o0 = oops(vWoA); o1 = oops(vWoA)
    o0[0] = f"s_mul_i32 s{sGB}, s{sWave}, {32*1280}\ns_add_u32 s{sPa}, s{sHS}, {K0}\ns_mov_b32 s{sPb}, s{sGB}\n" + o0[0]
    o1[0] = f"s_add_u32 s{sPa}, s{sHS}, {K1}\ns_add_u32 s{sPb}, s{sGB}, {256*1280}\n" + o1[0]
    r1s = [wm[0:4], wm[4:7], wm[7:10], wm[10:13], wm[13:16], wm[16:20], [], o0, o1]
    def site(k):
        p(f"s_cmp_eq_u32 s{sRnd}, 0\ns_cbranch_scc0 L_s{k}a")
        for o in r0s[k]: p(o)
        p(f"L_s{k}b:")
        side(f"L_s{k}a:")
        for o in r1s[k]: side(o)
        side(f"s_branch L_s{k}b")
    POS = []
    for m in range(16):
        POS += [(m, t) for t in range(5)]
        if 3 <= m < 8: POS.append(('L', m - 3))
    NPOS = len(POS); first_of = {m: POS.index((m, 0)) for m in range(16)}
    cap = {x: 2.0 for x in range(NPOS)}; pins = {x: [] for x in range(NPOS)}
    for m in range(14):
        x = POS.index((m, 4)) + 1
        for e in range(2 if m + 4 < 10 else 1): pins[x + e].append(('RD', m + 4, e)); cap[x + e] -= 1
    for m in range(2, 16): cap[first_of[m] - 1] -= 1
    XC = opts.get('xc', 24); XP = first_of[10] + 4
    pins[XC].append('CHECK'); cap[XC] -= 2; pins[XP].append('PT2'); cap[XP] -= 1
    order = list(range(XC + 1, NPOS)) + list(range(0, XC + 1)); n1 = NPOS - XC - 1
    mreg = [8 * t + r for t in range(5) for r in range(4)] + [8 * t + 4 + r for t in range(5) for r in range(4)]
    mx = [('MX', TT, None, mreg[0:3]), ('MX', TT + 1, None, mreg[3:6])] + [('MX', TT + ((i >> 1) & 1), 1, mreg[i:i+2]) for i in range(6, 40, 2)] + [('MF',)]
    tmpl = greedy(order, cap, [
        dict(items=[(('EX', k), 2, None) for k in range(40)], lo=0, hi=n1 + 8),
        dict(items=[(('CV', i), 1, (0, 2 * i + 1)) for i in range(20)], lo=3, hi=n1 + 10),
        dict(items=[(o, 1, None) for o in mx[:9]], lo=n1 + 2, hi=n1 + 13),
        dict(items=[(o, 1, None) for o in mx[9:]], lo=n1 + 14, hi=n1 + XC - 1),
        dict(items=[(('DM', i), 1, (4, i - 1) if i % 2 else None) for i in range(6)], lo=n1, hi=n1 + XC - 1),
        dict(items=[(('DM', i), 1, (5, i - 7) if i % 2 else None) for i in range(6, 16)], lo=0, hi=n1 - 4)])
    def abody(tag, nm, held=True, pv=True, qk=True, zc=False, first=False, dma=True, smt=True, smh=True, endw="vmcnt(16)", bar=True, sites={}, fill={}):
        Sn = SS[nm & 1]; Sn1 = SS[(nm + 1) & 1]
        lg = Q(p, "lgkmcnt", 15); tok = {0: 0, 1: 0}
        p(f"L_A_{tag}:")
        slot = (nm + 2) & 3
        ms = ([0, 1] if held else []) + (list(range(2, 10)) + ['L'] if pv else []) + (list(range(10, 16)) if qk else [])
        done = set()
        def rd(m, e):
            if (m, e) in done or (m < 10 and not pv) or (m >= 10 and not qk): return
            done.add((m, e)); lg.room(1)
            if m < 10:
                dt = m - 2
                p(f"ds_read_b64_tr_b16 {ar(FB(m)+2*e,2)}, v{vVa} offset:{slot*SLOT+e*256+(dt>>1)*64+(dt&1)*HS}")
            else:
                k = m - 10
                p(f"ds_read_b128 {ar(FB(m),4)}, v{[vKa0,vKa1][k>>2]} offset:{slot*SLOT+64*(k&3)}")
            tok[m] = lg.issue()
        dm = []
        if dma:
            for o in kv_ops(True, nm + 1) + (kv_ops(False, nm + 3) if dma != 'k' else []):
                l = o.replace("s_nop 0\n", "").split("\n"); dm += [l[0], "\n".join(l[1:])]
        for m in ((2, 3) if pv else (10, 11)):
            for e in range(2 if pv else 1): rd(m, e)
        for x, (m, t) in enumerate(POS):
            if m in ms:
                if m == 'L': p(m16(vr(LL + 4 * t, 4), vr(ONE, 4), vr(Sn + 8 * t, 4), '0' if zc else None))
                else:
                    if t == 0: lg.wait(tok[m])
                    if m < 2: p(m16(vr(Sn1 + 8 * t + 4, 4), ar(FB(m), 4), vr(QR + 16 * t + 4 * (2 + m), 4)))
                    elif m < 10: p(m16(ar(oacc(m - 2, t), 4), ar(FB(m), 4), vr(Sn + 8 * t, 4), '0' if zc else None))
                    else:
                        k = m - 10
                        p(m16(vr(Sn + 8 * t + 4 * (k >> 2), 4), ar(FB(m), 4), vr(QR + 16 * t + 4 * (k & 3), 4), vr(NM + 4 * t, 4) if k & 3 == 0 else None))
            b = Sn1 if x > XC else Sn; on = smh if x > XC else smt
            for o in tmpl[x] + pins[x]:
                if o == 'CHECK':
                    if first: call(p, "S_first")
                    elif smh:
                        p(f"v_cmp_lt_f32 vcc, 0x41000000, v{TT}\ns_cbranch_vccnz L_rr{tag}")
                        p(f"L_rb{tag}:")
                        side(f"L_rr{tag}:"); call(side, f"S_rare{(nm+1)&1}"); side(f"s_branch L_rb{tag}")
                elif o == 'PT2':
                    if smh and not first:
                        p(f"s_cbranch_vccnz L_p2{tag}")
                        p(f"L_pb{tag}:")
                        side(f"L_p2{tag}:"); call(side, "S_scale"); side(f"s_branch L_pb{tag}")
                elif o[0] == 'RD': rd(o[1], o[2])
                elif o[0] == 'EX':
                    if on: p(f"v_exp_f32 v{b+o[1]}, v{b+o[1]}")
                elif o[0] == 'CV':
                    i = o[1]
                    if on: p(f"v_cvt_pk_bf16_f32 v{b+8*(i>>2)+(i&3)}, v{b+2*i}, v{b+2*i+1}")
                elif o[0] == 'MX':
                    if smh and not first: p(f"v_max3_f32 v{o[1]}, " + ", ".join(([f"v{o[1]}"] if o[2] else []) + [f"v{Sn1+r}" for r in o[3]]))
                elif o[0] == 'MF':
                    if smh and not first: p(f"v_max_f32 v{TT}, v{TT}, v{TT+1}")
                elif o[0] == 'DM':
                    if o[1] < len(dm): p(dm[o[1]])
            if x in sites: site(sites[x])
            for o in fill.get(x, []): p(o)
        if bar: p(f"s_waitcnt {endw} lgkmcnt(0)")
    def xl(op, a, b):
        return (f"v_mov_b32 v{b}, v{a}\nv_permlane16_swap_b32 v{a}, v{b}\n{op} v{a}, v{a}, v{b}\n"
                f"v_mov_b32 v{b}, v{a}\nv_permlane32_swap_b32 v{a}, v{b}\n{op} v{a}, v{a}, v{b}")
    def shiftsub(name, n, first):
        q(f"{name}:")
        for t in range(5):
            b = n + 8 * t
            q(f"v_max3_f32 v{TT}, v{b}, v{b+1}, v{b+2}\nv_max3_f32 v{TT}, v{TT}, v{b+3}, v{b+4}\nv_max3_f32 v{TT}, v{TT}, v{b+5}, v{b+6}\nv_max_f32 v{TT}, v{TT}, v{b+7}")
            q(xl("v_max_f32", TT, TT + 1))
            if not first: q(f"v_max_f32 v{TT}, 0, v{TT}\nv_exp_f32 v{FACS[t]}, -v{TT}")
            for r in range(8): q(f"v_sub_f32 v{b+r}, v{b+r}, v{TT}")
            for r in range(4): q(f"v_sub_f32 v{NM+4*t+r}, v{NM+4*t+r}, v{TT}")
        ret(q, name)
    shiftsub("S_rare0", SS[0], False); shiftsub("S_rare1", SS[1], False); shiftsub("S_first", SS[0], True)
    q("S_scale:")
    for dt in range(8):
        for t in range(5):
            a = oacc(dt, t)
            for r in range(4): q(f"v_accvgpr_read_b32 v{TT+4+r}, a{a+r}")
            for r in (0, 2): q(f"v_pk_mul_f32 {vr(TT+4+r,2)}, {vr(TT+4+r,2)}, {vr(FACS[t],2)} op_sel_hi:[1,0]")
            for r in range(4): q(f"v_accvgpr_write_b32 a{a+r}, v{TT+4+r}")
    for t in range(5):
        for r in (0, 2): q(f"v_pk_mul_f32 {vr(LL+4*t+r,2)}, {vr(LL+4*t+r,2)}, {vr(FACS[t],2)} op_sel_hi:[1,0]")
    ret(q, "S_scale")
    stamp(p, 1, 3)
    abody("m2", 2, held=False, pv=False, smt=False, smh=False, dma=False, endw=f"vmcnt({4+2*q4})"); p("s_barrier")
    abody("m1", 3, pv=False, smt=False, first=True, dma='k', endw=f"vmcnt({4+3*q4})", fill=spread([(o, 1) for o in pf[2*q4:3*q4]], list(range(45, 84))) if q4 else {}); p("s_barrier")
    abody("z0", 0, zc=True, dma='k', endw="vmcnt(63)", fill=spread([(o, 1) for o in (pf[3*q4:] if q4 >= 4 else pf[3*q4:] + [f"buffer_load_dword v{WD}, v{vPv}, {srd(sV)}, 0 offen"] * 4)], list(range(45, 84)))); p(f"s_mov_b32 s{sIt}, 0\ns_barrier"); stamp(p, 2, 3)
    for nm in (1, 2, 3, 0):
        abody(f"l{nm}", nm)
        if nm == 0: p(f"s_add_u32 s{sIt}, s{sIt}, 1\ns_cmp_lt_u32 s{sIt}, 3")
        p("s_barrier")
    p("s_cbranch_scc1 L_A_l1")
    stamp(p, 3, 3)
    abody("e13", 1, dma=False, endw="vmcnt(0)"); p("s_barrier")
    stamp(p, 4, 3)
    abody("e14", 2, qk=False, dma=False, bar=False, sites={1: 0, 20: 1, 40: 2, 65: 3})
    def prd(J, t):
        tm = PT[(J, t)]
        return [f"v_accvgpr_read_b32 v{tm+4*h+r}, a{oacc(2*J+h,t)+r}" for h in range(2) for r in range(4)]
    PT = {}
    for t in range(5): PT[(0, t)] = SS[0] + 8 * t; PT[(1, t)] = QR + 16 * t + 8
    early = [o for J in range(2) for t in range(5) for o in prd(J, t)]
    xa = first_of[4] + 2; xb_ = first_of[6] + 2; xe = first_of[10]
    fl = spread([(o, 1) for o in early[:40]], list(range(xa, xb_ + 8)))
    for g, l in spread([(o, 1) for o in early[40:]], list(range(xb_ + 8, xe))).items(): fl.setdefault(g, []).extend(l)
    abody("e15", 3, held=False, qk=False, dma=False, smh=False, bar=False, sites={12: 4, 35: 5}, fill=fl)
    stamp(p, 5, 3)
    for t in range(5): p(f"v_rcp_f32 v{FACS[t]}, v{LL+4*t}")
    for J in range(4):
        if J < 3: site(6 + J)
        for t in range(5):
            if J >= 2:
                PT[(J, t)] = SS[1] + 8 * t if J == 2 else SS[0] + 8 * t
                for o in prd(J, t): p(o)
            tm = PT[(J, t)]
            for r in range(0, 8, 2): p(f"v_pk_mul_f32 {vr(tm+r,2)}, {vr(tm+r,2)}, {vr(FACS[t],2)} op_sel_hi:[1,0]")
            for r in range(4): p(f"v_cvt_pk_bf16_f32 v{QR+16*t+4*J+r}, v{tm+2*r}, v{tm+2*r+1}")
    stamp_r(p, 3, 6, "e"); stamp(p, 6, 3); stamp(p, 7, 3)
    p(f"s_cmp_eq_u32 s{sRnd}, 1\ns_cbranch_scc1 L_T")
    p(f"s_mov_b32 s{sRnd}, 1\ns_waitcnt vmcnt(0)\ns_barrier")
    p(kvadv)
    xr = [xread(t, j) for j in range(4) for t in range(5)]
    for r in range(80):
        if r % 4 == 0:
            if r == 48: p("s_waitcnt lgkmcnt(4)")
            p(xr[r // 4])
        p(f"v_accvgpr_write_b32 a{aSV+r}, v{QR+r}")
    p("s_branch L_round")

    q("S_odmb:")
    for o in oops(vWoB): q(o)
    ret(q, "S_odmb")
    SLP = opts.get('slp', 4)
    q("S_spin:")
    q(f"buffer_load_dword v{vPol}, v{vZ}, {srd(sFL)}, s{sFo} offen sc1\ns_waitcnt vmcnt(0)")
    q("S_spinc:")
    q(f"v_readfirstlane_b32 s{sT}, v{vPol}\ns_cmp_eq_u32 s{sT}, 8\ns_cbranch_scc1 L_spr\ns_sleep {SLP}\ns_branch S_spin")
    q("L_spr:"); ret(q, "S_spin|S_spinc")
    q("S_post:")
    q(f"s_cmp_lg_u32 s{sWave}, 0\ns_cbranch_scc1 L_pr\nv_mov_b32 v{t0}, 1\ns_mov_b64 exec, 1")
    q(f"buffer_atomic_add v{t0}, v{vZ}, {srd(sFL)}, s{sT2} offen sc1\ns_mov_b64 exec, -1")
    q("L_pr:"); ret(q, "S_post")
    def ld_op(li):
        sg = li >> 1; h = li & 1
        return f"s_add_u32 s{sT}, s{sPc}, {sg*4096+h*4*SLAB}\nbuffer_load_dwordx4 {vr(RB+4*li,4)}, v{vOs2}, {srd(sPA)}, s{sT} offen sc1"
    LSET = [range(0, 4), range(4, 8), range(8, 10)]
    def red_ops(k):
        d = RD + 4 * k
        o = [m16(vr(d, 4), vr(SEL + 4 * ((li >> 1) & 1), 4), vr(RB + 4 * li, 4), '0' if li % 4 == 0 else None) for li in LSET[k]]
        o2 = [f"v_cvt_pk_bf16_f32 v{d}, v{d}, v{d+1}", f"v_cvt_pk_bf16_f32 v{d+1}, v{d+2}, v{d+3}",
              ("VM", f"s_add_u32 s{sT2}, s{sPd}, {k*32*1280}\nbuffer_store_dwordx2 {vr(d,2)}, v{vOo3 if k == 2 else vOo2}, {srd(sOUT)}, s{sT2} offen", None)]
        return o, o2
    q("S_ld:")
    for li in range(10): q(ld_op(li))
    q("s_waitcnt vmcnt(0)")
    q("S_reda:")
    for o in red_ops(0)[0]: q(o)
    q("S_redb:")
    for k in (1, 2):
        for o in red_ops(k)[0]: q(o)
    for k in range(3):
        for o in red_ops(k)[1]: q(o if isinstance(o, str) else o[1])
    ret(q, "S_ld|S_reda|S_redb")
    def reduce_group(g):
        p(f"s_mov_b32 s{sPc}, {g*40960}\ns_movk_i32 s{sPd}, {g*256}"); call(p, "S_ld")

    p("L_T:")
    stamp(p, 1, 2)
    p("s_waitcnt vmcnt(16)")
    p(f"s_mov_b32 s{sT}, {EXA[0]}\ns_mul_i32 s{sT2}, s{sWave}, 20480\ns_add_u32 s{sT2}, s{sT2}, {V1-20480}\ns_cmp_eq_u32 s{sWave}, 0\ns_cselect_b32 s{sT2}, s{sT}, s{sT2}")
    p(f"v_add_u32 v{vR0}, s{sT2}, v{vLin}")
    p(f"s_xor_b32 s{sT3}, s{sWave}, 2\ns_mul_i32 s{sT2}, s{sT3}, 20480\ns_add_u32 s{sT2}, s{sT2}, {V1-20480}\ns_cmp_eq_u32 s{sT3}, 0\ns_cselect_b32 s{sT2}, s{sT}, s{sT2}")
    p(f"v_add_u32 v{vR1}, s{sT2}, v{vLin}")
    p(f"s_lshl_b32 s{sT}, s{sB}, 3\nv_mov_b32 v{t0}, s{sT}")
    p("L_isp:")
    p(f"buffer_load_dword v{vPol}, v{t0}, {srd(sDBG)}, 0 offen sc1")
    p("s_barrier")
    for step in range(2):
        for i in range(20):
            p(f"ds_write_b128 v{vR0}, {ar(aSV+4*i,4) if step == 0 else vr(QR+4*i,4)} offset:{1024*i}")
            if i % 10 == 9: p("s_waitcnt lgkmcnt(0)")
        p("s_barrier")
        for i in range(20):
            p(f"ds_read_b128 {ar(80*step+4*i,4)}, v{vR1} offset:{1024*i}")
            if i % 10 == 9: p("s_waitcnt lgkmcnt(0)")
        if step == 1:
            p("s_waitcnt vmcnt(0)")
            p("L_ick:")
            p(f"v_readfirstlane_b32 s{sT}, v{vPol}\ns_cmp_eq_u32 s{sT}, 1\ns_cbranch_scc1 L_iok")
            p(f"s_sleep 8\nbuffer_load_dword v{vPol}, v{t0}, {srd(sDBG)}, 0 offen sc1\ns_waitcnt vmcnt(0)\ns_branch L_ick")
            p("L_iok:")
        p("s_barrier")
    REG = [K0, K1, V0, V1]; TBr = [vR0, vR1, vR2, vR3]
    p(f"s_lshl_b32 s{sT}, s{sPi}, 7\nv_add_u32 v{vR0}, s{sT}, v{vTn}\nv_add_u32 v{vR1}, {K1}, v{vR0}\nv_add_u32 v{vR2}, {V0}, v{vR0}\nv_add_u32 v{vR3}, {V1}, v{vR0}")
    p(f"s_add_u32 s{sPa}, s{sHS}, {V0}\ns_mov_b32 s{sPb}, s{sGB}"); call(p, "S_odmb")
    p(f"v_mov_b32 v{vSt2}, {OOB}\nv_mov_b32 v{vOs2}, {OOB}\nv_mov_b32 v{vOo2}, {OOB}\nv_mov_b32 v{vOo3}, {OOB}")
    p(f"s_mov_b32 s{sIt}, 0\ns_mov_b32 s{sSt}, 0\ns_mov_b32 s{sPc}, 0\ns_mov_b32 s{sPd}, 0\ns_mov_b32 s{sFo}, 0\ns_mov_b32 s{sCol}, s{sGB}\ns_mov_b32 s{sRa}, s{sHS}")
    Bop = lambda qd, t, ts: [ar(aSV + 16 * t + 4 * ts, 4), vr(QR + 16 * t + 4 * ts, 4), ar(16 * t + 4 * ts, 4), ar(80 + 16 * t + 4 * ts, 4)][qd]
    tacc = lambda Jp, t, h: TA + 40 * Jp + 8 * t + 4 * h
    def st_ops(Jp, vo, back):
        o = []
        for t in range(5):
            tm = TMP + 4 * (t & 1); a = tacc(Jp, t, 0)
            o += [f"v_cvt_pk_bf16_f32 v{tm+i}, v{a+2*i}, v{a+2*i+1}" for i in range(4)]
            o.append(("VM", f"s_add_u32 s{sT3}, s{sSt}, {t*4096}\nbuffer_store_dwordx4 {vr(tm,4)}, v{vo}, {srd(sPO)}, s{sT3} offen offset:{1024*Jp} sc1", 'ps'))
        return o
    vm = Q(p, "vmcnt", 63); T = {}
    def tmf(qd, f, m):
        Jp = f >> 3; ts = (f >> 1) & 3; h = f & 1
        return [m16(vr(tacc(Jp, t, h), 4), ar(FB(m), 4), Bop(qd, t, ts), '0' if qd == 0 and ts == 0 else None) for t in range(5)]
    LAG = opts.get('lag', 2); PQ = opts.get('pq', 2)
    def period():
        for qd in range(4):
            D = (qd + 3) & 3
            if qd == 0:
                p(f"buffer_load_dword v{vPol}, v{vZ}, {srd(sFL)}, s{sFo} offen sc1"); T['poll'] = vm.issue()
            if qd == 1:
                p(f"s_add_u32 s{sCol}, s{sCol}, 256\ns_cmp_ge_u32 s{sIt}, {LAG}\ns_cbranch_scc1 L_T_ck")
                p("L_T_ckb:")
                T['pollw'] = vm.n - T['poll']
            if qd == PQ:
                p(f"s_lshl_b32 s{sT2}, s{sIt}, 7\ns_sub_u32 s{sT2}, s{sT2}, 128\ns_cbranch_scc1 L_T_np"); call(p, "S_post"); p("L_T_np:")
            if qd == 3:
                p(f"s_lshl_b32 s{sPd}, s{sIt}, 8\ns_sub_u32 s{sPd}, s{sPd}, {256*LAG}\ns_cselect_b32 s{sPd}, 0, s{sPd}\ns_cbranch_scc1 L_T_no\nv_mov_b32 v{vOo2}, v{vOfo}\nv_mov_b32 v{vOo3}, v{vOf3}")
                p("L_T_no:")
            p(f"s_add_u32 s{sPa}, s{sRa}, {REG[D]}\ns_add_u32 s{sPb}, s{sCol}, {(D&1)*256*1280}\ns_add_u32 s{sRb}, s{sPb}, {PR*1280}")
            vmo = []
            lds_ = list(LSET[qd - 1]) if qd >= 1 else []
            BU = opts.get('burst', 2)
            if BU:
                lds_ = []
                if qd == 1 and BU == 1: vmo += [("VM", ld_op(li), 'lb') for li in range(10)]
            for i in range(8):
                im = (i >> 1) * 1280
                vmo.append(("VM", f"s_add_u32 m0, s{sPa}, {i*PCS-im}\nbuffer_load_dwordx4 v{vWoA if D < 2 else vWoB}, {srd(sWO)}, s{sRb if i & 1 else sPb} offen offset:{im} lds", ('d', D)))
                if i % 2 and lds_: vmo.append(("VM", ld_op(lds_.pop(0)), ('l', qd - 1)))
            if WQ == 3:
                vmo.append(("VM", f"s_add_u32 s{sT}, s{sRc}, {qd*128*1280}\nbuffer_load_dwordx4 {vr(212,4)}, v{vWarm}, {srd(sWO)}, s{sT} offen", None))
                if qd == 0: p(f"s_add_u32 s{sRc}, s{sIt}, 2\ns_min_u32 s{sRc}, s{sRc}, 4\ns_lshl_b32 s{sRc}, s{sRc}, 8")
            if BU == 2 and qd == 1: vmo += [("VM", ld_op(li), 'lb') for li in range(10)]
            streams = []
            if qd == 0: streams.append((split(st_ops(1, vSt2, True) + [f"v_mov_b32 v{vSt2}, v{vSt}\ns_mul_i32 s{sSt}, s{sIt}, 40960"]), list(range(13, 49))))
            if qd == 3: streams.append((split(st_ops(0, vSt, False)), list(range(53, 80))))
            streams.append((split(vmo), list(range(0, 78))))
            rk = (qd + 1) & 3
            if BU:
                if qd == 0: streams.append(([(("W", 'lb'), 1)] + [(o, 1) for k in range(3) for o in red_ops(k)[0]], list(range(50, 78))))
                if rk == 3: streams.append((split([o for k in range(3) for o in red_ops(k)[1]]), list(range(0, 78))))
            elif rk < 3: streams.append(([(("W", ('l', rk)), 1)] + [(o, 1) for o in red_ops(rk)[0]], list(range(30, 50))))
            else: streams.append((split([o for k in range(3) for o in red_ops(k)[1]]), list(range(0, 78))))
            def rdtxt(m, e):
                f = m - 2; Jp = f >> 3; ts = (f >> 1) & 3; h = f & 1
                return f"ds_read_b64_tr_b16 {ar(FB(m)+2*e,2)}, v{TBr[qd]} offset:{ts*SLOT+e*256+Jp*64+h*HS}"
            gunit(rdtxt, lambda m, t: (tmf(qd, m - 2, m) if m >= 2 else tmf((qd - 1) & 3, 14 + m, m))[t], streams, vm, T)
            need = T.get(('d', (qd + 1) & 3), 0)
            if qd == PQ - 1: need = max(need, T['ps'])
            if qd == 1: need = max(need, T['poll'])
            vm.wait(need)
            if qd == 3: p(f"s_add_u32 s{sIt}, s{sIt}, 1\ns_cmp_lt_u32 s{sIt}, 5")
            p("s_waitcnt lgkmcnt(0)\ns_barrier")
    mark = len(p.ins)
    period()
    del p.ins[mark:]
    p("L_T_loop:")
    stamp_it(p, 2, "t", [(0, 2), (1, 3), (2, 4), (3, 5), (4, 6)])
    period()
    p("s_cbranch_scc1 L_T_loop")
    side("L_T_ck:")
    side(f"s_waitcnt vmcnt({min(63, T['pollw'])})"); call(side, "S_spinc")
    side(f"s_sub_u32 s{sPc}, s{sIt}, {LAG}\ns_mul_i32 s{sPc}, s{sPc}, 40960\ns_add_u32 s{sFo}, s{sFo}, 128\nv_mov_b32 v{vOs2}, v{vOfs}")
    side(f"s_cmp_lg_u32 s{sIt}, 4\ns_cbranch_scc1 L_T_ckb")
    side(f"v_mov_b32 v{vWoA}, {OOB}\nv_mov_b32 v{vWoB}, {OOB}\ns_mov_b32 s{sRa}, 0x28000\ns_branch L_T_ckb")
    for m in range(2):
        for o in tmf(3, 14 + m, m): p(o)
    p(f"s_movk_i32 s{sFo}, 384\nbuffer_load_dword v{vPol}, v{vZ}, {srd(sFL)}, s{sFo} offen sc1")
    for o in st_ops(1, vSt, True): p(o if isinstance(o, str) else o[1])
    stamp(p, 7); stamp(p, 7, 2)
    p("s_waitcnt vmcnt(5)"); call(p, "S_reda" if opts.get('burst', 2) else "S_redb")
    rest = list(range(5 - LAG, 4))
    p("s_waitcnt vmcnt(3)\ns_barrier")
    p(f"s_movk_i32 s{sT2}, 512"); call(p, "S_post")
    call(p, "S_spinc")
    for i, g in enumerate(rest[1:]):
        p(f"s_mov_b32 s{sPc}, {g*40960}")
        for li in range(10): p(ld_op(li).replace(vr(RB + 4 * li, 4), vr(40 * i + 4 * li, 4)))
    reduce_group(rest[0])
    for i, g in enumerate(rest[1:]):
        for r in range(0, 40, 2): p(f"v_mov_b64 {vr(RB+r,2)}, {vr(40*i+r,2)}")
        p(f"s_movk_i32 s{sPd}, {g*256}"); call(p, "S_reda")
    p(f"s_movk_i32 s{sFo}, 512"); call(p, "S_spin")
    reduce_group(4)
    if PROF:
        p("s_waitcnt vmcnt(0)\ns_mov_b32 s96, s65")
        stamp(p, 9)
        p("s_memrealtime s[100:101]\ns_waitcnt lgkmcnt(0)")
        if opts.get('dbg'):
            p(f"s_lshl_b32 s{sT}, s2, 3\ns_add_u32 s{sT}, s{sT}, s{sWave}\ns_cmp_lg_u32 s{sT}, {8*opts['dbg']+1}\ns_cbranch_scc1 L_exit")
            for i, k in enumerate((1, 2, 3, 4, 5, 6, 7, 9)):
                p(f"s_sub_u32 s{sT}, s{80+2*k}, s80\nv_mov_b32 v1, s{sT}\nbuffer_store_dword v1, v{vZ}, {srd(sDBG)}, 0 offen offset:{8*i+4}")
            p("s_endpgm")
        p(f"s_lshl_b32 s{sT}, s2, 3\ns_add_u32 s{sT}, s{sT}, s{sWave}\ns_lshl_b32 s{sT}, s{sT}, 6")
        p(f"s_add_u32 s4, s66, 0x4000000\ns_addc_u32 s5, s67, 0\ns_mov_b32 s6, 0x100000\ns_mov_b32 s7, 0x20000\nv_mov_b32 v0, s{sT}")
        for i in range(11):
            p(f"v_mov_b32 v1, s{80+2*i}\nbuffer_store_dword v1, v0, s[4:7], 0 offen offset:{4*i}\nbuffer_store_dword v1, v0, s[4:7], 0 offen offset:{256+4*i}")
    p("L_exit:")
    p("s_endpgm")
    if opts.get('nodma'): p.ins = [x for x in p.ins if not (x.kind == 'dma' and (srd(sK) in x.text or srd(sV) in x.text))]
    def strip(a, b, pred):
        i0 = [i for i, x in enumerate(p.ins) if x.label == a][0]; i1 = [i for i, x in enumerate(p.ins) if x.text.startswith(b) and i > i0][0]
        p.ins = [x for i, x in enumerate(p.ins) if not (i0 < i < i1 and pred(x))]
    ab = opts.get('abl', 0)
    for a, b in (('L_Q_loop', 's_cbranch_scc1 L_Q_loop'), ('L_T_loop', 's_cbranch_scc1 L_T_loop')):
        if ab & 1: strip(a, b, lambda x: x.op == 'v_accvgpr_mov_b32' or x.op == 'v_cvt_pk_bf16_f32')
        if ab & 2: strip(a, b, lambda x: x.kind == 'dma' or x.op.startswith('buffer_store') or x.op == 'buffer_load_dwordx4')
        if ab & 4: strip(a, b, lambda x: x.op == 's_barrier')
        if ab & 8: strip(a, b, lambda x: x.op == 's_waitcnt' and ('lgkmcnt(0)' not in x.text))
        if ab & 16: strip(a, b, lambda x: x.text.startswith('s_add_u32 m0') or x.text.startswith(f's_add_u32 s{sT},') or x.text.startswith(f's_add_u32 s{sT3},'))
        if ab & 32: strip(a, b, lambda x: x.kind == 'ds')
    if opts.get('bprof'):
        a, b = {1: ('L_Q_loop', 'L_A_m2'), 2: ('L_T_loop', 'L_exit'), 3: ('L_A_l1', 'L_A_e13')}[opts['bprof']]
        new = []; on = False; k = 0
        def wrap(x, acc):
            for t in ["s_cselect_b32 s99, 1, 0", "s_memtime s[78:79]".replace("78:79", "2:3") if False else "s_memtime s[100:101]", "s_waitcnt lgkmcnt(0)", f"s_sub_u32 s{acc}, s{acc}, s100"]: new.append(Ins(t))
            new.append(x)
            for t in ["s_memtime s[100:101]", "s_waitcnt lgkmcnt(0)", f"s_add_u32 s{acc}, s{acc}, s100", "s_cmp_lg_u32 s99, 0"]: new.append(Ins(t))
        for x in p.ins:
            if x.label == b or (on and x.text.startswith('s_cbranch_scc1 L_T_loop')): on = False
            if on and x.op == 's_barrier': wrap(x, 82)
            elif on and x.op == 's_waitcnt' and 'vmcnt' in x.text:
                wrap(x, 84 + 2 * min(k, 5)); print("site", min(k, 5), x.text, file=sys.stderr); k += 1
            else: new.append(x)
            if x.label == a: on = True
        p.ins = new
    p.ins += q.ins + side.ins
    p("L_code_end:")
    p("s_endpgm")
    n = p.fix_hazards(verbose=opts.get('verbose', False))
    print("hazard nops inserted:", n, "instrs:", len(p.ins), file=sys.stderr)
    hdr = open('standalone__mha_block_cached__near_ridge.s.ref').read().split('\n')
    hdr = [l for l in hdr if l.startswith(';') and '@launch' not in l and not l.startswith('; Override') and not l.startswith('; grid=ceil')]
    out = "\n".join(hdr) + "\n"
    out += f"; @launch grid=(256,1,1) block=(256,1,1) lds={LDS_BYTES}\n"
    out += '.amdgcn_target "amdgcn-amd-amdhsa--gfx950"\n.text\n'
    out += f".globl {KN}\n.p2align 8\n.type {KN},@function\n" + p.text()
    out += f""".section .rodata,"a"
.p2align 6
.amdhsa_kernel {KN}
  .amdhsa_next_free_vgpr 512
  .amdhsa_next_free_sgpr {102 if PROF else 80}
  .amdhsa_accum_offset 256
  .amdhsa_group_segment_fixed_size 0
  .amdhsa_kernarg_size 64
  .amdhsa_user_sgpr_count 2
  .amdhsa_user_sgpr_kernarg_segment_ptr 1
  .amdhsa_system_sgpr_workgroup_id_x 1
.end_amdhsa_kernel
"""
    return out

if __name__ == "__main__":
    opts = {}
    for a in sys.argv[2:]:
        k, v = a.split('='); opts[k] = int(v)
    open(sys.argv[1], 'w').write(gen(opts))
```

```python
import sys, math, struct
sys.path.insert(0, 'dev')
from asmlib import Prog, Q, Ins

KN = "standalone__mha_block_cached__near_ridge_kernel"
SLOT = 8448; PCS = 1056
K0 = 0; V0 = 4 * SLOT; K1 = 8 * SLOT; V1 = 12 * SLOT; XR = 14 * SLOT; DUMS = 16 * SLOT
EXA = [V0, V1, V1 + 20480, V1 + 40960]
LDS_BYTES = 163840 - 1024
SLAB = 204800; FLG = 256 * SLAB

QR = 0; SS = [80, 120]; NM = 160; LL = 180; ONE = 200; FACS = [218, 220, 246, 248, 250]; TT = 232; WD = 252
XB = 0; XT = 80
TA = 80; RB = 160; RD = 200; SEL = 224; TMP = 232; vOo3 = 222; vOf3 = 223
aACC = 0; aSV = 160; aF = 240
(vLin, vKa0, vKa1, vVa, vDk, vDv, vXd, vWd, vXa0, vXa1, tA, tB, tC, vTl) = range(204, 218)
vOfs, vOfo, vWarm, vWoA, vWoB, vSt, vSt2, vOs2, vOo2, vZ, vPol, t0, vR0, vR1, vR2, vR3 = range(240, 256)

sK, sV, sWQ, sWO, sX, sPO, sPA, sOUT, sDBG, sFL = 4, 8, 12, 16, 20, 24, 60, 72, 76, 68
sWave, sB, sHG, sIt, sMK, sMV, sRnd, sR0, sCur, sHS, sGB = 28, 29, 30, 31, 32, 33, 34, 35, 36, 37, 38
sT, sC, sBL, sPi, sPa, sT2, sT3, sPb, sCol = 39, 40, 41, 42, 43, 44, 45, 46, 47
sRa, sRb, sRet, sRc, sXl, sXg, sPc, sPd, sMsk, sSt, sFo = 48, 49, 50, 52, 53, 54, 55, 56, 57, 58, 59
sDry = 64
sZ, sMK2, sMV2 = 3, 64, 47
OOB = 0x7ff00000

SCALE = math.log2(math.e) / math.sqrt(128.0)
def f2u(x): return struct.unpack('<I', struct.pack('<f', x))[0]
def vr(b, n): return f"v[{b}:{b+n-1}]"
def ar(b, n): return f"a[{b}:{b+n-1}]"
def srd(b): return f"s[{b}:{b+3}]"
def m16(d, a, b, c=None): return f"v_mfma_f32_16x16x32_bf16 {d}, {a}, {b}, {d if c is None else c}"
def mksrd(p, s, lo, off, size):
    p(f"s_add_u32 s{s}, s{lo}, {off}\ns_addc_u32 s{s+1}, s{lo+1}, 0\ns_mov_b32 s{s+2}, {size}\ns_mov_b32 s{s+3}, 0x20000")
def call(p, name): p(f"s_call_b64 s[{sRet}:{sRet+1}], {name}")
def ret(p, name): p(f"s_setpc_b64 s[{sRet}:{sRet+1}] ; ret={name}")
def spread(seq, gaps):
    tot = sum(c for _, c in seq); out = {}; acc = 0
    for it, c in seq:
        g = gaps[min(int((acc + c * 0.5) * len(gaps) / tot), len(gaps) - 1)]
        out.setdefault(g, []).append(it); acc += c
    return out
class Gaps:
    def __init__(self, n=80): self.n = n; self.items = [[] for _ in range(n)]; self.load = [0.0] * n
    def pin(self, g, it, c=1): self.items[g].append(it); self.load[g] += c
    def reserve(self, g, c=1): self.load[g] += c
    def stream(self, seq, gaps):
        tot = sum(c for _, c in seq)
        lo, hi = 0.0, 50.0
        for _ in range(40):
            mid = (lo + hi) / 2
            if sum(max(0.0, mid - self.load[g]) for g in gaps) >= tot: hi = mid
            else: lo = mid
        room = [max(0.0, hi - self.load[g]) for g in gaps]
        cum = 0.0; edges = []
        for r in room: cum += r; edges.append(cum)
        acc = 0.0; k = 0
        for it, c in seq:
            pos = acc + c * 0.5
            while k < len(gaps) - 1 and edges[k] < pos: k += 1
            self.pin(gaps[k], it, c); acc += c
def greedy(order, cap, streams):
    out = {g: [] for g in order}; ptr = [0] * len(streams); where = {}
    for pos, g in enumerate(order):
        room = cap[g]
        while True:
            best = None
            for si, st in enumerate(streams):
                k = ptr[si]
                if k >= len(st['items']) or pos < st['lo']: continue
                it, c, dep = st['items'][k]
                if dep is not None and where.get(dep, 10**9) >= pos and pos < st['hi']: continue
                lag = (pos + 1 - st['lo']) / (st['hi'] + 1 - st['lo']) - k / len(st['items'])
                late = lag * len(st['items'])
                if c > room and late < 1.5 and pos < st['hi']: continue
                if late < -1.0: continue
                if best is None or late > best[0]: best = (late, si)
            if best is None: break
            si = best[1]; it, c, dep = streams[si]['items'][ptr[si]]
            out[g].append(it); where[(si, ptr[si])] = pos; ptr[si] += 1; room -= c
    assert all(ptr[i] == len(st['items']) for i, st in enumerate(streams)), ptr
    return out
SC = 0.4
def split(ops, tag=None):
    out = []
    for o in ops:
        tg = tag
        if isinstance(o, tuple): tg = o[2]; o = o[1]
        for l in o.split("\n"):
            if l == "s_nop 0": continue
            out.append((("VM", l, tg), 1) if l.startswith("buffer_") else (l, SC if l.startswith("s_") else 1))
    return out
FB = lambda m: aF + 4 * (m & 3)
oacc = lambda dt, t: aACC + 4 * (dt * 5 + t)

def gen(opts):
    p = Prog(); side = Prog(); q = Prog()
    PROF = opts.get('prof', 0)
    PST = opts.get('pst', 0)
    def stamp_it(pp, mode, tag, vals):
        if PROF and PST == mode:
            pp("s_cselect_b32 s99, 1, 0")
            for v, i in vals:
                pp(f"s_cmp_lg_u32 s{sIt}, {v}\ns_cbranch_scc1 L_si{tag}{v}"); stamp(pp, i, mode); pp(f"L_si{tag}{v}:")
            pp("s_cmp_lg_u32 s99, 0")
    cnt = [0]
    def stamp(pp, i, mode=0):
        if PROF and PST == mode and opts.get('r0') and i not in (0, 9):
            cnt[0] += 1
            pp(f"s_cselect_b32 s97, 1, 0\ns_cmp_eq_u32 s{sRnd}, 1\ns_cbranch_scc1 L_r0s{cnt[0]}\ns_memtime s[{80+2*i}:{81+2*i}]\ns_waitcnt lgkmcnt(0)")
            pp(f"L_r0s{cnt[0]}:"); pp("s_cmp_lg_u32 s97, 0")
        elif PROF and (PST == mode or i in (0, 9)):
            pp(f"{'s_memrealtime' if opts.get('rt') else 's_memtime'} s[{80+2*i}:{81+2*i}]\ns_waitcnt lgkmcnt(0)")
    def stamp_r(pp, i0, i1, tag):
        if PROF and PST == 0:
            pp(f"s_cmp_eq_u32 s{sRnd}, 0\ns_cbranch_scc0 L_st{tag}a"); stamp(pp, i0); pp(f"s_branch L_st{tag}b\nL_st{tag}a:"); stamp(pp, i1); pp(f"L_st{tag}b:")
    p(f"{KN}:")
    p("s_cmp_ge_u32 s2, 256\ns_cbranch_scc1 L_exit")
    p("s_load_dwordx8 s[56:63], s[0:1], 0\ns_load_dwordx8 s[64:71], s[0:1], 32")
    if PROF:
        for i in range(10): p(f"s_mov_b32 s{80+2*i}, 0")
        p("s_memrealtime s[100:101]")
    stamp(p, 0)
    p(f"v_lshrrev_b32 v1, 6, v0\nv_and_b32 v0, 63, v0\nv_lshlrev_b32 v{vLin}, 4, v0")
    p(f"v_readfirstlane_b32 s{sWave}, v1")
    p(f"s_bfe_u32 s{sB}, s2, 0x20001\ns_lshl_b32 s{sB}, s{sB}, 3\ns_lshr_b32 s{sBL}, s2, 5\ns_add_u32 s{sB}, s{sB}, s{sBL}")
    p(f"s_and_b32 s{sHG}, s2, 1\ns_lshl_b32 s{sHG}, s{sHG}, 2\ns_bfe_u32 s{sT3}, s2, 0x20003\ns_add_u32 s{sHG}, s{sHG}, s{sT3}")
    p(f"s_add_u32 s{sT3}, s{sT3}, s{sBL}")
    p(f"s_mul_i32 s{sT2}, s{sT3}, 205\ns_lshr_b32 s{sT2}, s{sT2}, 10\ns_mul_i32 s{sT2}, s{sT2}, 5\ns_sub_u32 s{sR0}, s{sT3}, s{sT2}")
    p(f"s_lshr_b32 s{sPi}, s{sWave}, 1")
    p(f"v_lshrrev_b32 v1, 4, v0\nv_and_b32 v2, 0xf0, v{vLin}\nv_and_b32 v3, 1, v1\nv_lshrrev_b32 v5, 1, v1")
    p(f"v_lshl_add_u32 v4, v3, 1, v5\nv_mul_u32_u24 v{vXd}, {8*1280}, v4\nv_lshlrev_b32 v4, 4, v3\nv_xor_b32 v4, v4, v2\nv_add_u32 v{vXd}, v{vXd}, v4")
    p(f"v_lshl_add_u32 v4, v5, 2, v3\nv_lshl_add_u32 v{vWd}, v4, 15, v2")
    p(f"s_mul_i32 s{sXl}, s{sWave}, {2*PCS}\ns_mul_i32 s{sXg}, s{sWave}, 1280")
    p(f"s_mul_i32 s{sHS}, s{sWave}, {SLOT}")
    p(f"s_and_b32 s{sT}, s{sWave}, 1\ns_lshl_b32 s{sGB}, s{sT}, 18\ns_lshl_b32 s{sT}, s{sPi}, 8\ns_add_u32 s{sGB}, s{sGB}, s{sT}")
    p(f"s_mul_i32 s{sT2}, s{sB}, 204800\ns_lshl_b32 s{sT3}, s{sHG}, 10\ns_sub_u32 s{sIt}, 5242880, s{sT3}\ns_mov_b32 s{sRnd}, 0")
    p("s_waitcnt lgkmcnt(0)")
    stamp(p, 1, 4)
    mksrd(p, sX, 56, f"s{sT2}", 204800)
    mksrd(p, sWQ, 62, f"s{sT3}", f"s{sIt}")
    call(p, "S_qpx")
    p("s_branch L_setup")
    def xops():
        o = []
        for t in range(5):
            for hh in range(2):
                o.append(f"s_add_u32 m0, s{sXl}, {XR+t*SLOT+hh*PCS}\ns_add_u32 s{sT}, s{sPc}, {(32*t+4*hh)*1280}\nbuffer_load_dwordx4 v{vXd}, {srd(sX)}, s{sT} offen lds")
        return o
    xpre = f"s_lshl_b32 s{sPc}, s{sCur}, 8\ns_add_u32 s{sPc}, s{sPc}, s{sXg}"
    def wops(pa=sPa, add=0):
        return [f"s_add_u32 m0, s{pa}, {pc*PCS}\ns_add_u32 s{sT}, s{sPb}, {(8*(pc&1)+(pc>>1))*8192+add}\nbuffer_load_dwordx4 v{vWd}, {srd(sWQ)}, s{sT} offen lds" for pc in range(8)]
    def wpre(reg, u):
        return f"s_add_u32 s{sPa}, s{sHS}, {reg}\ns_lshl_b32 s{sPb}, s{sCur}, 20\ns_add_u32 s{sPb}, s{sPb}, s{sGB}" + (f"\ns_add_u32 s{sPb}, s{sPb}, {64*8192}" if u else "")
    p("S_qpx:")
    p(f"s_mov_b32 s{sCur}, s{sR0}"); p(xpre)
    for o in xops(): p(o)
    p(wpre(K0, 0))
    for o in wops()[:opts.get('iw', 4)]: p(o)
    ret(p, "S_qpx")
    p("L_setup:")
    stamp(p, 2, 4)
    PR = 4 if opts.get('nat', 1) else 8
    if opts.get('nat', 1): p("v_lshl_add_u32 v4, v3, 1, v5\nv_lshlrev_b32 v4, 1, v4")
    p(f"v_mul_u32_u24 v{vWoA}, {4*1280}, v4\nv_add_u32 v{vWoA}, v{vWoA}, v2\nv_bfe_u32 v6, v0, 3, 1\nv_mul_u32_u24 v6, {128*1280}, v6")
    p(f"v_sub_u32 v{vWoB}, v{vWoA}, v6\nv_add_u32 v{vWoB}, {128*1280}, v{vWoB}\nv_add_u32 v{vWoA}, v{vWoA}, v6")
    p(f"v_mul_u32_u24 v{vWarm}, 1280, v1\nv_add_u32 v{vWarm}, v{vWarm}, v2")
    p(f"s_lshl_b32 s{sT}, s{sBL}, 2\ns_add_u32 s{sT}, s{sT}, s{sWave}\ns_mul_i32 s{sT}, s{sT}, {4*1280}\nv_add_u32 v{vWarm}, s{sT}, v{vWarm}")
    mksrd(p, sOUT, 66, f"s{sT2}", 204800)
    p(f"s_mov_b32 s{sDBG}, s68\ns_mov_b32 s{sDBG+1}, s69\ns_mov_b32 s{sDBG+2}, 256\ns_mov_b32 s{sDBG+3}, 0x20000")
    p("s_mov_b32 s66, s70\ns_mov_b32 s67, s71")
    p(f"s_lshl_b32 s{sT}, s{sB}, 3\ns_add_u32 s{sT}, s{sT}, s{sHG}\ns_lshl_b32 s{sT3}, s{sT}, 19\ns_lshl_b32 s{sPa}, s{sPi}, 17\ns_add_u32 s{sT3}, s{sT3}, s{sPa}")
    mksrd(p, sK, 58, f"s{sT3}", 131072); mksrd(p, sV, 60, f"s{sT3}", 131072)
    p(f"s_mul_i32 s{sT3}, s{sT}, {SLAB}"); mksrd(p, sPO, 66, f"s{sT3}", SLAB)
    p(f"s_lshl_b32 s{sT2}, s{sT2}, 3"); mksrd(p, sPA, 66, f"s{sT2}", 8 * SLAB)
    p(f"s_lshl_b32 s{sT2}, s{sB}, 10\ns_add_u32 s{sT2}, s{sT2}, {FLG}"); mksrd(p, sFL, 66, f"s{sT2}", 1024)
    p(f"s_mul_i32 s{sT2}, s{sHG}, {512*1280}"); mksrd(p, sWO, 64, f"s{sT2}", 512 * 1280)
    if PROF: p("s_mov_b32 s65, s100")
    p(f"s_mov_b32 s{sC}, {f2u(SCALE)}\ns_mov_b32 s{sMsk}, 0xffff0000")
    p(f"v_bfe_u32 v4, v0, 2, 2\nv_lshl_add_u32 v4, v4, 1, v3\nv_mul_u32_u24 v{vTl}, {PCS}, v4\nv_lshl_add_u32 v{vTl}, v5, 9, v{vTl}")
    NAT = opts.get('nat', 1); vTn = 219 if NAT else vTl
    p(f"v_and_b32 v4, 0x30, v{vLin}")
    if NAT: p(f"v_lshrrev_b32 v6, 1, v4\nv_add_u32 v{vTn}, v{vTl}, v6")
    p(f"v_add_u32 v{vTl}, v{vTl}, v4")
    HS = 32 if NAT else 8
    p(f"v_and_b32 v4, 3, v0\nv_bfe_u32 v6, v0, 2, 1\nv_lshl_add_u32 v4, v4, 1, v6\nv_mul_u32_u24 v7, {PCS}, v4\nv_bfe_u32 v6, v0, 3, 1\nv_lshl_add_u32 v7, v6, 9, v7")
    p(f"v_xor_b32 v6, 1, v1\nv_lshl_add_u32 v8, v6, 4, v7\nv_add_u32 v8, 256, v8\nv_lshl_add_u32 v7, v1, 4, v7")
    p(f"s_mul_i32 s{sMK}, s{sPi}, {K1}")
    p(f"v_add_u32 v{vKa0}, s{sMK}, v7\nv_add_u32 v{vKa1}, s{sMK}, v8\ns_add_u32 s{sMV}, s{sMK}, {V0}\nv_add_u32 v{vVa}, s{sMV}, v{vTn}")
    p(f"s_and_b32 s{sT}, s{sWave}, 1\ns_mul_i32 s{sT2}, s{sT}, {4*PCS}\ns_add_u32 s{sMK}, s{sMK}, s{sT2}\ns_add_u32 s{sMV}, s{sMV}, s{sT2}")
    p(f"v_add_u32 v{vXa0}, {XR}, v7\nv_add_u32 v{vXa1}, {XR}, v8")
    p(f"s_cmp_eq_u32 s{sT}, 0\ns_cbranch_scc1 L_x0")
    p(f"v_add_u32 v{vXa0}, {XR+2*SLOT}, v8\nv_add_u32 v{vXa1}, {XR+3*SLOT}, v7")
    p("L_x0:")
    p(f"s_mul_i32 s{sT2}, s{sT}, 20480\ns_lshl_b32 s{sT3}, s{sPi}, 11\ns_add_u32 s{sT2}, s{sT2}, s{sT3}\nv_add_u32 v{vSt}, s{sT2}, v{vLin}")
    p(f"s_lshr_b32 s{sT2}, s{sHG}, 2\ns_and_b32 s{sT3}, s{sHG}, 3\ns_lshl_b32 s{sT3}, s{sT3}, 2\ns_add_u32 s{sT3}, s{sT3}, s{sWave}")
    p(f"s_mul_i32 s{sPa}, s{sT2}, 20480\ns_lshl_b32 s{sPb}, s{sT3}, 8\ns_add_u32 s{sPa}, s{sPa}, s{sPb}\ns_mov_b32 s{sPb}, {SLAB}")
    p(f"v_mul_lo_u32 v{vOfs}, s{sPb}, v1\nv_add3_u32 v{vOfs}, v{vOfs}, v2, s{sPa}")
    p(f"s_mul_i32 s{sPa}, s{sT2}, {80*1280}\ns_lshl_b32 s{sPb}, s{sT3}, 4\ns_add_u32 s{sPa}, s{sPa}, s{sPb}")
    if NAT: p(f"s_lshl_b32 s{sPb}, s{sWave}, 3\ns_sub_u32 s{sPa}, s{sPa}, s{sPb}")
    p(f"v_and_b32 v4, 15, v0\nv_lshl_add_u32 v6, v5, 4, v4\nv_mul_u32_u24 v{vOfo}, 1280, v6\nv_lshl_add_u32 v{vOfo}, v3, {5 if NAT else 3}, v{vOfo}\nv_add_u32 v{vOfo}, s{sPa}, v{vOfo}")
    p(f"v_mov_b32 v6, {OOB}\nv_cmp_gt_u32 s[{sT2}:{sT2+1}], 32, v0\nv_cndmask_b32 v{vOf3}, v6, v{vOfo}, s[{sT2}:{sT2+1}]")
    p(f"v_and_b32 v6, 1, v0\nv_lshlrev_b32 v6, 4, v6\nv_mov_b32 v9, 0x3f80\nv_lshlrev_b32 v6, v6, v9\nv_lshrrev_b32 v4, 1, v4")
    for r in range(8):
        p(f"v_cmp_eq_u32 s[{sT2}:{sT2+1}], {r}, v4\nv_cndmask_b32 v{SEL+r}, 0, v6, s[{sT2}:{sT2+1}]")
    for r in range(4): p(f"v_mov_b32 v{ONE+r}, 0x3f803f80")
    p(f"v_mov_b32 v{vZ}, 0\nv_mov_b64 {vr(TT,2)}, 0\nv_mov_b64 {vr(TT+2,2)}, 0")
    zacc = [f"v_mfma_f32_32x32x16_bf16 {vr(16*i,16)}, {vr(TT,4)}, {vr(TT,4)}, 0" for i in range(10)]
    p(f"s_lshl_b32 s{sT}, s{sHG}, 3\ns_add_u32 s{sT}, s{sT}, s{sWave}\ns_cmp_eq_u32 s{sT}, 1\ns_cbranch_scc1 L_fi")
    p("L_fib:")
    if opts.get('cw', 1):
        p(f"s_getpc_b64 s[{sT2}:{sT2+1}]")
        p("L_pc:")
        p(f"s_sub_u32 s{sT2}, s{sT2}, L_pc-{KN}\ns_subb_u32 s{sT2+1}, s{sT2+1}, 0")
        p(f"s_lshr_b32 s{sT}, s2, 3\ns_lshl_b32 s{sT}, s{sT}, 1\ns_add_u32 s{sT}, s{sT}, s{sPi}\ns_lshl_b32 s{sT}, s{sT}, 10\ns_min_u32 s{sT}, s{sT}, L_code_end-{KN}-1024")
        p(f"v_add_u32 v196, s{sT}, v{vLin}\ns_bitcmp1_b32 s{sWave}, 0\ns_cbranch_scc1 L_ncw")
        p(f"global_load_dwordx4 {vr(WD,4)}, v196, s[{sT2}:{sT2+1}]")
        p("L_ncw:")
    side("L_fi:")
    side(f"buffer_store_dwordx4 {vr(TT,4)}, v{vLin}, {srd(sFL)}, 0 offen sc1\ns_waitcnt vmcnt(0)")
    side(f"s_lshl_b32 s{sT}, s{sB}, 3\nv_mov_b32 v196, s{sT}\nv_mov_b32 v197, 1\ns_mov_b64 exec, 1")
    side(f"buffer_atomic_add v197, v196, {srd(sDBG)}, 0 offen sc1\ns_mov_b64 exec, -1\ns_branch L_fib")

    vRx = 222
    def adv(d, a, sc): return f"v_add_u32 v{d}, s{sc}, v{a}" if not opts.get('krot', 0) else f"v_xad_u32 v{d}, v{a}, v{vRx}, s{sc}\nv_xor_b32 v{d}, v{d}, v{vRx}"
    KROT = opts.get('krot', 0)
    if KROT == 1: p(f"s_lshr_b32 s{sT}, s2, 3\ns_add_u32 s{sT}, s{sT}, s2\ns_lshl_b32 s{sT2}, s{sPi}, 2\ns_add_u32 s{sT}, s{sT}, s{sT2}\ns_and_b32 s{sT}, s{sT}, 7")
    elif KROT == 2: p(f"s_lshr_b32 s{sT}, s2, 3\ns_and_b32 s{sT}, s{sT}, 7")
    else: p(f"s_mov_b32 s{sT}, 0")
    p(f"s_lshl_b32 s{sT}, s{sT}, 14\nv_mov_b32 v{vRx}, s{sT}")
    def kv_ops(isk, tile4):
        base, vo, sr = (sMK, vDk, sK) if isk else (sMV, vDv, sV)
        slot = tile4 & 3 if isk else (tile4 + 2) & 3
        o = [f"s_add_u32 m0, s{base}, {slot*SLOT+32*j}\ns_nop 0\nbuffer_load_dwordx4 v{vo}, {srd(sr)}, 0 offen offset:{1024*j} nt lds" for j in range(4)]
        o[-1] += "\n" + adv(vo, vo, sSt)
        return o

    stamp(p, 3, 4)
    if PST == 4:
        p("s_waitcnt vmcnt(26)"); stamp(p, 4, 4); p("s_waitcnt vmcnt(17)"); stamp(p, 5, 4); p("s_waitcnt vmcnt(9)"); stamp(p, 6, 4); p("s_waitcnt vmcnt(0)"); stamp(p, 7, 4)
    p("L_round:")
    kvinit = f"s_and_b32 s{sT}, s{sWave}, 1\ns_lshl_b32 s{sT}, s{sT}, 12\nv_add3_u32 v{vDv}, s{sT}, v{vLin}, v{vRx}\nv_bfe_u32 v{t0}, v{vLin}, 8, 1\nv_lshlrev_b32 v{t0}, 4, v{t0}\nv_xor_b32 v{vDk}, v{t0}, v{vDv}"
    kvadv = "\n".join(f"s_add_u32 s{s_}, s{s_}, 262144\ns_addc_u32 s{s_+1}, s{s_+1}, 0" for s_ in (sK, sV))
    p(kvinit)
    p(f"s_mul_i32 s{sT}, s{sPi}, {2*SLOT}\nv_add_u32 v{tA}, s{sT}, v{vTl}\nv_add_u32 v{tB}, {K1}, v{tA}\nv_add_u32 v{tC}, {V0}, v{tA}")
    p(f"s_add_u32 s{sRa}, s{sHS}, {K0}\ns_add_u32 s{sRb}, s{sHS}, {K1}\ns_add_u32 s{sRc}, s{sHS}, {V0}\ns_mov_b32 s{sIt}, 0")
    p(f"v_mov_b64 {vr(TT,2)}, 0\nv_mov_b64 {vr(TT+2,2)}, 0")
    for z in zacc: p(z)
    xb = lambda t, j: 16 * t + 4 * j
    xt = lambda t, j: 80 + 8 * t + 4 * (j - 2)
    qacc = lambda nt, t: 32 * t + 4 * nt
    for r in range(8): p(f"v_accvgpr_write_b32 a{aF+r}, 0")
    for t in range(5):
        for r in range(4): p(f"v_accvgpr_write_b32 a{xb(t,3)+r}, 0")
    def xread(t, j): return f"ds_read_b128 {ar(xb(t,j) if j < 2 else xt(t,j),4)}, v{[vXa0,vXa1][t&1]} offset:{(t>>1)*SLOT+64*j}"
    p(f"s_cmp_eq_u32 s{sRnd}, 1\ns_cbranch_scc1 L_rw2")
    p(wpre(K0, 0))
    for o in wops()[opts.get('iw', 4):]: p(o)
    p("s_waitcnt vmcnt(0)\ns_barrier")
    for j in range(4):
        for t in range(5): p(xread(t, j))
        if j == 1: p("s_waitcnt lgkmcnt(0)")
    for o in wops(sRb, 64 * 8192): p(o)
    p("L_rw2:")
    p("s_waitcnt lgkmcnt(0)\ns_barrier")
    stamp_r(p, 1, 4, "q"); stamp(p, 1, 1)
    HQ = 2
    NS = opts.get('ns', 3)
    GO = opts.get('go', 1); GP = opts.get('gp', 1); GS = opts.get('gs', 1)
    def gunit(rdtxt, mf, streams, vm=None, T=None):
        lg = Q(p, "lgkmcnt", 15); tok = {0: 0, 1: 0}
        G = Gaps()
        for m in range(14):
            for e in range(2): G.pin(5 * m + 4 + GO + e, ("RD", m + 4, e))
        for m in range(2, 16):
            if not (GP and m % 2 and m > 4): G.reserve(5 * m - 1)
        for m in (2, 3):
            for e in range(2): G.pin(m - 2, ("RD", m, e))
        for seq, gaps in streams: G.stream(seq, gaps)
        def rd(m, e): lg.room(1); p(rdtxt(m, e)); tok[m] = lg.issue()
        isv = lambda o: isinstance(o, str) and o.startswith('v_')
        for m in range(16):
            lg.wait(max(tok[m], tok.get(m + 1, 0)) if GP and m % 2 == 0 and m >= 4 else tok[m])
            for t in range(5):
                p(mf(m, t))
                its = G.items[5 * m + t]
                if GS:
                    k = next((i for i, o in enumerate(its) if (isinstance(o, str) and o.startswith('s_')) or (isinstance(o, tuple) and o[0] == 'VM')), None)
                    if k and isinstance(its[k], str): its = [its[k]] + its[:k] + its[k+1:]
                for o in its:
                    if isinstance(o, str): p(o)
                    elif o[0] == "RD": rd(o[1], o[2])
                    elif o[0] == "DS": lg.room(1); p(o[1]); lg.issue()
                    elif o[0] == "W": vm.wait(T.get(o[1], 0))
                    else:
                        p(o[1])
                        if vm:
                            tk = vm.issue()
                            if o[2]: T[o[2]] = tk
    def qunit(u, dm, fill, endw, span=76):
        def rdtxt(m, e):
            f = m - HQ; ks = f >> 3; nt = f & 7
            return f"ds_read_b64_tr_b16 {ar(FB(m)+2*e,2)}, v{[tA,tB][u]} offset:{ks*SLOT+e*256+(nt>>1)*64+(nt&1)*8}"
        def mf(m, t):
            f = m - HQ
            j = (2 * u + (f >> 3)) & 3 if f >= 0 else (2 * u - 1) & 3
            return m16(vr(qacc(f & 7, t), 4), ar(FB(m), 4), ar(xb(t, j), 4))
        gunit(rdtxt, mf, [(split(dm), list(range(0, span)))] + fill)
        p(endw)
    movs = [([(f"v_accvgpr_mov_b32 a{xb(t,j)+r}, a{xt(t,j)+r}", 1) for j in (2, 3) for t in range(5) for r in range(4)], list(range(0, 79)))]
    xrd = [([(("DS", xread(t, j)), 1) for j in (2, 3, 0, 1) for t in range(5)], list(range(1, 70)))]
    rot = (f"v_mov_b32 v{t0}, v{tC}\nv_mov_b32 v{tC}, v{tB}\nv_mov_b32 v{tB}, v{tA}\nv_mov_b32 v{tA}, v{t0}\n"
           f"s_mov_b32 s{sT}, s{sRc}\ns_mov_b32 s{sRc}, s{sRb}\ns_mov_b32 s{sRb}, s{sRa}\ns_mov_b32 s{sRa}, s{sT}")
    WQ = 0
    vPv, vPk, vWv, vWk = 221, 247, 218, 220
    LR = 160; aSR = 120
    kvs = []
    for i in range(10):
        kvs += [(f"v_accvgpr_write_b32 a{aSR+4*i+r}, v{LR+4*i+r}", 1) for r in range(4)]
        if i < 8: kvs.append((("VM", f"buffer_load_dwordx4 {vr(LR+4*i,4)}, v{vPv}, {srd(sV)}, {'s%d' % sSt if i >= 4 else '0'} offen offset:{1024*(i&3)} nt", None), 1.5))
        else: kvs.append((("VM", f"buffer_load_dwordx4 {vr(LR+4*i,4)}, v{vPk}, {srd(sK)}, 0 offen offset:{1024*(i&1)} nt", None), 1.5))
    kvs += [(f"v_xor_b32 v{vPv}, 0x4000, v{vPv}", 1), (f"v_add_u32 v{vPk}, 0x800, v{vPk}", 1)]
    p(f"v_mov_b32 v{vPv}, {OOB}\nv_mov_b32 v{vPk}, {OOB}\ns_movk_i32 s{sSt}, 0x2000")
    p("L_Q_loop:")
    stamp_it(p, 1, "q", [(0, 2), (2, 3)])
    p(f"s_add_u32 s{sCur}, s{sCur}, 1\ns_cmp_ge_u32 s{sCur}, 5\ns_cselect_b32 s{sCur}, 0, s{sCur}")
    p(xpre); p(f"s_lshl_b32 s{sPb}, s{sCur}, 20\ns_add_u32 s{sPb}, s{sPb}, s{sGB}")
    p(f"s_cmp_eq_u32 s{sIt}, 3\ns_cselect_b32 s{sPa}, 0x30000, s{sRa}")
    p(f"s_cmp_eq_u32 s{sIt}, 2\ns_cbranch_scc1 L_Q_en")
    p("L_Q_enb:")
    side("L_Q_en:"); side(f"v_mov_b32 v{vPv}, v{vDv}\nv_xor_b32 v{vPk}, 0x6000, v{vDk}\ns_branch L_Q_enb")
    qunit(0, xops() + wops(sRc), movs, f"s_waitcnt vmcnt(8) lgkmcnt(0)\ns_barrier", span=76)
    qunit(1, wops(sPa, 64 * 8192), xrd + [(kvs, list(range(0, opts.get('kvspan', 60))))], rot + f"\ns_add_u32 s{sIt}, s{sIt}, 1\ns_cmp_lt_u32 s{sIt}, 4\ns_waitcnt vmcnt(18) lgkmcnt(0)\ns_barrier")
    p("s_cbranch_scc1 L_Q_loop")
    stamp(p, 4, 1)
    p(f"s_add_u32 s{sPa}, s{sHS}, {XR}\ns_mul_i32 s{sT}, s{sPi}, {2*SLOT}\ns_add_u32 s{sT}, s{sT}, {XR}\nv_add_u32 v{tB}, s{sT}, v{vTl}")
    p(f"v_add_u32 v{vWv}, s{sMV}, v{vLin}\nv_add_u32 v{vWk}, s{sMK}, v{vLin}\nv_xor_b32 v{vDv}, 0x8000, v{vDv}")
    kpre = kv_ops(True, 0) + kv_ops(True, 1) + kv_ops(True, 2) + [adv(vDk, vDk, sSt)]
    def kvw(st, i):
        src = ar(aSR + 4 * i, 4) if st == 0 else vr(LR + 4 * i, 4)
        if i < 8: return f"ds_write_b128 v{vWv}, {src} offset:{((2*st+(i>>2)+2)&3)*SLOT+(i&3)*PCS}"
        return f"ds_write_b128 v{vWk}, {src} offset:{3*SLOT+(2*st+(i&1))*PCS}"
    NPF = opts.get('npf', 0); pfm = " nt" if opts.get('pfnt', 1) else ""
    pf = []
    for k in range(NPF):
        for isk in (True, False):
            for jj in range(4):
                pf.append((f"s_mov_b32 s{sT3}, {(3+k if False else 4+k)*8192}\n" if jj == 0 and isk else "") + f"buffer_load_dwordx4 {vr(WD,4)}, v{vPv}, {srd(sK if isk else sV)}, s{sT3} offen offset:{1024*jj}{pfm}")
    q4 = len(pf) // 4
    p(f"v_mov_b32 v{vPv}, {OOB}")
    kw = [(("DS", kvw(st, i)), 2) for st in range(2) for i in (8, 9)]
    qunit(0, wops(sPa, 64 * 8192) + kpre[:8], movs, "s_waitcnt vmcnt(8) lgkmcnt(0)\ns_barrier")
    qunit(1, kpre[8:] + pf[:q4], [(kw, list(range(0, 60)))], f"s_waitcnt vmcnt({8+q4}) lgkmcnt(0)\ns_barrier")
    stamp(p, 5, 1)
    vw = [kvw(st, i) for st in range(2) for i in range(8)]
    for m in range(HQ):
        for t in range(5): p(m16(vr(qacc(6 + m, t), 4), ar(FB(m), 4), ar(xb(t, 3), 4)))
    for i in range(80):
        p(f"v_pk_mul_f32 {vr(2*i,2)}, {vr(2*i,2)}, s[{sC}:{sC+1}] op_sel_hi:[1,0]")
        if i >= 2: p(f"v_cvt_pk_bf16_f32 v{i-2}, v{2*i-4}, v{2*i-3}")
        if i % 5 == 0:
            if i == 40: p("s_waitcnt lgkmcnt(0)")
            p(vw[i // 5])
        if i % 10 == 3 and i // 10 < q4: p(pf[q4 + i // 10])
    p("v_cvt_pk_bf16_f32 v78, v156, v157\nv_cvt_pk_bf16_f32 v79, v158, v159\ns_waitcnt lgkmcnt(0)")
    for r in range(0, 20, 2): p(f"v_mov_b64 {vr(NM+r,2)}, 0")
    stamp(p, 6, 1); stamp(p, 7, 1)
    stamp_r(p, 2, 5, "a")

    HB = 2
    DRYN = {"m2": "L_A_m1", "m1": "L_A_z0", "z0": "L_dry_done", "l1": "L_A_l2", "l2": "L_dry_done", "l3": "L_A_l0", "l0": "L_dry_done", "e13": "L_A_e14", "e15": "L_dry_done"}
    def sm_ops(b):
        seq = []
        for k in range(43):
            if k < 40: seq.append((f"v_exp_f32 v{b+k}, v{b+k}", 2))
            if k >= 4 and k % 2 == 0:
                i = (k - 4) // 2
                seq.append((f"v_cvt_pk_bf16_f32 v{b+8*(i>>2)+(i&3)}, v{b+2*i}, v{b+2*i+1}", 1))
        return seq
    W1 = list(range(24, 80)) + list(range(0, 9))
    def oops(vo): return [f"s_add_u32 m0, s{sPa}, {pc*PCS}\ns_add_u32 s{sT}, s{sPb}, {(PR*(pc&1)+(pc>>1))*1280}\nbuffer_load_dwordx4 v{vo}, {srd(sWO)}, s{sT} offen lds" for pc in range(8)]
    r0 = xops() + wops(sPa) + wops(sRa, 64 * 8192)
    r0[0] = f"s_add_u32 s{sGB}, s{sGB}, 512\ns_mov_b32 s{sCur}, s{sR0}\n{xpre}\n{wpre(K0, 0)}\ns_add_u32 s{sRa}, s{sHS}, {K1}\n" + r0[0]
    r0s = [r0[4*i:4*i+4] for i in range(6)] + [r0[24:26], [], []]
    wm = [f"s_mov_b32 s{sT}, {(k>>2)*256+(k&3)*128*1280}\nbuffer_load_dwordx4 {vr(WD,4)}, v{vWarm}, {srd(sWO)}, s{sT} offen" for k in range(20)]
    o0 = oops(vWoA); o1 = oops(vWoA)
    o0[0] = f"s_mul_i32 s{sGB}, s{sWave}, {32*1280}\ns_add_u32 s{sPa}, s{sHS}, {K0}\ns_mov_b32 s{sPb}, s{sGB}\n" + o0[0]
    o1[0] = f"s_add_u32 s{sPa}, s{sHS}, {K1}\ns_add_u32 s{sPb}, s{sGB}, {256*1280}\n" + o1[0]
    r1s = [wm[0:4], wm[4:7], wm[7:10], wm[10:13], wm[13:16], wm[16:20], [], o0, o1]
    def site(k):
        p(f"s_cmp_eq_u32 s{sRnd}, 0\ns_cbranch_scc0 L_s{k}a")
        for o in r0s[k]: p(o)
        p(f"L_s{k}b:")
        side(f"L_s{k}a:")
        for o in r1s[k]: side(o)
        side(f"s_branch L_s{k}b")
    POS = []
    for m in range(16):
        POS += [(m, t) for t in range(5)]
        if 3 <= m < 8: POS.append(('L', m - 3))
    NPOS = len(POS); first_of = {m: POS.index((m, 0)) for m in range(16)}
    PW = 1
    cap = {x: 2 for x in range(NPOS)}; pins = {x: [] for x in range(NPOS)}
    for m in range(2, 16):
        if m < 4 or m % 2 == 0: cap[first_of[m] - 1] -= 1
    if opts.get('hd', 1):
        for m in (2, 3):
            for e in range(2): pins[m - 2].append(('RD', m, e)); cap[m - 2] -= 1
    for m in range(14):
        x = POS.index((m, 4))
        if x + 1 < NPOS and POS[x + 1][0] == 'L' and cap[x + 1] == 1 and m + 4 >= 10: x += 1
        for e in range(2 if m + 4 < 10 else 1):
            while cap[x] < 1: x += 1
            pins[x].append(('RD', m + 4, e)); cap[x] -= 1
    XC = opts.get('xc', 20); XP = first_of[11] - 1
    while cap[XC] < 2: XC += 1
    cap[XC] = 0
    while cap[XP] < 1: XP += 1
    cap[XP] -= 1
    cap[NPOS - 1] -= 1
    order = list(range(XC + 1, NPOS)) + list(range(0, XC)); n1 = NPOS - XC - 1
    EH = opts.get('eh', 8)
    cand = [g for g in order[:n1 + EH] if cap[g] == 2]
    assert len(cand) >= 40, len(cand)
    skip = len(cand) - 40
    drop = {cand[min(len(cand) - 1, int((i + 0.75) * len(cand) / max(skip, 1)))] for i in range(skip)}
    eg = [g for g in cand if g not in drop][:40]
    assert len(eg) == 40
    tmpl = {x: [] for x in range(NPOS)}; pos = {g: i for i, g in enumerate(order)}
    for k, g in enumerate(eg): tmpl[g].append(('EX', k)); cap[g] = 0
    def place(it, lo, hi):
        g = next((g for g in order[lo:hi + 1] if cap[g] >= 1), None)
        if g is None:
            g = order[hi]; print("overflow", it, file=sys.stderr)
        tmpl[g].append(it); cap[g] -= 1
        return pos[g]
    last = 0
    for i in range(20): last = place(('CV', i), max(last, pos[eg[2 * i + 1]] + 1), n1 + 8 + (i >> 2))
    mreg = [8 * t + r for t in range(5) for r in range(4)] + [8 * t + 4 + r for t in range(5) for r in range(4)]
    mx = [('MX', TT, None, mreg[0:3]), ('MX', TT + 1, None, mreg[3:6])] + [('MX', TT + ((i >> 1) & 1), 1, mreg[i:i+2]) for i in range(6, 40, 2)] + [('MF',)]
    last = pos[first_of[14] + 3]; MXW = set()
    for i, o in enumerate(mx):
        last = place(o, max(last, n1 + 8 + ((i - 9) >> 1) if i >= 9 else 0), len(order) - 1)
    free = [g for g in range(1, NPOS - 1) for _ in range(max(cap[g], 0))]
    fg = sorted(set(free)); assert len(fg) >= 8, fg
    sel = [fg[int((i + 0.3) * len(fg) / 8)] for i in range(8)]
    for i, g in enumerate(sel):
        assert i == 0 or g - 1 >= sel[i - 1] + 1 or True
        pins[g - 1 if (i == 0 or g - 1 > sel[i - 1]) else g].insert(0, ('DM', 2 * i)); tmpl[g].append(('DM', 2 * i + 1)); cap[g] -= 1
    tmpl[XC] = ['CHECK']; tmpl[XP].append('PT2')
    print("A template: XC", XC, "left", sum(max(c, 0) for c in cap.values()), "over", sum(-min(c, 0) for c in cap.values()), file=sys.stderr)
    def abody(tag, nm, held=True, pv=True, qk=True, zc=False, first=False, dma=True, smt=True, smh=True, endw=f"vmcnt({opts.get('endn', 6)})", bar=True, sites={}, fill={}):
        Sn = SS[nm & 1]; Sn1 = SS[(nm + 1) & 1]
        lg = Q(p, "lgkmcnt", 15); tok = {0: 0, 1: 0}
        p(f"L_A_{tag}:")
        slot = (nm + 2) & 3
        ms = ([0, 1] if held else []) + (list(range(2, 10)) + ['L'] if pv else []) + (list(range(10, 16)) if qk else [])
        done = set()
        def rd(m, e):
            if (m, e) in done or (m < 10 and not pv) or (m >= 10 and not qk): return
            done.add((m, e)); lg.room(1)
            if m < 10:
                dt = m - 2
                p(f"ds_read_b64_tr_b16 {ar(FB(m)+2*e,2)}, v{vVa} offset:{slot*SLOT+e*256+(dt>>1)*64+(dt&1)*HS}")
            else:
                k = m - 10
                p(f"ds_read_b128 {ar(FB(m),4)}, v{[vKa0,vKa1][k>>2]} offset:{slot*SLOT+64*(k&3)}")
            tok[m] = lg.issue()
        dm = []
        if dma:
            for o in kv_ops(True, nm + 1) + (kv_ops(False, nm + 3) if dma != 'k' else []):
                l = o.replace("s_nop 0\n", "").split("\n"); dm += [l[0], "\n".join(l[1:])]
        for m in (() if pv and opts.get('hd', 1) else (2, 3) if pv else (10, 11)):
            for e in range(2 if pv else 1): rd(m, e)
        for x, (m, t) in enumerate(POS):
            if m in ms:
                if m == 'L': p(m16(vr(LL + 4 * t, 4), vr(ONE, 4), vr(Sn + 8 * t, 4), '0' if zc else None))
                else:
                    if t == 0: lg.wait(max(tok[m], tok.get(m + 1, 0)) if PW and m % 2 == 0 and m >= 4 else tok[m])
                    if m < 2: p(m16(vr(Sn1 + 8 * t + 4, 4), ar(FB(m), 4), vr(QR + 16 * t + 4 * (2 + m), 4)))
                    elif m < 10: p(m16(ar(oacc(m - 2, t), 4), ar(FB(m), 4), vr(Sn + 8 * t, 4), '0' if zc else None))
                    else:
                        k = m - 10
                        p(m16(vr(Sn + 8 * t + 4 * (k >> 2), 4), ar(FB(m), 4), vr(QR + 16 * t + 4 * (k & 3), 4), vr(NM + 4 * t, 4) if k & 3 == 0 else None))
            b = Sn1 if x > XC else Sn; on = smh if x > XC else smt
            for o in pins[x] + tmpl[x]:
                if o == 'CHECK':
                    if first: call(p, "S_first")
                    elif smh:
                        p(f"v_cmp_lt_f32 vcc, 0x41000000, v{TT+2}\ns_cbranch_vccnz L_rr{tag}")
                        p(f"L_rb{tag}:")
                        side(f"L_rr{tag}:"); call(side, f"S_rare{(nm+1)&1}"); side(f"s_branch L_rb{tag}")
                elif o == 'PT2':
                    if smh and not first:
                        p(f"s_cbranch_vccnz L_p2{tag}")
                        p(f"L_pb{tag}:")
                        side(f"L_p2{tag}:"); call(side, "S_scale"); side(f"s_branch L_pb{tag}")
                elif o[0] == 'RD': rd(o[1], o[2])
                elif o[0] == 'EX':
                    if on: p(f"v_exp_f32 v{b+o[1]}, v{b+o[1]}")
                elif o[0] == 'CV':
                    i = o[1]
                    if on: p(f"v_cvt_pk_bf16_f32 v{b+8*(i>>2)+(i&3)}, v{b+2*i}, v{b+2*i+1}")
                elif o[0] == 'MX':
                    if (qk if x > XC else (smh and not first)): p(f"v_max3_f32 v{o[1]+2}, " + ", ".join(([f"v{o[1]+2}"] if o[2] else []) + [f"v{(Sn if x > XC else Sn1)+r}" for r in o[3]]))
                elif o[0] == 'MF':
                    if smh and not first: p(f"v_max_f32 v{TT+2}, v{TT+2}, v{TT+3}")
                elif o[0] == 'DM':
                    if o[1] < len(dm):
                        if opts.get('midn') and o[1] % 2 == 1 and tag[0] == 'l' and (o[1] >> 1) % opts.get('mids', 4) == 0: p(f"s_waitcnt vmcnt({opts['midn']})")
                        p(dm[o[1]])
            if x in sites: site(sites[x])
            for o in fill.get(x, []): p(o)
        if bar: p(f"s_waitcnt {endw} lgkmcnt(0)")
    def xl(op, a, b):
        return (f"v_mov_b32 v{b}, v{a}\nv_permlane16_swap_b32 v{a}, v{b}\n{op} v{a}, v{a}, v{b}\n"
                f"v_mov_b32 v{b}, v{a}\nv_permlane32_swap_b32 v{a}, v{b}\n{op} v{a}, v{a}, v{b}")
    def shiftsub(name, n, first):
        q(f"{name}:")
        for t in range(5):
            b = n + 8 * t
            q(f"v_max3_f32 v{TT}, v{b}, v{b+1}, v{b+2}\nv_max3_f32 v{TT}, v{TT}, v{b+3}, v{b+4}\nv_max3_f32 v{TT}, v{TT}, v{b+5}, v{b+6}\nv_max_f32 v{TT}, v{TT}, v{b+7}")
            q(xl("v_max_f32", TT, TT + 1))
            if not first: q(f"v_max_f32 v{TT}, 0, v{TT}\nv_exp_f32 v{FACS[t]}, -v{TT}")
            for r in range(8): q(f"v_sub_f32 v{b+r}, v{b+r}, v{TT}")
            for r in range(4): q(f"v_sub_f32 v{NM+4*t+r}, v{NM+4*t+r}, v{TT}")
        ret(q, name)
    shiftsub("S_rare0", SS[0], False); shiftsub("S_rare1", SS[1], False); shiftsub("S_first", SS[0], True)
    q("S_scale:")
    for dt in range(8):
        for t in range(5):
            a = oacc(dt, t)
            for r in range(4): q(f"v_accvgpr_read_b32 v{TT+4+r}, a{a+r}")
            for r in (0, 2): q(f"v_pk_mul_f32 {vr(TT+4+r,2)}, {vr(TT+4+r,2)}, {vr(FACS[t],2)} op_sel_hi:[1,0]")
            for r in range(4): q(f"v_accvgpr_write_b32 a{a+r}, v{TT+4+r}")
    for t in range(5):
        for r in (0, 2): q(f"v_pk_mul_f32 {vr(LL+4*t+r,2)}, {vr(LL+4*t+r,2)}, {vr(FACS[t],2)} op_sel_hi:[1,0]")
    ret(q, "S_scale")
    stamp(p, 1, 3); stamp(p, 1, 5)
    abody("m2", 2, held=False, pv=False, smt=False, smh=False, dma=False, endw=f"vmcnt({4+2*q4})"); p("s_barrier")
    abody("m1", 3, pv=False, smt=False, first=True, dma='k', endw=f"vmcnt({4+3*q4})", fill=spread([(o, 1) for o in pf[2*q4:3*q4]], list(range(45, 84))) if q4 else {}); p("s_barrier")
    abody("z0", 0, zc=True, dma='k', endw="vmcnt(63)", fill=spread([(o, 1) for o in (pf[3*q4:] if q4 >= 4 else pf[3*q4:] + [f"buffer_load_dword v{WD}, v{vPv}, {srd(sV)}, 0 offen"] * 4)], list(range(45, 84)))); p(f"s_mov_b32 s{sIt}, 0\ns_barrier"); stamp(p, 2, 3); stamp(p, 2, 5)
    for nm in (1, 2, 3, 0):
        abody(f"l{nm}", nm)
        if nm == 0: p(f"s_add_u32 s{sIt}, s{sIt}, 1\ns_cmp_lt_u32 s{sIt}, 3")
        p("s_barrier")
    if PST == 5: stamp_it(p, 5, "a", [(1, 3), (2, 4), (3, 5)])
    p("s_cbranch_scc1 L_A_l1")
    stamp(p, 3, 3)
    abody("e13", 1, dma=False, endw="vmcnt(0)"); p("s_barrier")
    stamp(p, 4, 3); stamp(p, 6, 5)
    abody("e14", 2, qk=False, dma=False, bar=False, sites={1: 0, 20: 1, 40: 2, 65: 3})
    def prd(J, t):
        tm = PT[(J, t)]
        return [f"v_accvgpr_read_b32 v{tm+4*h+r}, a{oacc(2*J+h,t)+r}" for h in range(2) for r in range(4)]
    PT = {}
    for t in range(5): PT[(0, t)] = SS[0] + 8 * t; PT[(1, t)] = QR + 16 * t + 8
    early = [o for J in range(2) for t in range(5) for o in prd(J, t)]
    xa = first_of[4] + 2; xb_ = first_of[6] + 2; xe = first_of[10]
    fl = spread([(o, 1) for o in early[:40]], list(range(xa, xb_ + 8)))
    for g, l in spread([(o, 1) for o in early[40:]], list(range(xb_ + 8, xe))).items(): fl.setdefault(g, []).extend(l)
    abody("e15", 3, held=False, qk=False, dma=False, smh=False, bar=False, sites={12: 4, 35: 5}, fill=fl)
    stamp(p, 5, 3)
    for t in range(5): p(f"v_rcp_f32 v{FACS[t]}, v{LL+4*t}")
    for J in range(4):
        if J < 3: site(6 + J)
        for t in range(5):
            if J >= 2:
                PT[(J, t)] = SS[1] + 8 * t if J == 2 else SS[0] + 8 * t
                for o in prd(J, t): p(o)
            tm = PT[(J, t)]
            for r in range(0, 8, 2): p(f"v_pk_mul_f32 {vr(tm+r,2)}, {vr(tm+r,2)}, {vr(FACS[t],2)} op_sel_hi:[1,0]")
            for r in range(4): p(f"v_cvt_pk_bf16_f32 v{QR+16*t+4*J+r}, v{tm+2*r}, v{tm+2*r+1}")
    stamp_r(p, 3, 6, "e"); stamp(p, 6, 3); stamp(p, 7, 3); stamp(p, 7, 5)
    p(f"s_cmp_eq_u32 s{sRnd}, 1\ns_cbranch_scc1 L_T")
    p(f"s_mov_b32 s{sRnd}, 1\ns_waitcnt vmcnt(0)\ns_barrier")
    p(kvadv)
    xr = [xread(t, j) for j in range(4) for t in range(5)]
    for r in range(80):
        if r % 4 == 0:
            if r == 48: p("s_waitcnt lgkmcnt(4)")
            p(xr[r // 4])
        p(f"v_accvgpr_write_b32 a{aSV+r}, v{QR+r}")
    p("s_branch L_round")

    q("S_odmb:")
    for o in oops(vWoB): q(o)
    ret(q, "S_odmb")
    SLP = opts.get('slp', 4)
    q("S_spin:")
    q(f"buffer_load_dword v{vPol}, v{vZ}, {srd(sFL)}, s{sFo} offen sc1\ns_waitcnt vmcnt(0)")
    q("S_spinc:")
    q(f"v_readfirstlane_b32 s{sT}, v{vPol}\ns_cmp_eq_u32 s{sT}, 8\ns_cbranch_scc1 L_spr\ns_sleep {SLP}\ns_branch S_spin")
    q("L_spr:"); ret(q, "S_spin|S_spinc")
    q("S_post:")
    q(f"s_cmp_lg_u32 s{sWave}, 0\ns_cbranch_scc1 L_pr\nv_mov_b32 v{t0}, 1\ns_mov_b64 exec, 1")
    q(f"buffer_atomic_add v{t0}, v{vZ}, {srd(sFL)}, s{sT2} offen sc1\ns_mov_b64 exec, -1")
    q("L_pr:"); ret(q, "S_post")
    def ld_op(li):
        sg = li >> 1; h = li & 1
        return f"s_add_u32 s{sT}, s{sPc}, {sg*4096+h*4*SLAB}\nbuffer_load_dwordx4 {vr(RB+4*li,4)}, v{vOs2}, {srd(sPA)}, s{sT} offen sc1"
    LSET = [range(0, 4), range(4, 8), range(8, 10)]
    def red_ops(k):
        d = RD + 4 * k
        o = [m16(vr(d, 4), vr(SEL + 4 * ((li >> 1) & 1), 4), vr(RB + 4 * li, 4), '0' if li % 4 == 0 else None) for li in LSET[k]]
        o2 = [f"v_cvt_pk_bf16_f32 v{d}, v{d}, v{d+1}", f"v_cvt_pk_bf16_f32 v{d+1}, v{d+2}, v{d+3}",
              ("VM", f"s_add_u32 s{sT2}, s{sPd}, {k*32*1280}\nbuffer_store_dwordx2 {vr(d,2)}, v{vOo3 if k == 2 else vOo2}, {srd(sOUT)}, s{sT2} offen", None)]
        return o, o2
    q("S_ld:")
    for li in range(10): q(ld_op(li))
    q("s_waitcnt vmcnt(0)")
    q("S_reda:")
    for o in red_ops(0)[0]: q(o)
    q("S_redb:")
    for k in (1, 2):
        for o in red_ops(k)[0]: q(o)
    for k in range(3):
        for o in red_ops(k)[1]: q(o if isinstance(o, str) else o[1])
    ret(q, "S_ld|S_reda|S_redb")
    def reduce_group(g):
        p(f"s_mov_b32 s{sPc}, {g*40960}\ns_movk_i32 s{sPd}, {g*256}"); call(p, "S_ld")

    p("L_T:")
    stamp(p, 1, 2)
    p("s_waitcnt vmcnt(16)")
    p(f"s_mov_b32 s{sT}, {EXA[0]}\ns_mul_i32 s{sT2}, s{sWave}, 20480\ns_add_u32 s{sT2}, s{sT2}, {V1-20480}\ns_cmp_eq_u32 s{sWave}, 0\ns_cselect_b32 s{sT2}, s{sT}, s{sT2}")
    p(f"v_add_u32 v{vR0}, s{sT2}, v{vLin}")
    p(f"s_xor_b32 s{sT3}, s{sWave}, 2\ns_mul_i32 s{sT2}, s{sT3}, 20480\ns_add_u32 s{sT2}, s{sT2}, {V1-20480}\ns_cmp_eq_u32 s{sT3}, 0\ns_cselect_b32 s{sT2}, s{sT}, s{sT2}")
    p(f"v_add_u32 v{vR1}, s{sT2}, v{vLin}")
    p(f"s_lshl_b32 s{sT}, s{sB}, 3\nv_mov_b32 v{t0}, s{sT}")
    p("L_isp:")
    p(f"buffer_load_dword v{vPol}, v{t0}, {srd(sDBG)}, 0 offen sc1")
    p("s_barrier")
    for step in range(2):
        for i in range(20):
            p(f"ds_write_b128 v{vR0}, {ar(aSV+4*i,4) if step == 0 else vr(QR+4*i,4)} offset:{1024*i}")
            if i % 10 == 9: p("s_waitcnt lgkmcnt(0)")
        p("s_barrier")
        for i in range(20):
            p(f"ds_read_b128 {ar(80*step+4*i,4)}, v{vR1} offset:{1024*i}")
            if i % 10 == 9: p("s_waitcnt lgkmcnt(0)")
        if step == 1:
            p("s_waitcnt vmcnt(0)")
            p("L_ick:")
            p(f"v_readfirstlane_b32 s{sT}, v{vPol}\ns_cmp_eq_u32 s{sT}, 1\ns_cbranch_scc1 L_iok")
            p(f"s_sleep 8\nbuffer_load_dword v{vPol}, v{t0}, {srd(sDBG)}, 0 offen sc1\ns_waitcnt vmcnt(0)\ns_branch L_ick")
            p("L_iok:")
        p("s_barrier")
    REG = [K0, K1, V0, V1]; TBr = [vR0, vR1, vR2, vR3]
    p(f"s_lshl_b32 s{sT}, s{sPi}, 7\nv_add_u32 v{vR0}, s{sT}, v{vTn}\nv_add_u32 v{vR1}, {K1}, v{vR0}\nv_add_u32 v{vR2}, {V0}, v{vR0}\nv_add_u32 v{vR3}, {V1}, v{vR0}")
    p(f"s_add_u32 s{sPa}, s{sHS}, {V0}\ns_mov_b32 s{sPb}, s{sGB}"); call(p, "S_odmb")
    p(f"v_mov_b32 v{vSt2}, {OOB}\nv_mov_b32 v{vOs2}, {OOB}\nv_mov_b32 v{vOo2}, {OOB}\nv_mov_b32 v{vOo3}, {OOB}")
    p(f"s_mov_b32 s{sIt}, 0\ns_mov_b32 s{sSt}, 0\ns_mov_b32 s{sPc}, 0\ns_mov_b32 s{sPd}, 0\ns_mov_b32 s{sFo}, 0\ns_mov_b32 s{sCol}, s{sGB}\ns_mov_b32 s{sRa}, s{sHS}")
    Bop = lambda qd, t, ts: [ar(aSV + 16 * t + 4 * ts, 4), vr(QR + 16 * t + 4 * ts, 4), ar(16 * t + 4 * ts, 4), ar(80 + 16 * t + 4 * ts, 4)][qd]
    tacc = lambda Jp, t, h: TA + 40 * Jp + 8 * t + 4 * h
    def st_ops(Jp, vo, back):
        o = []
        for t in range(5):
            tm = TMP + 4 * (t & 1); a = tacc(Jp, t, 0)
            o += [f"v_cvt_pk_bf16_f32 v{tm+i}, v{a+2*i}, v{a+2*i+1}" for i in range(4)]
            o.append(("VM", f"s_add_u32 s{sT3}, s{sSt}, {t*4096}\nbuffer_store_dwordx4 {vr(tm,4)}, v{vo}, {srd(sPO)}, s{sT3} offen offset:{1024*Jp} sc1", 'ps'))
        return o
    vm = Q(p, "vmcnt", 63); T = {}
    def tmf(qd, f, m):
        Jp = f >> 3; ts = (f >> 1) & 3; h = f & 1
        return [m16(vr(tacc(Jp, t, h), 4), ar(FB(m), 4), Bop(qd, t, ts), '0' if qd == 0 and ts == 0 else None) for t in range(5)]
    LAG = opts.get('lag', 2); PQ = opts.get('pq', 2)
    def period():
        for qd in range(4):
            D = (qd + 3) & 3
            if qd == 0:
                p(f"buffer_load_dword v{vPol}, v{vZ}, {srd(sFL)}, s{sFo} offen sc1"); T['poll'] = vm.issue()
            if qd == 1:
                p(f"s_add_u32 s{sCol}, s{sCol}, 256\ns_cmp_ge_u32 s{sIt}, {LAG}\ns_cbranch_scc1 L_T_ck")
                p("L_T_ckb:")
                T['pollw'] = vm.n - T['poll']
            if qd == PQ:
                p(f"s_lshl_b32 s{sT2}, s{sIt}, 7\ns_sub_u32 s{sT2}, s{sT2}, 128\ns_cbranch_scc1 L_T_np"); call(p, "S_post"); p("L_T_np:")
            if qd == 3:
                p(f"s_lshl_b32 s{sPd}, s{sIt}, 8\ns_sub_u32 s{sPd}, s{sPd}, {256*LAG}\ns_cselect_b32 s{sPd}, 0, s{sPd}\ns_cbranch_scc1 L_T_no\nv_mov_b32 v{vOo2}, v{vOfo}\nv_mov_b32 v{vOo3}, v{vOf3}")
                p("L_T_no:")
            p(f"s_add_u32 s{sPa}, s{sRa}, {REG[D]}\ns_add_u32 s{sPb}, s{sCol}, {(D&1)*256*1280}\ns_add_u32 s{sRb}, s{sPb}, {PR*1280}")
            vmo = []
            lds_ = list(LSET[qd - 1]) if qd >= 1 else []
            BU = opts.get('burst', 2)
            if BU:
                lds_ = []
                if qd == 1 and BU == 1: vmo += [("VM", ld_op(li), 'lb') for li in range(10)]
            for i in range(8):
                im = (i >> 1) * 1280
                vmo.append(("VM", f"s_add_u32 m0, s{sPa}, {i*PCS-im}\nbuffer_load_dwordx4 v{vWoA if D < 2 else vWoB}, {srd(sWO)}, s{sRb if i & 1 else sPb} offen offset:{im} lds", ('d', D)))
                if i % 2 and lds_: vmo.append(("VM", ld_op(lds_.pop(0)), ('l', qd - 1)))
            if WQ == 3:
                vmo.append(("VM", f"s_add_u32 s{sT}, s{sRc}, {qd*128*1280}\nbuffer_load_dwordx4 {vr(212,4)}, v{vWarm}, {srd(sWO)}, s{sT} offen", None))
                if qd == 0: p(f"s_add_u32 s{sRc}, s{sIt}, 2\ns_min_u32 s{sRc}, s{sRc}, 4\ns_lshl_b32 s{sRc}, s{sRc}, 8")
            if BU == 2 and qd == 1: vmo += [("VM", ld_op(li), 'lb') for li in range(10)]
            streams = []
            if qd == 0: streams.append((split(st_ops(1, vSt2, True) + [f"v_mov_b32 v{vSt2}, v{vSt}\ns_mul_i32 s{sSt}, s{sIt}, 40960"]), list(range(13, 49))))
            if qd == 3: streams.append((split(st_ops(0, vSt, False)), list(range(53, 80))))
            streams.append((split(vmo), list(range(0, 78))))
            rk = (qd + 1) & 3
            if BU:
                if qd == 0: streams.append(([(("W", 'lb'), 1)] + [(o, 1) for k in range(3) for o in red_ops(k)[0]], list(range(50, 78))))
                if rk == 3: streams.append((split([o for k in range(3) for o in red_ops(k)[1]]), list(range(0, 78))))
            elif rk < 3: streams.append(([(("W", ('l', rk)), 1)] + [(o, 1) for o in red_ops(rk)[0]], list(range(30, 50))))
            else: streams.append((split([o for k in range(3) for o in red_ops(k)[1]]), list(range(0, 78))))
            def rdtxt(m, e):
                f = m - 2; Jp = f >> 3; ts = (f >> 1) & 3; h = f & 1
                return f"ds_read_b64_tr_b16 {ar(FB(m)+2*e,2)}, v{TBr[qd]} offset:{ts*SLOT+e*256+Jp*64+h*HS}"
            gunit(rdtxt, lambda m, t: (tmf(qd, m - 2, m) if m >= 2 else tmf((qd - 1) & 3, 14 + m, m))[t], streams, vm, T)
            need = T.get(('d', (qd + 1) & 3), 0)
            if qd == PQ - 1: need = max(need, T['ps'])
            if qd == 1: need = max(need, T['poll'])
            vm.wait(need)
            if qd == 3: p(f"s_add_u32 s{sIt}, s{sIt}, 1\ns_cmp_lt_u32 s{sIt}, 5")
            p("s_waitcnt lgkmcnt(0)\ns_barrier")
    mark = len(p.ins)
    period()
    del p.ins[mark:]
    p("L_T_loop:")
    stamp_it(p, 2, "t", [(0, 2), (1, 3), (2, 4), (3, 5), (4, 6)])
    period()
    p("s_cbranch_scc1 L_T_loop")
    side("L_T_ck:")
    side(f"s_waitcnt vmcnt({min(63, T['pollw'])})"); call(side, "S_spinc")
    side(f"s_sub_u32 s{sPc}, s{sIt}, {LAG}\ns_mul_i32 s{sPc}, s{sPc}, 40960\ns_add_u32 s{sFo}, s{sFo}, 128\nv_mov_b32 v{vOs2}, v{vOfs}")
    side(f"s_cmp_lg_u32 s{sIt}, 4\ns_cbranch_scc1 L_T_ckb")
    side(f"v_mov_b32 v{vWoA}, {OOB}\nv_mov_b32 v{vWoB}, {OOB}\ns_mov_b32 s{sRa}, 0x28000\ns_branch L_T_ckb")
    for m in range(2):
        for o in tmf(3, 14 + m, m): p(o)
    p(f"s_movk_i32 s{sFo}, 384\nbuffer_load_dword v{vPol}, v{vZ}, {srd(sFL)}, s{sFo} offen sc1")
    for o in st_ops(1, vSt, True): p(o if isinstance(o, str) else o[1])
    stamp(p, 7); stamp(p, 7, 2)
    p("s_waitcnt vmcnt(5)"); call(p, "S_reda" if opts.get('burst', 2) else "S_redb")
    rest = list(range(5 - LAG, 4))
    p("s_waitcnt vmcnt(3)\ns_barrier")
    p(f"s_movk_i32 s{sT2}, 512"); call(p, "S_post")
    call(p, "S_spinc")
    for i, g in enumerate(rest[1:]):
        p(f"s_mov_b32 s{sPc}, {g*40960}")
        for li in range(10): p(ld_op(li).replace(vr(RB + 4 * li, 4), vr(40 * i + 4 * li, 4)))
    reduce_group(rest[0])
    for i, g in enumerate(rest[1:]):
        for r in range(0, 40, 2): p(f"v_mov_b64 {vr(RB+r,2)}, {vr(40*i+r,2)}")
        p(f"s_movk_i32 s{sPd}, {g*256}"); call(p, "S_reda")
    p(f"s_movk_i32 s{sFo}, 512"); call(p, "S_spin")
    reduce_group(4)
    if PROF:
        p("s_waitcnt vmcnt(0)\ns_mov_b32 s96, s65")
        stamp(p, 9)
        p("s_memrealtime s[100:101]\ns_waitcnt lgkmcnt(0)")
        if opts.get('dbg'):
            p(f"s_lshl_b32 s{sT}, s2, 3\ns_add_u32 s{sT}, s{sT}, s{sWave}\ns_cmp_lg_u32 s{sT}, {8*opts['dbg']+1}\ns_cbranch_scc1 L_exit")
            for i, k in enumerate((1, 2, 3, 4, 5, 6, 7, 9)):
                p(f"s_sub_u32 s{sT}, s{80+2*k}, s80\nv_mov_b32 v1, s{sT}\nbuffer_store_dword v1, v{vZ}, {srd(sDBG)}, 0 offen offset:{8*i+4}")
            p("s_endpgm")
        p(f"s_lshl_b32 s{sT}, s2, 3\ns_add_u32 s{sT}, s{sT}, s{sWave}\ns_lshl_b32 s{sT}, s{sT}, 6")
        p(f"s_add_u32 s4, s66, 0x4000000\ns_addc_u32 s5, s67, 0\ns_mov_b32 s6, 0x100000\ns_mov_b32 s7, 0x20000\nv_mov_b32 v0, s{sT}")
        for i in range(11):
            p(f"v_mov_b32 v1, s{80+2*i}\nbuffer_store_dword v1, v0, s[4:7], 0 offen offset:{4*i}\nbuffer_store_dword v1, v0, s[4:7], 0 offen offset:{256+4*i}")
    p("L_exit:")
    p("s_endpgm")
    if opts.get('nodma'): p.ins = [x for x in p.ins if not (x.kind == 'dma' and (srd(sK) in x.text or srd(sV) in x.text))]
    def strip(a, b, pred):
        i0 = [i for i, x in enumerate(p.ins) if x.label == a][0]; i1 = [i for i, x in enumerate(p.ins) if x.text.startswith(b) and i > i0][0]
        p.ins = [x for i, x in enumerate(p.ins) if not (i0 < i < i1 and pred(x))]
    ab = opts.get('abl', 0)
    for a, b in (('L_Q_loop', 's_cbranch_scc1 L_Q_loop'), ('L_T_loop', 's_cbranch_scc1 L_T_loop')):
        if ab & 1: strip(a, b, lambda x: x.op == 'v_accvgpr_mov_b32' or x.op == 'v_cvt_pk_bf16_f32')
        if ab & 2: strip(a, b, lambda x: x.kind == 'dma' or x.op.startswith('buffer_store') or x.op == 'buffer_load_dwordx4')
        if ab & 4: strip(a, b, lambda x: x.op == 's_barrier')
        if ab & 8: strip(a, b, lambda x: x.op == 's_waitcnt' and ('lgkmcnt(0)' not in x.text))
        if ab & 16: strip(a, b, lambda x: x.text.startswith('s_add_u32 m0') or x.text.startswith(f's_add_u32 s{sT},') or x.text.startswith(f's_add_u32 s{sT3},'))
        if ab & 32: strip(a, b, lambda x: x.kind == 'ds')
    if opts.get('bprof'):
        a, b = {1: ('L_Q_loop', 'L_A_m2'), 2: ('L_T_loop', 'L_exit'), 3: ('L_A_l1', 'L_A_e13')}[opts['bprof']]
        new = []; on = False; k = 0
        def wrap(x, acc):
            for t in ["s_cselect_b32 s99, 1, 0", "s_memtime s[78:79]".replace("78:79", "2:3") if False else "s_memtime s[100:101]", "s_waitcnt lgkmcnt(0)", f"s_sub_u32 s{acc}, s{acc}, s100"]: new.append(Ins(t))
            new.append(x)
            for t in ["s_memtime s[100:101]", "s_waitcnt lgkmcnt(0)", f"s_add_u32 s{acc}, s{acc}, s100", "s_cmp_lg_u32 s99, 0"]: new.append(Ins(t))
        for x in p.ins:
            if x.label == b or (on and x.text.startswith('s_cbranch_scc1 L_T_loop')): on = False
            if on and x.op == 's_barrier': wrap(x, 82)
            elif on and x.op == 's_waitcnt' and 'vmcnt' in x.text:
                wrap(x, 84 + 2 * min(k, 5)); print("site", min(k, 5), x.text, file=sys.stderr); k += 1
            else: new.append(x)
            if x.label == a: on = True
        p.ins = new
    p.ins += q.ins + side.ins
    p("L_code_end:")
    p("s_endpgm")
    n = p.fix_hazards(verbose=opts.get('verbose', False))
    print("hazard nops inserted:", n, "instrs:", len(p.ins), file=sys.stderr)
    hdr = open('standalone__mha_block_cached__near_ridge.s.ref').read().split('\n')
    hdr = [l for l in hdr if l.startswith(';') and '@launch' not in l and not l.startswith('; Override') and not l.startswith('; grid=ceil')]
    out = "\n".join(hdr) + "\n"
    out += f"; @launch grid=(256,1,1) block=(256,1,1) lds={LDS_BYTES}\n"
    out += '.amdgcn_target "amdgcn-amd-amdhsa--gfx950"\n.text\n'
    out += f".globl {KN}\n.p2align 8\n.type {KN},@function\n" + p.text()
    out += f""".section .rodata,"a"
.p2align 6
.amdhsa_kernel {KN}
  .amdhsa_next_free_vgpr 512
  .amdhsa_next_free_sgpr {102 if PROF else 80}
  .amdhsa_accum_offset 256
  .amdhsa_group_segment_fixed_size 0
  .amdhsa_kernarg_size 64
  .amdhsa_user_sgpr_count 2
  .amdhsa_user_sgpr_kernarg_segment_ptr 1
  .amdhsa_system_sgpr_workgroup_id_x 1
.end_amdhsa_kernel
"""
    return out

if __name__ == "__main__":
    opts = {}
    for a in sys.argv[2:]:
        k, v = a.split('='); opts[k] = int(v)
    open(sys.argv[1], 'w').write(gen(opts))
```

```python
import sys, math, struct
sys.path.insert(0, 'dev')
from asmlib import Prog, Q, Ins

KN = "standalone__mha_block_cached__near_ridge_kernel"
SLOT = 8448; PCS = 1056
K0 = 0; V0 = 4 * SLOT; K1 = 8 * SLOT; V1 = 12 * SLOT; XR = 14 * SLOT; DUMS = 16 * SLOT
EXA = [V0, V1, V1 + 20480, V1 + 40960]
LDS_BYTES = 163840 - 1024
SLAB = 204800; FLG = 256 * SLAB

QR = 0; SS = [80, 120]; NM = 160; LL = 180; ONE = 200; FACS = [218, 220, 246, 248, 250]; TT = 232; WD = 252
XB = 0; XT = 80
TA = 80; RB = 160; RD = 200; SEL = 224; TMP = 232; vOo3 = 222; vOf3 = 223
aACC = 0; aSV = 160; aF = 240
(vLin, vKa0, vKa1, vVa, vDk, vDv, vXd, vWd, vXa0, vXa1, tA, tB, tC, vTl) = range(204, 218)
vOfs, vOfo, vWarm, vWoA, vWoB, vSt, vSt2, vOs2, vOo2, vZ, vPol, t0, vR0, vR1, vR2, vR3 = range(240, 256)

sK, sV, sWQ, sWO, sX, sPO, sPA, sOUT, sDBG, sFL = 4, 8, 12, 16, 20, 24, 60, 72, 76, 68
sWave, sB, sHG, sIt, sMK, sMV, sRnd, sR0, sCur, sHS, sGB = 28, 29, 30, 31, 32, 33, 34, 35, 36, 37, 38
sT, sC, sBL, sPi, sPa, sT2, sT3, sPb, sCol = 39, 40, 41, 42, 43, 44, 45, 46, 47
sRa, sRb, sRet, sRc, sXl, sXg, sPc, sPd, sMsk, sSt, sFo = 48, 49, 50, 52, 53, 54, 55, 56, 57, 58, 59
sDry = 64
sZ, sMK2, sMV2 = 3, 64, 47
OOB = 0x7ff00000

SCALE = math.log2(math.e) / math.sqrt(128.0)
def f2u(x): return struct.unpack('<I', struct.pack('<f', x))[0]
def vr(b, n): return f"v[{b}:{b+n-1}]"
def ar(b, n): return f"a[{b}:{b+n-1}]"
def srd(b): return f"s[{b}:{b+3}]"
def m16(d, a, b, c=None): return f"v_mfma_f32_16x16x32_bf16 {d}, {a}, {b}, {d if c is None else c}"
def mksrd(p, s, lo, off, size):
    p(f"s_add_u32 s{s}, s{lo}, {off}\ns_addc_u32 s{s+1}, s{lo+1}, 0\ns_mov_b32 s{s+2}, {size}\ns_mov_b32 s{s+3}, 0x20000")
def call(p, name): p(f"s_call_b64 s[{sRet}:{sRet+1}], {name}")
def ret(p, name): p(f"s_setpc_b64 s[{sRet}:{sRet+1}] ; ret={name}")
def spread(seq, gaps):
    tot = sum(c for _, c in seq); out = {}; acc = 0
    for it, c in seq:
        g = gaps[min(int((acc + c * 0.5) * len(gaps) / tot), len(gaps) - 1)]
        out.setdefault(g, []).append(it); acc += c
    return out
class Gaps:
    def __init__(self, n=80): self.n = n; self.items = [[] for _ in range(n)]; self.load = [0.0] * n
    def pin(self, g, it, c=1): self.items[g].append(it); self.load[g] += c
    def reserve(self, g, c=1): self.load[g] += c
    def stream(self, seq, gaps):
        tot = sum(c for _, c in seq)
        lo, hi = 0.0, 50.0
        for _ in range(40):
            mid = (lo + hi) / 2
            if sum(max(0.0, mid - self.load[g]) for g in gaps) >= tot: hi = mid
            else: lo = mid
        room = [max(0.0, hi - self.load[g]) for g in gaps]
        cum = 0.0; edges = []
        for r in room: cum += r; edges.append(cum)
        acc = 0.0; k = 0
        for it, c in seq:
            pos = acc + c * 0.5
            while k < len(gaps) - 1 and edges[k] < pos: k += 1
            self.pin(gaps[k], it, c); acc += c
def greedy(order, cap, streams):
    out = {g: [] for g in order}; ptr = [0] * len(streams); where = {}
    for pos, g in enumerate(order):
        room = cap[g]
        while True:
            best = None
            for si, st in enumerate(streams):
                k = ptr[si]
                if k >= len(st['items']) or pos < st['lo']: continue
                it, c, dep = st['items'][k]
                if dep is not None and where.get(dep, 10**9) >= pos and pos < st['hi']: continue
                lag = (pos + 1 - st['lo']) / (st['hi'] + 1 - st['lo']) - k / len(st['items'])
                late = lag * len(st['items'])
                if c > room and late < 1.5 and pos < st['hi']: continue
                if late < -1.0: continue
                if best is None or late > best[0]: best = (late, si)
            if best is None: break
            si = best[1]; it, c, dep = streams[si]['items'][ptr[si]]
            out[g].append(it); where[(si, ptr[si])] = pos; ptr[si] += 1; room -= c
    assert all(ptr[i] == len(st['items']) for i, st in enumerate(streams)), ptr
    return out
SC = 0.4
def split(ops, tag=None):
    out = []
    for o in ops:
        tg = tag
        if isinstance(o, tuple): tg = o[2]; o = o[1]
        for l in o.split("\n"):
            if l == "s_nop 0": continue
            out.append((("VM", l, tg), 1) if l.startswith("buffer_") else (l, SC if l.startswith("s_") else 1))
    return out
FB = lambda m: aF + 4 * (m & 3)
oacc = lambda dt, t: aACC + 4 * (dt * 5 + t)

def gen(opts):
    p = Prog(); side = Prog(); q = Prog()
    PROF = opts.get('prof', 0)
    PST = opts.get('pst', 0)
    def stamp_it(pp, mode, tag, vals):
        if PROF and PST == mode:
            pp("s_cselect_b32 s99, 1, 0")
            for v, i in vals:
                pp(f"s_cmp_lg_u32 s{sIt}, {v}\ns_cbranch_scc1 L_si{tag}{v}"); stamp(pp, i, mode); pp(f"L_si{tag}{v}:")
            pp("s_cmp_lg_u32 s99, 0")
    cnt = [0]
    def stamp(pp, i, mode=0):
        if PROF and PST == mode and opts.get('r0') and i not in (0, 9):
            cnt[0] += 1
            pp(f"s_cselect_b32 s97, 1, 0\ns_cmp_eq_u32 s{sRnd}, 1\ns_cbranch_scc1 L_r0s{cnt[0]}\ns_memtime s[{80+2*i}:{81+2*i}]\ns_waitcnt lgkmcnt(0)")
            pp(f"L_r0s{cnt[0]}:"); pp("s_cmp_lg_u32 s97, 0")
        elif PROF and (PST == mode or i in (0, 9)):
            pp(f"{'s_memrealtime' if opts.get('rt') else 's_memtime'} s[{80+2*i}:{81+2*i}]\ns_waitcnt lgkmcnt(0)")
    def stamp_r(pp, i0, i1, tag):
        if PROF and PST == 0:
            pp(f"s_cmp_eq_u32 s{sRnd}, 0\ns_cbranch_scc0 L_st{tag}a"); stamp(pp, i0); pp(f"s_branch L_st{tag}b\nL_st{tag}a:"); stamp(pp, i1); pp(f"L_st{tag}b:")
    p(f"{KN}:")
    p("s_cmp_ge_u32 s2, 256\ns_cbranch_scc1 L_exit")
    p("s_load_dwordx8 s[56:63], s[0:1], 0\ns_load_dwordx8 s[64:71], s[0:1], 32")
    if PROF:
        for i in range(10): p(f"s_mov_b32 s{80+2*i}, 0")
        p("s_memrealtime s[100:101]")
    stamp(p, 0)
    p(f"v_lshrrev_b32 v1, 6, v0\nv_and_b32 v0, 63, v0\nv_lshlrev_b32 v{vLin}, 4, v0")
    p(f"v_readfirstlane_b32 s{sWave}, v1")
    p(f"s_bfe_u32 s{sB}, s2, 0x20001\ns_lshl_b32 s{sB}, s{sB}, 3\ns_lshr_b32 s{sBL}, s2, 5\ns_add_u32 s{sB}, s{sB}, s{sBL}")
    p(f"s_and_b32 s{sHG}, s2, 1\ns_lshl_b32 s{sHG}, s{sHG}, 2\ns_bfe_u32 s{sT3}, s2, 0x20003\ns_add_u32 s{sHG}, s{sHG}, s{sT3}")
    p(f"s_add_u32 s{sT3}, s{sT3}, s{sBL}")
    p(f"s_mul_i32 s{sT2}, s{sT3}, 205\ns_lshr_b32 s{sT2}, s{sT2}, 10\ns_mul_i32 s{sT2}, s{sT2}, 5\ns_sub_u32 s{sR0}, s{sT3}, s{sT2}")
    p(f"s_lshr_b32 s{sPi}, s{sWave}, 1")
    p(f"v_lshrrev_b32 v1, 4, v0\nv_and_b32 v2, 0xf0, v{vLin}\nv_and_b32 v3, 1, v1\nv_lshrrev_b32 v5, 1, v1")
    p(f"v_lshl_add_u32 v4, v3, 1, v5\nv_mul_u32_u24 v{vXd}, {8*1280}, v4\nv_lshlrev_b32 v4, 4, v3\nv_xor_b32 v4, v4, v2\nv_add_u32 v{vXd}, v{vXd}, v4")
    p(f"v_lshl_add_u32 v4, v5, 2, v3\nv_lshl_add_u32 v{vWd}, v4, 15, v2")
    p(f"s_mul_i32 s{sXl}, s{sWave}, {2*PCS}\ns_mul_i32 s{sXg}, s{sWave}, 1280")
    p(f"s_mul_i32 s{sHS}, s{sWave}, {SLOT}")
    p(f"s_and_b32 s{sT}, s{sWave}, 1\ns_lshl_b32 s{sGB}, s{sT}, 18\ns_lshl_b32 s{sT}, s{sPi}, 8\ns_add_u32 s{sGB}, s{sGB}, s{sT}")
    p(f"s_mul_i32 s{sT2}, s{sB}, 204800\ns_lshl_b32 s{sT3}, s{sHG}, 10\ns_sub_u32 s{sIt}, 5242880, s{sT3}\ns_mov_b32 s{sRnd}, 0")
    ZM = opts.get('z', 0)
    p({0: f"s_mov_b32 s{sZ}, 0", 1: f"s_and_b32 s{sZ}, s{sHG}, 1", 2: f"s_and_b32 s{sZ}, s{sBL}, 1", 3: f"s_mov_b32 s{sZ}, 1"}[ZM])
    p(f"s_lshl_b32 s{sZ}, s{sZ}, 1\ns_lshl_b32 s{sT}, s{sZ}, 8\ns_add_u32 s{sGB}, s{sGB}, s{sT}")
    p("s_waitcnt lgkmcnt(0)")
    stamp(p, 1, 4)
    mksrd(p, sX, 56, f"s{sT2}", 204800)
    mksrd(p, sWQ, 62, f"s{sT3}", f"s{sIt}")
    call(p, "S_qpx")
    p("s_branch L_setup")
    def xops():
        o = []
        for t in range(5):
            for hh in range(2):
                o.append(f"s_add_u32 m0, s{sXl}, {XR+t*SLOT+hh*PCS}\ns_add_u32 s{sT}, s{sPc}, {(32*t+4*hh)*1280}\nbuffer_load_dwordx4 v{vXd}, {srd(sX)}, s{sT} offen lds")
        return o
    xpre = f"s_lshl_b32 s{sPc}, s{sCur}, 8\ns_add_u32 s{sPc}, s{sPc}, s{sXg}"
    def wops(pa=sPa, add=0):
        return [f"s_add_u32 m0, s{pa}, {pc*PCS}\ns_add_u32 s{sT}, s{sPb}, {(8*(pc&1)+(pc>>1))*8192+add}\nbuffer_load_dwordx4 v{vWd}, {srd(sWQ)}, s{sT} offen lds" for pc in range(8)]
    def wpre(reg, u):
        return f"s_add_u32 s{sPa}, s{sHS}, {reg}\ns_lshl_b32 s{sPb}, s{sCur}, 20\ns_add_u32 s{sPb}, s{sPb}, s{sGB}" + (f"\ns_add_u32 s{sPb}, s{sPb}, {64*8192}" if u else "")
    p("S_qpx:")
    p(f"s_mov_b32 s{sCur}, s{sR0}"); p(xpre)
    for o in xops(): p(o)
    p(wpre(K0, 0))
    for o in wops()[:opts.get('iw', 4)]: p(o)
    ret(p, "S_qpx")
    p("L_setup:")
    stamp(p, 2, 4)
    PR = 4 if opts.get('nat', 1) else 8
    if opts.get('nat', 1): p("v_lshl_add_u32 v4, v3, 1, v5\nv_lshlrev_b32 v4, 1, v4")
    p(f"v_mul_u32_u24 v{vWoA}, {4*1280}, v4\nv_add_u32 v{vWoA}, v{vWoA}, v2\nv_bfe_u32 v6, v0, 3, 1\nv_mul_u32_u24 v6, {128*1280}, v6")
    p(f"v_sub_u32 v{vWoB}, v{vWoA}, v6\nv_add_u32 v{vWoB}, {128*1280}, v{vWoB}\nv_add_u32 v{vWoA}, v{vWoA}, v6")
    p(f"v_mul_u32_u24 v{vWarm}, 1280, v1\nv_add_u32 v{vWarm}, v{vWarm}, v2")
    p(f"s_lshl_b32 s{sT}, s{sBL}, 2\ns_add_u32 s{sT}, s{sT}, s{sWave}\ns_mul_i32 s{sT}, s{sT}, {4*1280}\nv_add_u32 v{vWarm}, s{sT}, v{vWarm}")
    mksrd(p, sOUT, 66, f"s{sT2}", 204800)
    p(f"s_mov_b32 s{sDBG}, s68\ns_mov_b32 s{sDBG+1}, s69\ns_mov_b32 s{sDBG+2}, 256\ns_mov_b32 s{sDBG+3}, 0x20000")
    p("s_mov_b32 s66, s70\ns_mov_b32 s67, s71")
    p(f"s_lshl_b32 s{sT}, s{sB}, 3\ns_add_u32 s{sT}, s{sT}, s{sHG}\ns_lshl_b32 s{sT3}, s{sT}, 19\ns_lshl_b32 s{sPa}, s{sPi}, 17\ns_add_u32 s{sT3}, s{sT3}, s{sPa}")
    mksrd(p, sK, 58, f"s{sT3}", 131072); mksrd(p, sV, 60, f"s{sT3}", 131072)
    p(f"s_mul_i32 s{sT3}, s{sT}, {SLAB}"); mksrd(p, sPO, 66, f"s{sT3}", SLAB)
    p(f"s_lshl_b32 s{sT2}, s{sT2}, 3"); mksrd(p, sPA, 66, f"s{sT2}", 8 * SLAB)
    p(f"s_lshl_b32 s{sT2}, s{sB}, 10\ns_add_u32 s{sT2}, s{sT2}, {FLG}"); mksrd(p, sFL, 66, f"s{sT2}", 1024)
    p(f"s_mul_i32 s{sT2}, s{sHG}, {512*1280}"); mksrd(p, sWO, 64, f"s{sT2}", 512 * 1280)
    if PROF: p("s_mov_b32 s65, s100")
    p(f"s_mov_b32 s{sC}, {f2u(SCALE)}\ns_mov_b32 s{sMsk}, 0xffff0000")
    p(f"v_bfe_u32 v4, v0, 2, 2\nv_lshl_add_u32 v4, v4, 1, v3\nv_mul_u32_u24 v{vTl}, {PCS}, v4\nv_lshl_add_u32 v{vTl}, v5, 9, v{vTl}")
    NAT = opts.get('nat', 1); vTn = 219 if NAT else vTl
    p(f"v_and_b32 v4, 0x30, v{vLin}")
    if NAT: p(f"v_lshrrev_b32 v6, 1, v4\nv_add_u32 v{vTn}, v{vTl}, v6")
    p(f"v_add_u32 v{vTl}, v{vTl}, v4")
    HS = 32 if NAT else 8
    p(f"v_and_b32 v4, 3, v0\nv_bfe_u32 v6, v0, 2, 1\nv_lshl_add_u32 v4, v4, 1, v6\nv_mul_u32_u24 v7, {PCS}, v4\nv_bfe_u32 v6, v0, 3, 1\nv_lshl_add_u32 v7, v6, 9, v7")
    p(f"v_xor_b32 v6, 1, v1\nv_lshl_add_u32 v8, v6, 4, v7\nv_add_u32 v8, 256, v8\nv_lshl_add_u32 v7, v1, 4, v7")
    p(f"s_mul_i32 s{sMK}, s{sPi}, {K1}")
    p(f"v_add_u32 v{vKa0}, s{sMK}, v7\nv_add_u32 v{vKa1}, s{sMK}, v8\ns_add_u32 s{sMV}, s{sMK}, {V0}\nv_add_u32 v{vVa}, s{sMV}, v{vTn}")
    p(f"s_and_b32 s{sT}, s{sWave}, 1\ns_mul_i32 s{sT2}, s{sT}, {4*PCS}\ns_add_u32 s{sMK}, s{sMK}, s{sT2}\ns_add_u32 s{sMV}, s{sMV}, s{sT2}")
    p(f"v_add_u32 v{vXa0}, {XR}, v7\nv_add_u32 v{vXa1}, {XR}, v8")
    p(f"s_cmp_eq_u32 s{sT}, 0\ns_cbranch_scc1 L_x0")
    p(f"v_add_u32 v{vXa0}, {XR+2*SLOT}, v8\nv_add_u32 v{vXa1}, {XR+3*SLOT}, v7")
    p("L_x0:")
    p(f"s_mul_i32 s{sT2}, s{sT}, 20480\ns_lshl_b32 s{sT3}, s{sPi}, 11\ns_add_u32 s{sT2}, s{sT2}, s{sT3}\nv_add_u32 v{vSt}, s{sT2}, v{vLin}")
    p(f"s_lshr_b32 s{sT2}, s{sHG}, 2\ns_and_b32 s{sT3}, s{sHG}, 3\ns_lshl_b32 s{sT3}, s{sT3}, 2\ns_add_u32 s{sT3}, s{sT3}, s{sWave}")
    p(f"s_mul_i32 s{sPa}, s{sT2}, 20480\ns_lshl_b32 s{sPb}, s{sT3}, 8\ns_add_u32 s{sPa}, s{sPa}, s{sPb}\ns_mov_b32 s{sPb}, {SLAB}")
    p(f"v_mul_lo_u32 v{vOfs}, s{sPb}, v1\nv_add3_u32 v{vOfs}, v{vOfs}, v2, s{sPa}")
    p(f"s_mul_i32 s{sPa}, s{sT2}, {80*1280}\ns_lshl_b32 s{sPb}, s{sT3}, 4\ns_add_u32 s{sPa}, s{sPa}, s{sPb}")
    if NAT: p(f"s_lshl_b32 s{sPb}, s{sWave}, 3\ns_sub_u32 s{sPa}, s{sPa}, s{sPb}")
    p(f"v_and_b32 v4, 15, v0\nv_lshl_add_u32 v6, v5, 4, v4\nv_mul_u32_u24 v{vOfo}, 1280, v6\nv_lshl_add_u32 v{vOfo}, v3, {5 if NAT else 3}, v{vOfo}\nv_add_u32 v{vOfo}, s{sPa}, v{vOfo}")
    p(f"v_mov_b32 v6, {OOB}\nv_cmp_gt_u32 s[{sT2}:{sT2+1}], 32, v0\nv_cndmask_b32 v{vOf3}, v6, v{vOfo}, s[{sT2}:{sT2+1}]")
    p(f"v_and_b32 v6, 1, v0\nv_lshlrev_b32 v6, 4, v6\nv_mov_b32 v9, 0x3f80\nv_lshlrev_b32 v6, v6, v9\nv_lshrrev_b32 v4, 1, v4")
    for r in range(8):
        p(f"v_cmp_eq_u32 s[{sT2}:{sT2+1}], {r}, v4\nv_cndmask_b32 v{SEL+r}, 0, v6, s[{sT2}:{sT2+1}]")
    for r in range(4): p(f"v_mov_b32 v{ONE+r}, 0x3f803f80")
    p(f"v_mov_b32 v{vZ}, 0\nv_mov_b64 {vr(TT,2)}, 0\nv_mov_b64 {vr(TT+2,2)}, 0")
    zacc = [f"v_mfma_f32_32x32x16_bf16 {vr(16*i,16)}, {vr(TT,4)}, {vr(TT,4)}, 0" for i in range(10)]
    p(f"s_lshl_b32 s{sT}, s{sHG}, 3\ns_add_u32 s{sT}, s{sT}, s{sWave}\ns_cmp_eq_u32 s{sT}, 1\ns_cbranch_scc1 L_fi")
    p("L_fib:")
    if opts.get('cw', 1):
        p(f"s_getpc_b64 s[{sT2}:{sT2+1}]")
        p("L_pc:")
        p(f"s_sub_u32 s{sT2}, s{sT2}, L_pc-{KN}\ns_subb_u32 s{sT2+1}, s{sT2+1}, 0")
        p(f"s_lshr_b32 s{sT}, s2, 3\ns_lshl_b32 s{sT}, s{sT}, 1\ns_add_u32 s{sT}, s{sT}, s{sPi}\ns_lshl_b32 s{sT}, s{sT}, 10\ns_min_u32 s{sT}, s{sT}, L_code_end-{KN}-1024")
        p(f"v_add_u32 v196, s{sT}, v{vLin}\ns_bitcmp1_b32 s{sWave}, 0\ns_cbranch_scc1 L_ncw")
        p(f"global_load_dwordx4 {vr(WD,4)}, v196, s[{sT2}:{sT2+1}]")
        p("L_ncw:")
    side("L_fi:")
    side(f"buffer_store_dwordx4 {vr(TT,4)}, v{vLin}, {srd(sFL)}, 0 offen sc1\ns_waitcnt vmcnt(0)")
    side(f"s_lshl_b32 s{sT}, s{sB}, 3\nv_mov_b32 v196, s{sT}\nv_mov_b32 v197, 1\ns_mov_b64 exec, 1")
    side(f"buffer_atomic_add v197, v196, {srd(sDBG)}, 0 offen sc1\ns_mov_b64 exec, -1\ns_branch L_fib")

    vRx = 222
    def adv(d, a, sc): return f"v_add_u32 v{d}, s{sc}, v{a}" if not opts.get('krot', 0) else f"v_xad_u32 v{d}, v{a}, v{vRx}, s{sc}\nv_xor_b32 v{d}, v{d}, v{vRx}"
    KROT = opts.get('krot', 0)
    if KROT == 1: p(f"s_lshr_b32 s{sT}, s2, 3\ns_add_u32 s{sT}, s{sT}, s2\ns_lshl_b32 s{sT2}, s{sPi}, 2\ns_add_u32 s{sT}, s{sT}, s{sT2}\ns_and_b32 s{sT}, s{sT}, 7")
    elif KROT == 2: p(f"s_lshr_b32 s{sT}, s2, 3\ns_and_b32 s{sT}, s{sT}, 7")
    else: p(f"s_mov_b32 s{sT}, 0")
    p(f"s_lshl_b32 s{sT}, s{sT}, 14\nv_mov_b32 v{vRx}, s{sT}")
    def kv_ops(isk, tile4):
        base, vo, sr = (sMK, vDk, sK) if isk else (sMV, vDv, sV)
        slot = tile4 & 3 if isk else (tile4 + 2) & 3
        o = [f"s_add_u32 m0, s{base}, {slot*SLOT+32*j}\ns_nop 0\nbuffer_load_dwordx4 v{vo}, {srd(sr)}, 0 offen offset:{1024*j} nt lds" for j in range(4)]
        o[-1] += "\n" + adv(vo, vo, sSt)
        return o

    stamp(p, 3, 4)
    if PST == 4:
        p("s_waitcnt vmcnt(26)"); stamp(p, 4, 4); p("s_waitcnt vmcnt(17)"); stamp(p, 5, 4); p("s_waitcnt vmcnt(9)"); stamp(p, 6, 4); p("s_waitcnt vmcnt(0)"); stamp(p, 7, 4)
    p(f"s_mov_b32 s{sMK2}, s{sMK}\ns_mov_b32 s{sMV2}, s{sMV}")
    p("L_round:")
    kvinit = f"s_and_b32 s{sT}, s{sWave}, 1\ns_lshl_b32 s{sT}, s{sT}, 12\nv_add3_u32 v{vDv}, s{sT}, v{vLin}, v{vRx}\nv_bfe_u32 v{t0}, v{vLin}, 8, 1\nv_lshlrev_b32 v{t0}, 4, v{t0}\nv_xor_b32 v{vDk}, v{t0}, v{vDv}"
    kvadv = "\n".join(f"s_add_u32 s{s_}, s{s_}, 262144\ns_addc_u32 s{s_+1}, s{s_+1}, 0" for s_ in (sK, sV))
    p(kvinit)
    p(f"s_cmp_eq_u32 s{sZ}, 2\ns_cselect_b32 s{sMK}, 0x30000, s{sMK2}\ns_cselect_b32 s{sMV}, 0x30000, s{sMV2}\ns_cselect_b32 s{sT}, {OOB}, 0")
    p(f"v_or_b32 v{vDk}, s{sT}, v{vDk}\nv_or_b32 v{vDv}, s{sT}, v{vDv}")
    p(f"s_mul_i32 s{sT}, s{sPi}, {2*SLOT}\nv_add_u32 v{tA}, s{sT}, v{vTl}\nv_add_u32 v{tB}, {K1}, v{tA}\nv_add_u32 v{tC}, {V0}, v{tA}")
    p(f"s_add_u32 s{sRa}, s{sHS}, {K0}\ns_add_u32 s{sRb}, s{sHS}, {K1}\ns_add_u32 s{sRc}, s{sHS}, {V0}\ns_mov_b32 s{sIt}, 0")
    p(f"v_mov_b64 {vr(TT,2)}, 0\nv_mov_b64 {vr(TT+2,2)}, 0")
    for z in zacc: p(z)
    xb = lambda t, j: 16 * t + 4 * j
    xt = lambda t, j: 80 + 8 * t + 4 * (j - 2)
    qacc = lambda nt, t: 32 * t + 4 * nt
    for r in range(8): p(f"v_accvgpr_write_b32 a{aF+r}, 0")
    for t in range(5):
        for r in range(4): p(f"v_accvgpr_write_b32 a{xb(t,3)+r}, 0")
    def xread(t, j): return f"ds_read_b128 {ar(xb(t,j) if j < 2 else xt(t,j),4)}, v{[vXa0,vXa1][t&1]} offset:{(t>>1)*SLOT+64*j}"
    p(f"s_or_b32 s{sT}, s{sRnd}, s{sZ}\ns_bitcmp1_b32 s{sT}, 0\ns_cbranch_scc1 L_rw2")
    p(wpre(K0, 0))
    for o in wops()[opts.get('iw', 4):]: p(o)
    p("s_waitcnt vmcnt(0)\ns_barrier")
    for j in range(4):
        for t in range(5): p(xread(t, j))
        if j == 1: p("s_waitcnt lgkmcnt(0)")
    for o in wops(sRb, 64 * 8192): p(o)
    p("L_rw2:")
    p("s_waitcnt lgkmcnt(0)\ns_barrier")
    stamp_r(p, 1, 4, "q"); stamp(p, 1, 1)
    HQ = 2
    NS = opts.get('ns', 3)
    GO = opts.get('go', 1); GP = opts.get('gp', 1); GS = opts.get('gs', 1)
    def gunit(rdtxt, mf, streams, vm=None, T=None):
        lg = Q(p, "lgkmcnt", 15); tok = {0: 0, 1: 0}
        G = Gaps()
        for m in range(14):
            for e in range(2): G.pin(5 * m + 4 + GO + e, ("RD", m + 4, e))
        for m in range(2, 16):
            if not (GP and m % 2 and m > 4): G.reserve(5 * m - 1)
        for m in (2, 3):
            for e in range(2): G.pin(m - 2, ("RD", m, e))
        for seq, gaps in streams: G.stream(seq, gaps)
        def rd(m, e): lg.room(1); p(rdtxt(m, e)); tok[m] = lg.issue()
        isv = lambda o: isinstance(o, str) and o.startswith('v_')
        for m in range(16):
            lg.wait(max(tok[m], tok.get(m + 1, 0)) if GP and m % 2 == 0 and m >= 4 else tok[m])
            for t in range(5):
                p(mf(m, t))
                its = G.items[5 * m + t]
                if GS:
                    k = next((i for i, o in enumerate(its) if (isinstance(o, str) and o.startswith('s_')) or (isinstance(o, tuple) and o[0] == 'VM')), None)
                    if k and isinstance(its[k], str): its = [its[k]] + its[:k] + its[k+1:]
                for o in its:
                    if isinstance(o, str): p(o)
                    elif o[0] == "RD": rd(o[1], o[2])
                    elif o[0] == "DS": lg.room(1); p(o[1]); lg.issue()
                    elif o[0] == "W": vm.wait(T.get(o[1], 0))
                    else:
                        p(o[1])
                        if vm:
                            tk = vm.issue()
                            if o[2]: T[o[2]] = tk
    def qunit(u, dm, fill, endw, span=76):
        def rdtxt(m, e):
            f = m - HQ; ks = f >> 3; nt = f & 7
            return f"ds_read_b64_tr_b16 {ar(FB(m)+2*e,2)}, v{[tA,tB][u]} offset:{ks*SLOT+e*256+(nt>>1)*64+(nt&1)*8}"
        def mf(m, t):
            f = m - HQ
            j = (2 * u + (f >> 3)) & 3 if f >= 0 else (2 * u - 1) & 3
            return m16(vr(qacc(f & 7, t), 4), ar(FB(m), 4), ar(xb(t, j), 4))
        gunit(rdtxt, mf, [(split(dm), list(range(0, span)))] + fill)
        p(endw)
    movs = [([(f"v_accvgpr_mov_b32 a{xb(t,j)+r}, a{xt(t,j)+r}", 1) for j in (2, 3) for t in range(5) for r in range(4)], list(range(0, 79)))]
    xrd = [([(("DS", xread(t, j)), 1) for j in (2, 3, 0, 1) for t in range(5)], list(range(1, 70)))]
    rot = (f"v_mov_b32 v{t0}, v{tC}\nv_mov_b32 v{tC}, v{tB}\nv_mov_b32 v{tB}, v{tA}\nv_mov_b32 v{tA}, v{t0}\n"
           f"s_mov_b32 s{sT}, s{sRc}\ns_mov_b32 s{sRc}, s{sRb}\ns_mov_b32 s{sRb}, s{sRa}\ns_mov_b32 s{sRa}, s{sT}")
    WQ = 0
    vPv, vPk, vWv, vWk = 221, 247, 218, 220
    LR = 160; aSR = 120
    kvs = []
    for i in range(10):
        kvs += [(f"v_accvgpr_write_b32 a{aSR+4*i+r}, v{LR+4*i+r}", 1) for r in range(4)]
        if i < 8: kvs.append((("VM", f"buffer_load_dwordx4 {vr(LR+4*i,4)}, v{vPv}, {srd(sV)}, {'s%d' % sSt if i >= 4 else '0'} offen offset:{1024*(i&3)} nt", None), 1.5))
        else: kvs.append((("VM", f"buffer_load_dwordx4 {vr(LR+4*i,4)}, v{vPk}, {srd(sK)}, 0 offen offset:{1024*(i&1)} nt", None), 1.5))
    kvs += [(f"v_xor_b32 v{vPv}, 0x4000, v{vPv}", 1), (f"v_add_u32 v{vPk}, 0x800, v{vPk}", 1)]
    p(f"v_mov_b32 v{vPv}, {OOB}\nv_mov_b32 v{vPk}, {OOB}\ns_movk_i32 s{sSt}, 0x2000")
    p("L_Q_loop:")
    stamp_it(p, 1, "q", [(0, 2), (2, 3)])
    p(f"s_add_u32 s{sCur}, s{sCur}, 1\ns_cmp_ge_u32 s{sCur}, 5\ns_cselect_b32 s{sCur}, 0, s{sCur}")
    p(xpre); p(f"s_lshl_b32 s{sPb}, s{sCur}, 20\ns_add_u32 s{sPb}, s{sPb}, s{sGB}")
    p(f"s_cmp_eq_u32 s{sIt}, 3\ns_cselect_b32 s{sPa}, 0x30000, s{sRa}")
    p(f"s_cmp_eq_u32 s{sIt}, 2\ns_cbranch_scc1 L_Q_en")
    p("L_Q_enb:")
    side("L_Q_en:"); side(f"v_mov_b32 v{vPv}, v{vDv}\nv_xor_b32 v{vPk}, 0x6000, v{vDk}\ns_branch L_Q_enb")
    qunit(0, xops() + wops(sRc), movs, f"s_waitcnt vmcnt(8) lgkmcnt(0)\ns_barrier", span=76)
    qunit(1, wops(sPa, 64 * 8192), xrd + [(kvs, list(range(0, opts.get('kvspan', 60))))], rot + f"\ns_add_u32 s{sIt}, s{sIt}, 1\ns_cmp_lt_u32 s{sIt}, 4\ns_waitcnt vmcnt(18) lgkmcnt(0)\ns_barrier")
    p("s_cbranch_scc1 L_Q_loop")
    stamp(p, 4, 1)
    p(f"s_add_u32 s{sPa}, s{sHS}, {XR}\ns_mul_i32 s{sT}, s{sPi}, {2*SLOT}\ns_add_u32 s{sT}, s{sT}, {XR}\nv_add_u32 v{tB}, s{sT}, v{vTl}")
    p(f"v_add_u32 v{vWv}, s{sMV}, v{vLin}\nv_add_u32 v{vWk}, s{sMK}, v{vLin}\nv_xor_b32 v{vDv}, 0x8000, v{vDv}")
    kpre = kv_ops(True, 0) + kv_ops(True, 1) + kv_ops(True, 2) + [adv(vDk, vDk, sSt)]
    def kvw(st, i):
        src = ar(aSR + 4 * i, 4) if st == 0 else vr(LR + 4 * i, 4)
        if i < 8: return f"ds_write_b128 v{vWv}, {src} offset:{((2*st+(i>>2)+2)&3)*SLOT+(i&3)*PCS}"
        return f"ds_write_b128 v{vWk}, {src} offset:{3*SLOT+(2*st+(i&1))*PCS}"
    NPF = opts.get('npf', 0); pfm = " nt" if opts.get('pfnt', 1) else ""
    pf = []
    for k in range(NPF):
        for isk in (True, False):
            for jj in range(4):
                pf.append((f"s_mov_b32 s{sT3}, {(3+k if False else 4+k)*8192}\n" if jj == 0 and isk else "") + f"buffer_load_dwordx4 {vr(WD,4)}, v{vPv}, {srd(sK if isk else sV)}, s{sT3} offen offset:{1024*jj}{pfm}")
    q4 = len(pf) // 4
    p(f"v_mov_b32 v{vPv}, {OOB}")
    kw = [(("DS", kvw(st, i)), 2) for st in range(2) for i in (8, 9)]
    qunit(0, wops(sPa, 64 * 8192) + kpre[:8], movs, "s_waitcnt vmcnt(8) lgkmcnt(0)\ns_barrier")
    p(f"s_cmp_eq_u32 s{sZ}, 2\ns_cbranch_scc1 L_zw")
    p("L_zwb:")
    side("L_zw:")
    side(f"s_sub_u32 s{sGB}, s{sGB}, 512\ns_mov_b32 s{sCur}, s{sR0}\n{xpre}\n{wpre(K0, 0)}\ns_add_u32 s{sRa}, s{sHS}, {K1}")
    for o in wops(sPa) + wops(sRa, 64 * 8192): side(o)
    side("s_branch L_zwb")
    qunit(1, kpre[8:] + pf[:q4], [(kw, list(range(0, 60)))], f"s_waitcnt vmcnt({8+q4}) lgkmcnt(0)\ns_barrier")
    stamp(p, 5, 1)
    vw = [kvw(st, i) for st in range(2) for i in range(8)]
    p(f"s_cmp_eq_u32 s{sZ}, 2\ns_cbranch_scc1 L_zx")
    p("L_zxb:")
    side("L_zx:")
    for o in xops(): side(o)
    side("s_branch L_zxb")
    for m in range(HQ):
        for t in range(5): p(m16(vr(qacc(6 + m, t), 4), ar(FB(m), 4), ar(xb(t, 3), 4)))
    for i in range(80):
        p(f"v_pk_mul_f32 {vr(2*i,2)}, {vr(2*i,2)}, s[{sC}:{sC+1}] op_sel_hi:[1,0]")
        if i >= 2: p(f"v_cvt_pk_bf16_f32 v{i-2}, v{2*i-4}, v{2*i-3}")
        if i % 5 == 0:
            if i == 40: p("s_waitcnt lgkmcnt(0)")
            p(vw[i // 5])
        if i % 10 == 3 and i // 10 < q4: p(pf[q4 + i // 10])
    p("v_cvt_pk_bf16_f32 v78, v156, v157\nv_cvt_pk_bf16_f32 v79, v158, v159\ns_waitcnt lgkmcnt(0)")
    for r in range(0, 20, 2): p(f"v_mov_b64 {vr(NM+r,2)}, 0")
    p(f"s_cmp_eq_u32 s{sZ}, 2\ns_cbranch_scc1 L_zsave")
    stamp(p, 6, 1); stamp(p, 7, 1)
    stamp_r(p, 2, 5, "a")

    HB = 2
    DRYN = {"m2": "L_A_m1", "m1": "L_A_z0", "z0": "L_dry_done", "l1": "L_A_l2", "l2": "L_dry_done", "l3": "L_A_l0", "l0": "L_dry_done", "e13": "L_A_e14", "e15": "L_dry_done"}
    def sm_ops(b):
        seq = []
        for k in range(43):
            if k < 40: seq.append((f"v_exp_f32 v{b+k}, v{b+k}", 2))
            if k >= 4 and k % 2 == 0:
                i = (k - 4) // 2
                seq.append((f"v_cvt_pk_bf16_f32 v{b+8*(i>>2)+(i&3)}, v{b+2*i}, v{b+2*i+1}", 1))
        return seq
    W1 = list(range(24, 80)) + list(range(0, 9))
    def oops(vo): return [f"s_add_u32 m0, s{sPa}, {pc*PCS}\ns_add_u32 s{sT}, s{sPb}, {(PR*(pc&1)+(pc>>1))*1280}\nbuffer_load_dwordx4 v{vo}, {srd(sWO)}, s{sT} offen lds" for pc in range(8)]
    r0 = xops() + wops(sPa) + wops(sRa, 64 * 8192)
    r0[0] = f"s_add_u32 s{sGB}, s{sGB}, 512\ns_mov_b32 s{sCur}, s{sR0}\n{xpre}\n{wpre(K0, 0)}\ns_add_u32 s{sRa}, s{sHS}, {K1}\n" + r0[0]
    r0s = [r0[4*i:4*i+4] for i in range(6)] + [r0[24:26], [], []]
    wm = [f"s_mov_b32 s{sT}, {(k>>2)*256+(k&3)*128*1280}\nbuffer_load_dwordx4 {vr(WD,4)}, v{vWarm}, {srd(sWO)}, s{sT} offen" for k in range(20)]
    o0 = oops(vWoA); o1 = oops(vWoA)
    o0[0] = f"s_mul_i32 s{sGB}, s{sWave}, {32*1280}\ns_add_u32 s{sPa}, s{sHS}, {K0}\ns_mov_b32 s{sPb}, s{sGB}\n" + o0[0]
    o1[0] = f"s_add_u32 s{sPa}, s{sHS}, {K1}\ns_add_u32 s{sPb}, s{sGB}, {256*1280}\n" + o1[0]
    r1s = [wm[0:4], wm[4:7], wm[7:10], wm[10:13], wm[13:16], wm[16:20], [], o0, o1]
    r2s = [[kvadv, kvinit] + kv_ops(True, 0), kv_ops(True, 1), kv_ops(True, 2), kv_ops(False, 0), kv_ops(True, 3), kv_ops(False, 1), [], [], []]
    def site(k):
        p(f"s_or_b32 s{sT}, s{sRnd}, s{sZ}\ns_cbranch_scc1 L_s{k}a")
        for o in r0s[k]: p(o)
        p(f"L_s{k}b:")
        side(f"L_s{k}c:")
        for o in r2s[k]: side(o)
        side(f"s_branch L_s{k}b")
        side(f"L_s{k}a:")
        side(f"s_cmp_eq_u32 s{sZ}, 1\ns_cbranch_scc1 L_s{k}c")
        for o in r1s[k]: side(o)
        side(f"s_branch L_s{k}b")
    POS = []
    for m in range(16):
        POS += [(m, t) for t in range(5)]
        if 3 <= m < 8: POS.append(('L', m - 3))
    NPOS = len(POS); first_of = {m: POS.index((m, 0)) for m in range(16)}
    PW = 1
    cap = {x: 2 for x in range(NPOS)}; pins = {x: [] for x in range(NPOS)}
    for m in range(2, 16):
        if m < 4 or m % 2 == 0: cap[first_of[m] - 1] -= 1
    if opts.get('hd', 1):
        for m in (2, 3):
            for e in range(2): pins[m - 2].append(('RD', m, e)); cap[m - 2] -= 1
    for m in range(14):
        x = POS.index((m, 4))
        if x + 1 < NPOS and POS[x + 1][0] == 'L' and cap[x + 1] == 1 and m + 4 >= 10: x += 1
        for e in range(2 if m + 4 < 10 else 1):
            while cap[x] < 1: x += 1
            pins[x].append(('RD', m + 4, e)); cap[x] -= 1
    XC = opts.get('xc', 20); XP = first_of[11] - 1
    while cap[XC] < 2: XC += 1
    cap[XC] = 0
    while cap[XP] < 1: XP += 1
    cap[XP] -= 1
    cap[NPOS - 1] -= 1
    order = list(range(XC + 1, NPOS)) + list(range(0, XC)); n1 = NPOS - XC - 1
    EH = opts.get('eh', 8)
    cand = [g for g in order[:n1 + EH] if cap[g] == 2]
    assert len(cand) >= 40, len(cand)
    skip = len(cand) - 40
    drop = {cand[min(len(cand) - 1, int((i + 0.75) * len(cand) / max(skip, 1)))] for i in range(skip)}
    eg = [g for g in cand if g not in drop][:40]
    assert len(eg) == 40
    tmpl = {x: [] for x in range(NPOS)}; pos = {g: i for i, g in enumerate(order)}
    for k, g in enumerate(eg): tmpl[g].append(('EX', k)); cap[g] = 0
    def place(it, lo, hi):
        g = next((g for g in order[lo:hi + 1] if cap[g] >= 1), None)
        if g is None:
            g = order[hi]; print("overflow", it, file=sys.stderr)
        tmpl[g].append(it); cap[g] -= 1
        return pos[g]
    last = 0
    for i in range(20): last = place(('CV', i), max(last, pos[eg[2 * i + 1]] + 1), n1 + 8 + (i >> 2))
    mreg = [8 * t + r for t in range(5) for r in range(4)] + [8 * t + 4 + r for t in range(5) for r in range(4)]
    mx = [('MX', TT, None, mreg[0:3]), ('MX', TT + 1, None, mreg[3:6])] + [('MX', TT + ((i >> 1) & 1), 1, mreg[i:i+2]) for i in range(6, 40, 2)] + [('MF',)]
    last = pos[first_of[14] + 3]; MXW = set()
    for i, o in enumerate(mx):
        last = place(o, max(last, n1 + 8 + ((i - 9) >> 1) if i >= 9 else 0), len(order) - 1)
    free = [g for g in range(1, NPOS - 1) for _ in range(max(cap[g], 0))]
    fg = sorted(set(free)); assert len(fg) >= 8, fg
    sel = [fg[int((i + 0.3) * len(fg) / 8)] for i in range(8)]
    for i, g in enumerate(sel):
        assert i == 0 or g - 1 >= sel[i - 1] + 1 or True
        pins[g - 1 if (i == 0 or g - 1 > sel[i - 1]) else g].insert(0, ('DM', 2 * i)); tmpl[g].append(('DM', 2 * i + 1)); cap[g] -= 1
    tmpl[XC] = ['CHECK']; tmpl[XP].append('PT2')
    print("A template: XC", XC, "left", sum(max(c, 0) for c in cap.values()), "over", sum(-min(c, 0) for c in cap.values()), file=sys.stderr)
    def abody(tag, nm, held=True, pv=True, qk=True, zc=False, first=False, dma=True, smt=True, smh=True, endw=f"vmcnt({opts.get('endn', 6)})", bar=True, sites={}, fill={}):
        Sn = SS[nm & 1]; Sn1 = SS[(nm + 1) & 1]
        lg = Q(p, "lgkmcnt", 15); tok = {0: 0, 1: 0}
        p(f"L_A_{tag}:")
        slot = (nm + 2) & 3
        ms = ([0, 1] if held else []) + (list(range(2, 10)) + ['L'] if pv else []) + (list(range(10, 16)) if qk else [])
        done = set()
        def rd(m, e):
            if (m, e) in done or (m < 10 and not pv) or (m >= 10 and not qk): return
            done.add((m, e)); lg.room(1)
            if m < 10:
                dt = m - 2
                p(f"ds_read_b64_tr_b16 {ar(FB(m)+2*e,2)}, v{vVa} offset:{slot*SLOT+e*256+(dt>>1)*64+(dt&1)*HS}")
            else:
                k = m - 10
                p(f"ds_read_b128 {ar(FB(m),4)}, v{[vKa0,vKa1][k>>2]} offset:{slot*SLOT+64*(k&3)}")
            tok[m] = lg.issue()
        dm = []
        if dma:
            for o in kv_ops(True, nm + 1) + (kv_ops(False, nm + 3) if dma != 'k' else []):
                l = o.replace("s_nop 0\n", "").split("\n"); dm += [l[0], "\n".join(l[1:])]
        for m in (() if pv and opts.get('hd', 1) else (2, 3) if pv else (10, 11)):
            for e in range(2 if pv else 1): rd(m, e)
        for x, (m, t) in enumerate(POS):
            if m in ms:
                if m == 'L': p(m16(vr(LL + 4 * t, 4), vr(ONE, 4), vr(Sn + 8 * t, 4), '0' if zc else None))
                else:
                    if t == 0: lg.wait(max(tok[m], tok.get(m + 1, 0)) if PW and m % 2 == 0 and m >= 4 else tok[m])
                    if m < 2: p(m16(vr(Sn1 + 8 * t + 4, 4), ar(FB(m), 4), vr(QR + 16 * t + 4 * (2 + m), 4)))
                    elif m < 10: p(m16(ar(oacc(m - 2, t), 4), ar(FB(m), 4), vr(Sn + 8 * t, 4), '0' if zc else None))
                    else:
                        k = m - 10
                        p(m16(vr(Sn + 8 * t + 4 * (k >> 2), 4), ar(FB(m), 4), vr(QR + 16 * t + 4 * (k & 3), 4), vr(NM + 4 * t, 4) if k & 3 == 0 else None))
            b = Sn1 if x > XC else Sn; on = smh if x > XC else smt
            for o in pins[x] + tmpl[x]:
                if o == 'CHECK':
                    if first: call(p, "S_first")
                    elif smh:
                        p(f"v_cmp_lt_f32 vcc, 0x41000000, v{TT+2}\ns_cbranch_vccnz L_rr{tag}")
                        p(f"L_rb{tag}:")
                        side(f"L_rr{tag}:"); call(side, f"S_rare{(nm+1)&1}"); side(f"s_branch L_rb{tag}")
                elif o == 'PT2':
                    if smh and not first:
                        p(f"s_cbranch_vccnz L_p2{tag}")
                        p(f"L_pb{tag}:")
                        side(f"L_p2{tag}:"); call(side, "S_scale"); side(f"s_branch L_pb{tag}")
                elif o[0] == 'RD': rd(o[1], o[2])
                elif o[0] == 'EX':
                    if on: p(f"v_exp_f32 v{b+o[1]}, v{b+o[1]}")
                elif o[0] == 'CV':
                    i = o[1]
                    if on: p(f"v_cvt_pk_bf16_f32 v{b+8*(i>>2)+(i&3)}, v{b+2*i}, v{b+2*i+1}")
                elif o[0] == 'MX':
                    if (qk if x > XC else (smh and not first)): p(f"v_max3_f32 v{o[1]+2}, " + ", ".join(([f"v{o[1]+2}"] if o[2] else []) + [f"v{(Sn if x > XC else Sn1)+r}" for r in o[3]]))
                elif o[0] == 'MF':
                    if smh and not first: p(f"v_max_f32 v{TT+2}, v{TT+2}, v{TT+3}")
                elif o[0] == 'DM':
                    if o[1] < len(dm):
                        if opts.get('midn') and o[1] % 2 == 1 and tag[0] == 'l' and (o[1] >> 1) % opts.get('mids', 4) == 0: p(f"s_waitcnt vmcnt({opts['midn']})")
                        p(dm[o[1]])
            if x in sites: site(sites[x])
            for o in fill.get(x, []): p(o)
        if bar: p(f"s_waitcnt {endw} lgkmcnt(0)")
    def xl(op, a, b):
        return (f"v_mov_b32 v{b}, v{a}\nv_permlane16_swap_b32 v{a}, v{b}\n{op} v{a}, v{a}, v{b}\n"
                f"v_mov_b32 v{b}, v{a}\nv_permlane32_swap_b32 v{a}, v{b}\n{op} v{a}, v{a}, v{b}")
    def shiftsub(name, n, first):
        q(f"{name}:")
        for t in range(5):
            b = n + 8 * t
            q(f"v_max3_f32 v{TT}, v{b}, v{b+1}, v{b+2}\nv_max3_f32 v{TT}, v{TT}, v{b+3}, v{b+4}\nv_max3_f32 v{TT}, v{TT}, v{b+5}, v{b+6}\nv_max_f32 v{TT}, v{TT}, v{b+7}")
            q(xl("v_max_f32", TT, TT + 1))
            if not first: q(f"v_max_f32 v{TT}, 0, v{TT}\nv_exp_f32 v{FACS[t]}, -v{TT}")
            for r in range(8): q(f"v_sub_f32 v{b+r}, v{b+r}, v{TT}")
            for r in range(4): q(f"v_sub_f32 v{NM+4*t+r}, v{NM+4*t+r}, v{TT}")
        ret(q, name)
    shiftsub("S_rare0", SS[0], False); shiftsub("S_rare1", SS[1], False); shiftsub("S_first", SS[0], True)
    q("S_scale:")
    for dt in range(8):
        for t in range(5):
            a = oacc(dt, t)
            for r in range(4): q(f"v_accvgpr_read_b32 v{TT+4+r}, a{a+r}")
            for r in (0, 2): q(f"v_pk_mul_f32 {vr(TT+4+r,2)}, {vr(TT+4+r,2)}, {vr(FACS[t],2)} op_sel_hi:[1,0]")
            for r in range(4): q(f"v_accvgpr_write_b32 a{a+r}, v{TT+4+r}")
    for t in range(5):
        for r in (0, 2): q(f"v_pk_mul_f32 {vr(LL+4*t+r,2)}, {vr(LL+4*t+r,2)}, {vr(FACS[t],2)} op_sel_hi:[1,0]")
    ret(q, "S_scale")
    stamp(p, 1, 3); stamp(p, 1, 5)
    abody("m2", 2, held=False, pv=False, smt=False, smh=False, dma=False, endw=f"vmcnt({4+2*q4})"); p("s_barrier")
    abody("m1", 3, pv=False, smt=False, first=True, dma='k', endw=f"vmcnt({4+3*q4})", fill=spread([(o, 1) for o in pf[2*q4:3*q4]], list(range(45, 84))) if q4 else {}); p("s_barrier")
    abody("z0", 0, zc=True, dma='k', endw="vmcnt(63)", fill=spread([(o, 1) for o in (pf[3*q4:] if q4 >= 4 else pf[3*q4:] + [f"buffer_load_dword v{WD}, v{vPv}, {srd(sV)}, 0 offen"] * 4)], list(range(45, 84)))); p(f"s_mov_b32 s{sIt}, 0\ns_barrier"); stamp(p, 2, 3); stamp(p, 2, 5)
    for nm in (1, 2, 3, 0):
        abody(f"l{nm}", nm)
        if nm == 0: p(f"s_add_u32 s{sIt}, s{sIt}, 1\ns_cmp_lt_u32 s{sIt}, 3")
        p("s_barrier")
    if PST == 5: stamp_it(p, 5, "a", [(1, 3), (2, 4), (3, 5)])
    p("s_cbranch_scc1 L_A_l1")
    stamp(p, 3, 3)
    abody("e13", 1, dma=False, endw="vmcnt(0)"); p("s_barrier")
    stamp(p, 4, 3); stamp(p, 6, 5)
    abody("e14", 2, qk=False, dma=False, bar=False, sites={1: 0, 20: 1, 40: 2, 65: 3})
    def prd(J, t):
        tm = PT[(J, t)]
        return [f"v_accvgpr_read_b32 v{tm+4*h+r}, a{oacc(2*J+h,t)+r}" for h in range(2) for r in range(4)]
    PT = {}
    for t in range(5): PT[(0, t)] = SS[0] + 8 * t; PT[(1, t)] = QR + 16 * t + 8
    early = [o for J in range(2) for t in range(5) for o in prd(J, t)]
    xa = first_of[4] + 2; xb_ = first_of[6] + 2; xe = first_of[10]
    fl = spread([(o, 1) for o in early[:40]], list(range(xa, xb_ + 8)))
    for g, l in spread([(o, 1) for o in early[40:]], list(range(xb_ + 8, xe))).items(): fl.setdefault(g, []).extend(l)
    abody("e15", 3, held=False, qk=False, dma=False, smh=False, bar=False, sites={12: 4, 35: 5}, fill=fl)
    stamp(p, 5, 3)
    for t in range(5): p(f"v_rcp_f32 v{FACS[t]}, v{LL+4*t}")
    for J in range(4):
        if J < 3: site(6 + J)
        for t in range(5):
            if J >= 2:
                PT[(J, t)] = SS[1] + 8 * t if J == 2 else SS[0] + 8 * t
                for o in prd(J, t): p(o)
            tm = PT[(J, t)]
            for r in range(0, 8, 2): p(f"v_pk_mul_f32 {vr(tm+r,2)}, {vr(tm+r,2)}, {vr(FACS[t],2)} op_sel_hi:[1,0]")
            for r in range(4): p(f"v_cvt_pk_bf16_f32 v{QR+16*t+4*J+r}, v{tm+2*r}, v{tm+2*r+1}")
    stamp_r(p, 3, 6, "e"); stamp(p, 6, 3); stamp(p, 7, 3); stamp(p, 7, 5)
    p(f"s_cmp_eq_u32 s{sRnd}, 1\ns_cbranch_scc1 L_T")
    p(f"s_mov_b32 s{sRnd}, 1\ns_cmp_eq_u32 s{sZ}, 1\ns_cbranch_scc1 L_zswap")
    p(kvadv)
    p("L_zsave:")
    p(f"s_lshr_b32 s{sZ}, s{sZ}, 1\ns_waitcnt vmcnt(0)\ns_barrier")
    xr = [xread(t, j) for j in range(4) for t in range(5)]
    for r in range(80):
        if r % 4 == 0:
            if r == 48: p("s_waitcnt lgkmcnt(4)")
            p(xr[r // 4])
        p(f"v_accvgpr_write_b32 a{aSV+r}, v{QR+r}")
    p("s_branch L_round")
    p("L_zswap:")
    p(f"s_mov_b32 s{sZ}, 0\ns_waitcnt vmcnt(0)\ns_barrier")
    v23 = kv_ops(False, 2) + kv_ops(False, 3)
    for r in range(0, 80, 2):
        if r % 10 == 0: p(v23[r // 10])
        k = 80 + (r & 14)
        p(f"v_accvgpr_read_b32 v{k}, a{aSV+r}\nv_accvgpr_read_b32 v{k+1}, a{aSV+r+1}\nv_accvgpr_write_b32 a{aSV+r}, v{QR+r}\nv_accvgpr_write_b32 a{aSV+r+1}, v{QR+r+1}\nv_mov_b64 {vr(QR+r,2)}, {vr(k,2)}")
    for r in range(0, 20, 2): p(f"v_mov_b64 {vr(NM+r,2)}, 0")
    p("s_branch L_A_m2")

    q("S_odmb:")
    for o in oops(vWoB): q(o)
    ret(q, "S_odmb")
    SLP = opts.get('slp', 4)
    q("S_spin:")
    q(f"buffer_load_dword v{vPol}, v{vZ}, {srd(sFL)}, s{sFo} offen sc1\ns_waitcnt vmcnt(0)")
    q("S_spinc:")
    q(f"v_readfirstlane_b32 s{sT}, v{vPol}\ns_cmp_eq_u32 s{sT}, 8\ns_cbranch_scc1 L_spr\ns_sleep {SLP}\ns_branch S_spin")
    q("L_spr:"); ret(q, "S_spin|S_spinc")
    q("S_post:")
    q(f"s_cmp_lg_u32 s{sWave}, 0\ns_cbranch_scc1 L_pr\nv_mov_b32 v{t0}, 1\ns_mov_b64 exec, 1")
    q(f"buffer_atomic_add v{t0}, v{vZ}, {srd(sFL)}, s{sT2} offen sc1\ns_mov_b64 exec, -1")
    q("L_pr:"); ret(q, "S_post")
    def ld_op(li):
        sg = li >> 1; h = li & 1
        return f"s_add_u32 s{sT}, s{sPc}, {sg*4096+h*4*SLAB}\nbuffer_load_dwordx4 {vr(RB+4*li,4)}, v{vOs2}, {srd(sPA)}, s{sT} offen sc1"
    LSET = [range(0, 4), range(4, 8), range(8, 10)]
    def red_ops(k):
        d = RD + 4 * k
        o = [m16(vr(d, 4), vr(SEL + 4 * ((li >> 1) & 1), 4), vr(RB + 4 * li, 4), '0' if li % 4 == 0 else None) for li in LSET[k]]
        o2 = [f"v_cvt_pk_bf16_f32 v{d}, v{d}, v{d+1}", f"v_cvt_pk_bf16_f32 v{d+1}, v{d+2}, v{d+3}",
              ("VM", f"s_add_u32 s{sT2}, s{sPd}, {k*32*1280}\nbuffer_store_dwordx2 {vr(d,2)}, v{vOo3 if k == 2 else vOo2}, {srd(sOUT)}, s{sT2} offen", None)]
        return o, o2
    q("S_ld:")
    for li in range(10): q(ld_op(li))
    q("s_waitcnt vmcnt(0)")
    q("S_reda:")
    for o in red_ops(0)[0]: q(o)
    q("S_redb:")
    for k in (1, 2):
        for o in red_ops(k)[0]: q(o)
    for k in range(3):
        for o in red_ops(k)[1]: q(o if isinstance(o, str) else o[1])
    ret(q, "S_ld|S_reda|S_redb")
    def reduce_group(g):
        p(f"s_mov_b32 s{sPc}, {g*40960}\ns_movk_i32 s{sPd}, {g*256}"); call(p, "S_ld")

    p("L_T:")
    stamp(p, 1, 2)
    p("s_waitcnt vmcnt(16)")
    p(f"s_mov_b32 s{sT}, {EXA[0]}\ns_mul_i32 s{sT2}, s{sWave}, 20480\ns_add_u32 s{sT2}, s{sT2}, {V1-20480}\ns_cmp_eq_u32 s{sWave}, 0\ns_cselect_b32 s{sT2}, s{sT}, s{sT2}")
    p(f"v_add_u32 v{vR0}, s{sT2}, v{vLin}")
    p(f"s_xor_b32 s{sT3}, s{sWave}, 2\ns_mul_i32 s{sT2}, s{sT3}, 20480\ns_add_u32 s{sT2}, s{sT2}, {V1-20480}\ns_cmp_eq_u32 s{sT3}, 0\ns_cselect_b32 s{sT2}, s{sT}, s{sT2}")
    p(f"v_add_u32 v{vR1}, s{sT2}, v{vLin}")
    p(f"s_lshl_b32 s{sT}, s{sB}, 3\nv_mov_b32 v{t0}, s{sT}")
    p("L_isp:")
    p(f"buffer_load_dword v{vPol}, v{t0}, {srd(sDBG)}, 0 offen sc1")
    p("s_barrier")
    for step in range(2):
        for i in range(20):
            p(f"ds_write_b128 v{vR0}, {ar(aSV+4*i,4) if step == 0 else vr(QR+4*i,4)} offset:{1024*i}")
            if i % 10 == 9: p("s_waitcnt lgkmcnt(0)")
        p("s_barrier")
        for i in range(20):
            p(f"ds_read_b128 {ar(80*step+4*i,4)}, v{vR1} offset:{1024*i}")
            if i % 10 == 9: p("s_waitcnt lgkmcnt(0)")
        if step == 1:
            p("s_waitcnt vmcnt(0)")
            p("L_ick:")
            p(f"v_readfirstlane_b32 s{sT}, v{vPol}\ns_cmp_eq_u32 s{sT}, 1\ns_cbranch_scc1 L_iok")
            p(f"s_sleep 8\nbuffer_load_dword v{vPol}, v{t0}, {srd(sDBG)}, 0 offen sc1\ns_waitcnt vmcnt(0)\ns_branch L_ick")
            p("L_iok:")
        p("s_barrier")
    REG = [K0, K1, V0, V1]; TBr = [vR0, vR1, vR2, vR3]
    p(f"s_lshl_b32 s{sT}, s{sPi}, 7\nv_add_u32 v{vR0}, s{sT}, v{vTn}\nv_add_u32 v{vR1}, {K1}, v{vR0}\nv_add_u32 v{vR2}, {V0}, v{vR0}\nv_add_u32 v{vR3}, {V1}, v{vR0}")
    p(f"s_add_u32 s{sPa}, s{sHS}, {V0}\ns_mov_b32 s{sPb}, s{sGB}"); call(p, "S_odmb")
    p(f"v_mov_b32 v{vSt2}, {OOB}\nv_mov_b32 v{vOs2}, {OOB}\nv_mov_b32 v{vOo2}, {OOB}\nv_mov_b32 v{vOo3}, {OOB}")
    p(f"s_mov_b32 s{sIt}, 0\ns_mov_b32 s{sSt}, 0\ns_mov_b32 s{sPc}, 0\ns_mov_b32 s{sPd}, 0\ns_mov_b32 s{sFo}, 0\ns_mov_b32 s{sCol}, s{sGB}\ns_mov_b32 s{sRa}, s{sHS}")
    Bop = lambda qd, t, ts: [ar(aSV + 16 * t + 4 * ts, 4), vr(QR + 16 * t + 4 * ts, 4), ar(16 * t + 4 * ts, 4), ar(80 + 16 * t + 4 * ts, 4)][qd]
    tacc = lambda Jp, t, h: TA + 40 * Jp + 8 * t + 4 * h
    def st_ops(Jp, vo, back):
        o = []
        for t in range(5):
            tm = TMP + 4 * (t & 1); a = tacc(Jp, t, 0)
            o += [f"v_cvt_pk_bf16_f32 v{tm+i}, v{a+2*i}, v{a+2*i+1}" for i in range(4)]
            o.append(("VM", f"s_add_u32 s{sT3}, s{sSt}, {t*4096}\nbuffer_store_dwordx4 {vr(tm,4)}, v{vo}, {srd(sPO)}, s{sT3} offen offset:{1024*Jp} sc1", 'ps'))
        return o
    vm = Q(p, "vmcnt", 63); T = {}
    def tmf(qd, f, m):
        Jp = f >> 3; ts = (f >> 1) & 3; h = f & 1
        return [m16(vr(tacc(Jp, t, h), 4), ar(FB(m), 4), Bop(qd, t, ts), '0' if qd == 0 and ts == 0 else None) for t in range(5)]
    LAG = opts.get('lag', 2); PQ = opts.get('pq', 2)
    def period():
        for qd in range(4):
            D = (qd + 3) & 3
            if qd == 0:
                p(f"buffer_load_dword v{vPol}, v{vZ}, {srd(sFL)}, s{sFo} offen sc1"); T['poll'] = vm.issue()
            if qd == 1:
                p(f"s_add_u32 s{sCol}, s{sCol}, 256\ns_cmp_ge_u32 s{sIt}, {LAG}\ns_cbranch_scc1 L_T_ck")
                p("L_T_ckb:")
                T['pollw'] = vm.n - T['poll']
            if qd == PQ:
                p(f"s_lshl_b32 s{sT2}, s{sIt}, 7\ns_sub_u32 s{sT2}, s{sT2}, 128\ns_cbranch_scc1 L_T_np"); call(p, "S_post"); p("L_T_np:")
            if qd == 3:
                p(f"s_lshl_b32 s{sPd}, s{sIt}, 8\ns_sub_u32 s{sPd}, s{sPd}, {256*LAG}\ns_cselect_b32 s{sPd}, 0, s{sPd}\ns_cbranch_scc1 L_T_no\nv_mov_b32 v{vOo2}, v{vOfo}\nv_mov_b32 v{vOo3}, v{vOf3}")
                p("L_T_no:")
            p(f"s_add_u32 s{sPa}, s{sRa}, {REG[D]}\ns_add_u32 s{sPb}, s{sCol}, {(D&1)*256*1280}\ns_add_u32 s{sRb}, s{sPb}, {PR*1280}")
            vmo = []
            lds_ = list(LSET[qd - 1]) if qd >= 1 else []
            BU = opts.get('burst', 2)
            if BU:
                lds_ = []
                if qd == 1 and BU == 1: vmo += [("VM", ld_op(li), 'lb') for li in range(10)]
            for i in range(8):
                im = (i >> 1) * 1280
                vmo.append(("VM", f"s_add_u32 m0, s{sPa}, {i*PCS-im}\nbuffer_load_dwordx4 v{vWoA if D < 2 else vWoB}, {srd(sWO)}, s{sRb if i & 1 else sPb} offen offset:{im} lds", ('d', D)))
                if i % 2 and lds_: vmo.append(("VM", ld_op(lds_.pop(0)), ('l', qd - 1)))
            if WQ == 3:
                vmo.append(("VM", f"s_add_u32 s{sT}, s{sRc}, {qd*128*1280}\nbuffer_load_dwordx4 {vr(212,4)}, v{vWarm}, {srd(sWO)}, s{sT} offen", None))
                if qd == 0: p(f"s_add_u32 s{sRc}, s{sIt}, 2\ns_min_u32 s{sRc}, s{sRc}, 4\ns_lshl_b32 s{sRc}, s{sRc}, 8")
            if BU == 2 and qd == 1: vmo += [("VM", ld_op(li), 'lb') for li in range(10)]
            streams = []
            if qd == 0: streams.append((split(st_ops(1, vSt2, True) + [f"v_mov_b32 v{vSt2}, v{vSt}\ns_mul_i32 s{sSt}, s{sIt}, 40960"]), list(range(13, 49))))
            if qd == 3: streams.append((split(st_ops(0, vSt, False)), list(range(53, 80))))
            streams.append((split(vmo), list(range(0, 78))))
            rk = (qd + 1) & 3
            if BU:
                if qd == 0: streams.append(([(("W", 'lb'), 1)] + [(o, 1) for k in range(3) for o in red_ops(k)[0]], list(range(50, 78))))
                if rk == 3: streams.append((split([o for k in range(3) for o in red_ops(k)[1]]), list(range(0, 78))))
            elif rk < 3: streams.append(([(("W", ('l', rk)), 1)] + [(o, 1) for o in red_ops(rk)[0]], list(range(30, 50))))
            else: streams.append((split([o for k in range(3) for o in red_ops(k)[1]]), list(range(0, 78))))
            def rdtxt(m, e):
                f = m - 2; Jp = f >> 3; ts = (f >> 1) & 3; h = f & 1
                return f"ds_read_b64_tr_b16 {ar(FB(m)+2*e,2)}, v{TBr[qd]} offset:{ts*SLOT+e*256+Jp*64+h*HS}"
            gunit(rdtxt, lambda m, t: (tmf(qd, m - 2, m) if m >= 2 else tmf((qd - 1) & 3, 14 + m, m))[t], streams, vm, T)
            need = T.get(('d', (qd + 1) & 3), 0)
            if qd == PQ - 1: need = max(need, T['ps'])
            if qd == 1: need = max(need, T['poll'])
            vm.wait(need)
            if qd == 3: p(f"s_add_u32 s{sIt}, s{sIt}, 1\ns_cmp_lt_u32 s{sIt}, 5")
            p("s_waitcnt lgkmcnt(0)\ns_barrier")
    mark = len(p.ins)
    period()
    del p.ins[mark:]
    p("L_T_loop:")
    stamp_it(p, 2, "t", [(0, 2), (1, 3), (2, 4), (3, 5), (4, 6)])
    period()
    p("s_cbranch_scc1 L_T_loop")
    side("L_T_ck:")
    side(f"s_waitcnt vmcnt({min(63, T['pollw'])})"); call(side, "S_spinc")
    side(f"s_sub_u32 s{sPc}, s{sIt}, {LAG}\ns_mul_i32 s{sPc}, s{sPc}, 40960\ns_add_u32 s{sFo}, s{sFo}, 128\nv_mov_b32 v{vOs2}, v{vOfs}")
    side(f"s_cmp_lg_u32 s{sIt}, 4\ns_cbranch_scc1 L_T_ckb")
    side(f"v_mov_b32 v{vWoA}, {OOB}\nv_mov_b32 v{vWoB}, {OOB}\ns_mov_b32 s{sRa}, 0x28000\ns_branch L_T_ckb")
    for m in range(2):
        for o in tmf(3, 14 + m, m): p(o)
    p(f"s_movk_i32 s{sFo}, 384\nbuffer_load_dword v{vPol}, v{vZ}, {srd(sFL)}, s{sFo} offen sc1")
    for o in st_ops(1, vSt, True): p(o if isinstance(o, str) else o[1])
    stamp(p, 7); stamp(p, 7, 2)
    p("s_waitcnt vmcnt(5)"); call(p, "S_reda" if opts.get('burst', 2) else "S_redb")
    rest = list(range(5 - LAG, 4))
    p("s_waitcnt vmcnt(3)\ns_barrier")
    p(f"s_movk_i32 s{sT2}, 512"); call(p, "S_post")
    call(p, "S_spinc")
    for i, g in enumerate(rest[1:]):
        p(f"s_mov_b32 s{sPc}, {g*40960}")
        for li in range(10): p(ld_op(li).replace(vr(RB + 4 * li, 4), vr(40 * i + 4 * li, 4)))
    reduce_group(rest[0])
    for i, g in enumerate(rest[1:]):
        for r in range(0, 40, 2): p(f"v_mov_b64 {vr(RB+r,2)}, {vr(40*i+r,2)}")
        p(f"s_movk_i32 s{sPd}, {g*256}"); call(p, "S_reda")
    p(f"s_movk_i32 s{sFo}, 512"); call(p, "S_spin")
    reduce_group(4)
    if PROF:
        p("s_waitcnt vmcnt(0)\ns_mov_b32 s96, s65")
        stamp(p, 9)
        p("s_memrealtime s[100:101]\ns_waitcnt lgkmcnt(0)")
        if opts.get('dbg'):
            p(f"s_lshl_b32 s{sT}, s2, 3\ns_add_u32 s{sT}, s{sT}, s{sWave}\ns_cmp_lg_u32 s{sT}, {8*opts['dbg']+1}\ns_cbranch_scc1 L_exit")
            for i, k in enumerate((1, 2, 3, 4, 5, 6, 7, 9)):
                p(f"s_sub_u32 s{sT}, s{80+2*k}, s80\nv_mov_b32 v1, s{sT}\nbuffer_store_dword v1, v{vZ}, {srd(sDBG)}, 0 offen offset:{8*i+4}")
            p("s_endpgm")
        p(f"s_lshl_b32 s{sT}, s2, 3\ns_add_u32 s{sT}, s{sT}, s{sWave}\ns_lshl_b32 s{sT}, s{sT}, 6")
        p(f"s_add_u32 s4, s66, 0x4000000\ns_addc_u32 s5, s67, 0\ns_mov_b32 s6, 0x100000\ns_mov_b32 s7, 0x20000\nv_mov_b32 v0, s{sT}")
        for i in range(11):
            p(f"v_mov_b32 v1, s{80+2*i}\nbuffer_store_dword v1, v0, s[4:7], 0 offen offset:{4*i}\nbuffer_store_dword v1, v0, s[4:7], 0 offen offset:{256+4*i}")
    p("L_exit:")
    p("s_endpgm")
    if opts.get('nodma'): p.ins = [x for x in p.ins if not (x.kind == 'dma' and (srd(sK) in x.text or srd(sV) in x.text))]
    def strip(a, b, pred):
        i0 = [i for i, x in enumerate(p.ins) if x.label == a][0]; i1 = [i for i, x in enumerate(p.ins) if x.text.startswith(b) and i > i0][0]
        p.ins = [x for i, x in enumerate(p.ins) if not (i0 < i < i1 and pred(x))]
    ab = opts.get('abl', 0)
    for a, b in (('L_Q_loop', 's_cbranch_scc1 L_Q_loop'), ('L_T_loop', 's_cbranch_scc1 L_T_loop')):
        if ab & 1: strip(a, b, lambda x: x.op == 'v_accvgpr_mov_b32' or x.op == 'v_cvt_pk_bf16_f32')
        if ab & 2: strip(a, b, lambda x: x.kind == 'dma' or x.op.startswith('buffer_store') or x.op == 'buffer_load_dwordx4')
        if ab & 4: strip(a, b, lambda x: x.op == 's_barrier')
        if ab & 8: strip(a, b, lambda x: x.op == 's_waitcnt' and ('lgkmcnt(0)' not in x.text))
        if ab & 16: strip(a, b, lambda x: x.text.startswith('s_add_u32 m0') or x.text.startswith(f's_add_u32 s{sT},') or x.text.startswith(f's_add_u32 s{sT3},'))
        if ab & 32: strip(a, b, lambda x: x.kind == 'ds')
    if opts.get('bprof'):
        a, b = {1: ('L_Q_loop', 'L_A_m2'), 2: ('L_T_loop', 'L_exit'), 3: ('L_A_l1', 'L_A_e13')}[opts['bprof']]
        new = []; on = False; k = 0
        def wrap(x, acc):
            for t in ["s_cselect_b32 s99, 1, 0", "s_memtime s[78:79]".replace("78:79", "2:3") if False else "s_memtime s[100:101]", "s_waitcnt lgkmcnt(0)", f"s_sub_u32 s{acc}, s{acc}, s100"]: new.append(Ins(t))
            new.append(x)
            for t in ["s_memtime s[100:101]", "s_waitcnt lgkmcnt(0)", f"s_add_u32 s{acc}, s{acc}, s100", "s_cmp_lg_u32 s99, 0"]: new.append(Ins(t))
        for x in p.ins:
            if x.label == b or (on and x.text.startswith('s_cbranch_scc1 L_T_loop')): on = False
            if on and x.op == 's_barrier': wrap(x, 82)
            elif on and x.op == 's_waitcnt' and 'vmcnt' in x.text:
                wrap(x, 84 + 2 * min(k, 5)); print("site", min(k, 5), x.text, file=sys.stderr); k += 1
            else: new.append(x)
            if x.label == a: on = True
        p.ins = new
    p.ins += q.ins + side.ins
    p("L_code_end:")
    p("s_endpgm")
    n = p.fix_hazards(verbose=opts.get('verbose', False))
    print("hazard nops inserted:", n, "instrs:", len(p.ins), file=sys.stderr)
    hdr = open('standalone__mha_block_cached__near_ridge.s.ref').read().split('\n')
    hdr = [l for l in hdr if l.startswith(';') and '@launch' not in l and not l.startswith('; Override') and not l.startswith('; grid=ceil')]
    out = "\n".join(hdr) + "\n"
    out += f"; @launch grid=(256,1,1) block=(256,1,1) lds={LDS_BYTES}\n"
    out += '.amdgcn_target "amdgcn-amd-amdhsa--gfx950"\n.text\n'
    out += f".globl {KN}\n.p2align 8\n.type {KN},@function\n" + p.text()
    out += f""".section .rodata,"a"
.p2align 6
.amdhsa_kernel {KN}
  .amdhsa_next_free_vgpr 512
  .amdhsa_next_free_sgpr {102 if PROF else 80}
  .amdhsa_accum_offset 256
  .amdhsa_group_segment_fixed_size 0
  .amdhsa_kernarg_size 64
  .amdhsa_user_sgpr_count 2
  .amdhsa_user_sgpr_kernarg_segment_ptr 1
  .amdhsa_system_sgpr_workgroup_id_x 1
.end_amdhsa_kernel
"""
    return out

if __name__ == "__main__":
    opts = {}
    for a in sys.argv[2:]:
        k, v = a.split('='); opts[k] = int(v)
    open(sys.argv[1], 'w').write(gen(opts))
```

```python
import sys, math, struct
sys.path.insert(0, 'dev')
from asmlib import Prog, Q, Ins

KN = "standalone__mha_block_cached__near_ridge_kernel"
SLOT = 8448; PCS = 1056
K0 = 0; V0 = 4 * SLOT; K1 = 8 * SLOT; V1 = 12 * SLOT; XR = 14 * SLOT; DUMS = 16 * SLOT
EXA = [V0, V1, V1 + 20480, V1 + 40960]
LDS_BYTES = 163840 - 1024
SLAB = 204800; FLG = 256 * SLAB

QR = 0; SS = [80, 120]; NM = 160; LL = 180; ONE = 200; FACS = [218, 220, 246, 248, 250]; TT = 232; WD = 252
XB = 0; XT = 80
TA = 80; RB = 160; RD = 200; SEL = 224; TMP = 232; vOo3 = 222; vOf3 = 223
aACC = 0; aSV = 160; aF = 240
(vLin, vKa0, vKa1, vVa, vDk, vDv, vXd, vWd, vXa0, vXa1, tA, tB, tC, vTl) = range(204, 218)
vOfs, vOfo, vWarm, vWoA, vWoB, vSt, vSt2, vOs2, vOo2, vZ, vPol, t0, vR0, vR1, vR2, vR3 = range(240, 256)

sK, sV, sWQ, sWO, sX, sPO, sPA, sOUT, sDBG, sFL = 4, 8, 12, 16, 20, 24, 60, 72, 76, 68
sWave, sB, sHG, sIt, sMK, sMV, sRnd, sR0, sCur, sHS, sGB = 28, 29, 30, 31, 32, 33, 34, 35, 36, 37, 38
sT, sC, sBL, sPi, sPa, sT2, sT3, sPb, sCol = 39, 40, 41, 42, 43, 44, 45, 46, 47
sRa, sRb, sRet, sRc, sXl, sXg, sPc, sPd, sMsk, sSt, sFo = 48, 49, 50, 52, 53, 54, 55, 56, 57, 58, 59
sDry = 64
sZ, sMK2, sMV2 = 3, 64, 47
OOB = 0x7ff00000

SCALE = math.log2(math.e) / math.sqrt(128.0)
def f2u(x): return struct.unpack('<I', struct.pack('<f', x))[0]
def vr(b, n): return f"v[{b}:{b+n-1}]"
def ar(b, n): return f"a[{b}:{b+n-1}]"
def srd(b): return f"s[{b}:{b+3}]"
def m16(d, a, b, c=None): return f"v_mfma_f32_16x16x32_bf16 {d}, {a}, {b}, {d if c is None else c}"
def mksrd(p, s, lo, off, size):
    p(f"s_add_u32 s{s}, s{lo}, {off}\ns_addc_u32 s{s+1}, s{lo+1}, 0\ns_mov_b32 s{s+2}, {size}\ns_mov_b32 s{s+3}, 0x20000")
def call(p, name): p(f"s_call_b64 s[{sRet}:{sRet+1}], {name}")
def ret(p, name): p(f"s_setpc_b64 s[{sRet}:{sRet+1}] ; ret={name}")
def spread(seq, gaps):
    tot = sum(c for _, c in seq); out = {}; acc = 0
    for it, c in seq:
        g = gaps[min(int((acc + c * 0.5) * len(gaps) / tot), len(gaps) - 1)]
        out.setdefault(g, []).append(it); acc += c
    return out
class Gaps:
    def __init__(self, n=80): self.n = n; self.items = [[] for _ in range(n)]; self.load = [0.0] * n
    def pin(self, g, it, c=1): self.items[g].append(it); self.load[g] += c
    def reserve(self, g, c=1): self.load[g] += c
    def stream(self, seq, gaps):
        tot = sum(c for _, c in seq)
        lo, hi = 0.0, 50.0
        for _ in range(40):
            mid = (lo + hi) / 2
            if sum(max(0.0, mid - self.load[g]) for g in gaps) >= tot: hi = mid
            else: lo = mid
        room = [max(0.0, hi - self.load[g]) for g in gaps]
        cum = 0.0; edges = []
        for r in room: cum += r; edges.append(cum)
        acc = 0.0; k = 0
        for it, c in seq:
            pos = acc + c * 0.5
            while k < len(gaps) - 1 and edges[k] < pos: k += 1
            self.pin(gaps[k], it, c); acc += c
def greedy(order, cap, streams):
    out = {g: [] for g in order}; ptr = [0] * len(streams); where = {}
    for pos, g in enumerate(order):
        room = cap[g]
        while True:
            best = None
            for si, st in enumerate(streams):
                k = ptr[si]
                if k >= len(st['items']) or pos < st['lo']: continue
                it, c, dep = st['items'][k]
                if dep is not None and where.get(dep, 10**9) >= pos and pos < st['hi']: continue
                lag = (pos + 1 - st['lo']) / (st['hi'] + 1 - st['lo']) - k / len(st['items'])
                late = lag * len(st['items'])
                if c > room and late < 1.5 and pos < st['hi']: continue
                if late < -1.0: continue
                if best is None or late > best[0]: best = (late, si)
            if best is None: break
            si = best[1]; it, c, dep = streams[si]['items'][ptr[si]]
            out[g].append(it); where[(si, ptr[si])] = pos; ptr[si] += 1; room -= c
    assert all(ptr[i] == len(st['items']) for i, st in enumerate(streams)), ptr
    return out
SC = 0.4
def split(ops, tag=None):
    out = []
    for o in ops:
        tg = tag
        if isinstance(o, tuple): tg = o[2]; o = o[1]
        for l in o.split("\n"):
            if l == "s_nop 0": continue
            out.append((("VM", l, tg), 1) if l.startswith("buffer_") else (l, SC if l.startswith("s_") else 1))
    return out
FB = lambda m: aF + 4 * (m & 3)
oacc = lambda dt, t: aACC + 4 * (dt * 5 + t)

def gen(opts):
    p = Prog(); side = Prog(); q = Prog()
    PROF = opts.get('prof', 0)
    PST = opts.get('pst', 0)
    def stamp_it(pp, mode, tag, vals):
        if PROF and PST == mode:
            pp("s_cselect_b32 s99, 1, 0")
            for v, i in vals:
                pp(f"s_cmp_lg_u32 s{sIt}, {v}\ns_cbranch_scc1 L_si{tag}{v}"); stamp(pp, i, mode); pp(f"L_si{tag}{v}:")
            pp("s_cmp_lg_u32 s99, 0")
    cnt = [0]
    def stamp(pp, i, mode=0):
        if PROF and PST == mode and opts.get('r0') and i not in (0, 9):
            cnt[0] += 1
            pp(f"s_cselect_b32 s97, 1, 0\ns_cmp_eq_u32 s{sRnd}, 1\ns_cbranch_scc1 L_r0s{cnt[0]}\ns_memtime s[{80+2*i}:{81+2*i}]\ns_waitcnt lgkmcnt(0)")
            pp(f"L_r0s{cnt[0]}:"); pp("s_cmp_lg_u32 s97, 0")
        elif PROF and (PST == mode or i in (0, 9)):
            pp(f"{'s_memrealtime' if opts.get('rt') else 's_memtime'} s[{80+2*i}:{81+2*i}]\ns_waitcnt lgkmcnt(0)")
    def stamp_r(pp, i0, i1, tag):
        if PROF and PST == 0:
            pp(f"s_cmp_eq_u32 s{sRnd}, 0\ns_cbranch_scc0 L_st{tag}a"); stamp(pp, i0); pp(f"s_branch L_st{tag}b\nL_st{tag}a:"); stamp(pp, i1); pp(f"L_st{tag}b:")
    p(f"{KN}:")
    p("s_cmp_ge_u32 s2, 256\ns_cbranch_scc1 L_exit")
    p("s_load_dwordx8 s[56:63], s[0:1], 0\ns_load_dwordx8 s[64:71], s[0:1], 32")
    if PROF:
        for i in range(10): p(f"s_mov_b32 s{80+2*i}, 0")
        p("s_memrealtime s[100:101]")
    stamp(p, 0)
    p(f"v_lshrrev_b32 v1, 6, v0\nv_and_b32 v0, 63, v0\nv_lshlrev_b32 v{vLin}, 4, v0")
    p(f"v_readfirstlane_b32 s{sWave}, v1")
    p(f"s_bfe_u32 s{sB}, s2, 0x20001\ns_lshl_b32 s{sB}, s{sB}, 3\ns_lshr_b32 s{sBL}, s2, 5\ns_add_u32 s{sB}, s{sB}, s{sBL}")
    p(f"s_and_b32 s{sHG}, s2, 1\ns_lshl_b32 s{sHG}, s{sHG}, 2\ns_bfe_u32 s{sT3}, s2, 0x20003\ns_add_u32 s{sHG}, s{sHG}, s{sT3}")
    p(f"s_add_u32 s{sT3}, s{sT3}, s{sBL}")
    p(f"s_mul_i32 s{sT2}, s{sT3}, 205\ns_lshr_b32 s{sT2}, s{sT2}, 10\ns_mul_i32 s{sT2}, s{sT2}, 5\ns_sub_u32 s{sR0}, s{sT3}, s{sT2}")
    p(f"s_lshr_b32 s{sPi}, s{sWave}, 1")
    p(f"v_lshrrev_b32 v1, 4, v0\nv_and_b32 v2, 0xf0, v{vLin}\nv_and_b32 v3, 1, v1\nv_lshrrev_b32 v5, 1, v1")
    p(f"v_lshl_add_u32 v4, v3, 1, v5\nv_mul_u32_u24 v{vXd}, {8*1280}, v4\nv_lshlrev_b32 v4, 4, v3\nv_xor_b32 v4, v4, v2\nv_add_u32 v{vXd}, v{vXd}, v4")
    p(f"v_lshl_add_u32 v4, v5, 2, v3\nv_lshl_add_u32 v{vWd}, v4, 15, v2")
    p(f"s_mul_i32 s{sXl}, s{sWave}, {2*PCS}\ns_mul_i32 s{sXg}, s{sWave}, 1280")
    p(f"s_mul_i32 s{sHS}, s{sWave}, {SLOT}")
    p(f"s_and_b32 s{sT}, s{sWave}, 1\ns_lshl_b32 s{sGB}, s{sT}, 18\ns_lshl_b32 s{sT}, s{sPi}, 8\ns_add_u32 s{sGB}, s{sGB}, s{sT}")
    p(f"s_mul_i32 s{sT2}, s{sB}, 204800\ns_lshl_b32 s{sT3}, s{sHG}, 10\ns_sub_u32 s{sIt}, 5242880, s{sT3}\ns_mov_b32 s{sRnd}, 0")
    p("s_waitcnt lgkmcnt(0)")
    stamp(p, 1, 4)
    mksrd(p, sX, 56, f"s{sT2}", 204800)
    mksrd(p, sWQ, 62, f"s{sT3}", f"s{sIt}")
    call(p, "S_qpx")
    p("s_branch L_setup")
    def xops():
        o = []
        for t in range(5):
            for hh in range(2):
                o.append(f"s_add_u32 m0, s{sXl}, {XR+t*SLOT+hh*PCS}\ns_add_u32 s{sT}, s{sPc}, {(32*t+4*hh)*1280}\nbuffer_load_dwordx4 v{vXd}, {srd(sX)}, s{sT} offen lds")
        return o
    xpre = f"s_lshl_b32 s{sPc}, s{sCur}, 8\ns_add_u32 s{sPc}, s{sPc}, s{sXg}"
    def wops(pa=sPa, add=0):
        return [f"s_add_u32 m0, s{pa}, {pc*PCS}\ns_add_u32 s{sT}, s{sPb}, {(8*(pc&1)+(pc>>1))*8192+add}\nbuffer_load_dwordx4 v{vWd}, {srd(sWQ)}, s{sT} offen lds" for pc in range(8)]
    def wpre(reg, u):
        return f"s_add_u32 s{sPa}, s{sHS}, {reg}\ns_lshl_b32 s{sPb}, s{sCur}, 20\ns_add_u32 s{sPb}, s{sPb}, s{sGB}" + (f"\ns_add_u32 s{sPb}, s{sPb}, {64*8192}" if u else "")
    p("S_qpx:")
    p(f"s_mov_b32 s{sCur}, s{sR0}"); p(xpre)
    for o in xops(): p(o)
    p(wpre(K0, 0))
    for o in wops()[:opts.get('iw', 4)]: p(o)
    ret(p, "S_qpx")
    p("L_setup:")
    stamp(p, 2, 4)
    PR = 4 if opts.get('nat', 1) else 8
    if opts.get('nat', 1): p("v_lshl_add_u32 v4, v3, 1, v5\nv_lshlrev_b32 v4, 1, v4")
    p(f"v_mul_u32_u24 v{vWoA}, {4*1280}, v4\nv_add_u32 v{vWoA}, v{vWoA}, v2\nv_bfe_u32 v6, v0, 3, 1\nv_mul_u32_u24 v6, {128*1280}, v6")
    p(f"v_sub_u32 v{vWoB}, v{vWoA}, v6\nv_add_u32 v{vWoB}, {128*1280}, v{vWoB}\nv_add_u32 v{vWoA}, v{vWoA}, v6")
    p(f"v_mul_u32_u24 v{vWarm}, 1280, v1\nv_add_u32 v{vWarm}, v{vWarm}, v2")
    p(f"s_lshl_b32 s{sT}, s{sBL}, 2\ns_add_u32 s{sT}, s{sT}, s{sWave}\ns_mul_i32 s{sT}, s{sT}, {4*1280}\nv_add_u32 v{vWarm}, s{sT}, v{vWarm}")
    mksrd(p, sOUT, 66, f"s{sT2}", 204800)
    p(f"s_mov_b32 s{sDBG}, s68\ns_mov_b32 s{sDBG+1}, s69\ns_mov_b32 s{sDBG+2}, 256\ns_mov_b32 s{sDBG+3}, 0x20000")
    p("s_mov_b32 s66, s70\ns_mov_b32 s67, s71")
    p(f"s_lshl_b32 s{sT}, s{sB}, 3\ns_add_u32 s{sT}, s{sT}, s{sHG}\ns_lshl_b32 s{sT3}, s{sT}, 19\ns_lshl_b32 s{sPa}, s{sPi}, 17\ns_add_u32 s{sT3}, s{sT3}, s{sPa}")
    mksrd(p, sK, 58, f"s{sT3}", 131072); mksrd(p, sV, 60, f"s{sT3}", 131072)
    p(f"s_mul_i32 s{sT3}, s{sT}, {SLAB}"); mksrd(p, sPO, 66, f"s{sT3}", SLAB)
    p(f"s_lshl_b32 s{sT2}, s{sT2}, 3"); mksrd(p, sPA, 66, f"s{sT2}", 8 * SLAB)
    p(f"s_lshl_b32 s{sT2}, s{sB}, 10\ns_add_u32 s{sT2}, s{sT2}, {FLG}"); mksrd(p, sFL, 66, f"s{sT2}", 1024)
    p(f"s_mul_i32 s{sT2}, s{sHG}, {512*1280}"); mksrd(p, sWO, 64, f"s{sT2}", 512 * 1280)
    if PROF: p("s_mov_b32 s65, s100")
    p(f"s_mov_b32 s{sC}, {f2u(SCALE)}\ns_mov_b32 s{sMsk}, 0xffff0000")
    p(f"v_bfe_u32 v4, v0, 2, 2\nv_lshl_add_u32 v4, v4, 1, v3\nv_mul_u32_u24 v{vTl}, {PCS}, v4\nv_lshl_add_u32 v{vTl}, v5, 9, v{vTl}")
    NAT = opts.get('nat', 1); vTn = 219 if NAT else vTl
    p(f"v_and_b32 v4, 0x30, v{vLin}")
    if NAT: p(f"v_lshrrev_b32 v6, 1, v4\nv_add_u32 v{vTn}, v{vTl}, v6")
    p(f"v_add_u32 v{vTl}, v{vTl}, v4")
    HS = 32 if NAT else 8
    p(f"v_and_b32 v4, 3, v0\nv_bfe_u32 v6, v0, 2, 1\nv_lshl_add_u32 v4, v4, 1, v6\nv_mul_u32_u24 v7, {PCS}, v4\nv_bfe_u32 v6, v0, 3, 1\nv_lshl_add_u32 v7, v6, 9, v7")
    p(f"v_xor_b32 v6, 1, v1\nv_lshl_add_u32 v8, v6, 4, v7\nv_add_u32 v8, 256, v8\nv_lshl_add_u32 v7, v1, 4, v7")
    p(f"s_mul_i32 s{sMK}, s{sPi}, {K1}")
    p(f"v_add_u32 v{vKa0}, s{sMK}, v7\nv_add_u32 v{vKa1}, s{sMK}, v8\ns_add_u32 s{sMV}, s{sMK}, {V0}\nv_add_u32 v{vVa}, s{sMV}, v{vTn}")
    p(f"s_and_b32 s{sT}, s{sWave}, 1\ns_mul_i32 s{sT2}, s{sT}, {4*PCS}\ns_add_u32 s{sMK}, s{sMK}, s{sT2}\ns_add_u32 s{sMV}, s{sMV}, s{sT2}")
    p(f"v_add_u32 v{vXa0}, {XR}, v7\nv_add_u32 v{vXa1}, {XR}, v8")
    p(f"s_cmp_eq_u32 s{sT}, 0\ns_cbranch_scc1 L_x0")
    p(f"v_add_u32 v{vXa0}, {XR+2*SLOT}, v8\nv_add_u32 v{vXa1}, {XR+3*SLOT}, v7")
    p("L_x0:")
    p(f"s_mul_i32 s{sT2}, s{sT}, 20480\ns_lshl_b32 s{sT3}, s{sPi}, 11\ns_add_u32 s{sT2}, s{sT2}, s{sT3}\nv_add_u32 v{vSt}, s{sT2}, v{vLin}")
    p(f"s_lshr_b32 s{sT2}, s{sHG}, 2\ns_and_b32 s{sT3}, s{sHG}, 3\ns_lshl_b32 s{sT3}, s{sT3}, 2\ns_add_u32 s{sT3}, s{sT3}, s{sWave}")
    p(f"s_mul_i32 s{sPa}, s{sT2}, 20480\ns_lshl_b32 s{sPb}, s{sT3}, 8\ns_add_u32 s{sPa}, s{sPa}, s{sPb}\ns_mov_b32 s{sPb}, {SLAB}")
    p(f"v_mul_lo_u32 v{vOfs}, s{sPb}, v1\nv_add3_u32 v{vOfs}, v{vOfs}, v2, s{sPa}")
    p(f"s_mul_i32 s{sPa}, s{sT2}, {80*1280}\ns_lshl_b32 s{sPb}, s{sT3}, 4\ns_add_u32 s{sPa}, s{sPa}, s{sPb}")
    if NAT: p(f"s_lshl_b32 s{sPb}, s{sWave}, 3\ns_sub_u32 s{sPa}, s{sPa}, s{sPb}")
    p(f"v_and_b32 v4, 15, v0\nv_lshl_add_u32 v6, v5, 4, v4\nv_mul_u32_u24 v{vOfo}, 1280, v6\nv_lshl_add_u32 v{vOfo}, v3, {5 if NAT else 3}, v{vOfo}\nv_add_u32 v{vOfo}, s{sPa}, v{vOfo}")
    p(f"v_mov_b32 v6, {OOB}\nv_cmp_gt_u32 s[{sT2}:{sT2+1}], 32, v0\nv_cndmask_b32 v{vOf3}, v6, v{vOfo}, s[{sT2}:{sT2+1}]")
    p(f"v_and_b32 v6, 1, v0\nv_lshlrev_b32 v6, 4, v6\nv_mov_b32 v9, 0x3f80\nv_lshlrev_b32 v6, v6, v9\nv_lshrrev_b32 v4, 1, v4")
    for r in range(8):
        p(f"v_cmp_eq_u32 s[{sT2}:{sT2+1}], {r}, v4\nv_cndmask_b32 v{SEL+r}, 0, v6, s[{sT2}:{sT2+1}]")
    for r in range(4): p(f"v_mov_b32 v{ONE+r}, 0x3f803f80")
    p(f"v_mov_b32 v{vZ}, 0\nv_mov_b64 {vr(TT,2)}, 0\nv_mov_b64 {vr(TT+2,2)}, 0")
    zacc = [f"v_mfma_f32_32x32x16_bf16 {vr(16*i,16)}, {vr(TT,4)}, {vr(TT,4)}, 0" for i in range(10)]
    p(f"s_lshl_b32 s{sT}, s{sHG}, 3\ns_add_u32 s{sT}, s{sT}, s{sWave}\ns_cmp_eq_u32 s{sT}, 1\ns_cbranch_scc1 L_fi")
    p("L_fib:")
    if opts.get('cw', 1):
        p(f"s_getpc_b64 s[{sT2}:{sT2+1}]")
        p("L_pc:")
        p(f"s_sub_u32 s{sT2}, s{sT2}, L_pc-{KN}\ns_subb_u32 s{sT2+1}, s{sT2+1}, 0")
        p(f"s_lshr_b32 s{sT}, s2, 3\ns_lshl_b32 s{sT}, s{sT}, 1\ns_add_u32 s{sT}, s{sT}, s{sPi}\ns_lshl_b32 s{sT}, s{sT}, 10\ns_min_u32 s{sT}, s{sT}, L_code_end-{KN}-1024")
        p(f"v_add_u32 v196, s{sT}, v{vLin}\ns_bitcmp1_b32 s{sWave}, 0\ns_cbranch_scc1 L_ncw")
        p(f"global_load_dwordx4 {vr(WD,4)}, v196, s[{sT2}:{sT2+1}]")
        p("L_ncw:")
    side("L_fi:")
    side(f"buffer_store_dwordx4 {vr(TT,4)}, v{vLin}, {srd(sFL)}, 0 offen sc1\ns_waitcnt vmcnt(0)")
    side(f"s_lshl_b32 s{sT}, s{sB}, 3\nv_mov_b32 v196, s{sT}\nv_mov_b32 v197, 1\ns_mov_b64 exec, 1")
    side(f"buffer_atomic_add v197, v196, {srd(sDBG)}, 0 offen sc1\ns_mov_b64 exec, -1\ns_branch L_fib")

    vRx = 222
    def adv(d, a, sc): return f"v_add_u32 v{d}, s{sc}, v{a}" if not opts.get('krot', 0) else f"v_xad_u32 v{d}, v{a}, v{vRx}, s{sc}\nv_xor_b32 v{d}, v{d}, v{vRx}"
    KROT = opts.get('krot', 0)
    if KROT == 1: p(f"s_lshr_b32 s{sT}, s2, 3\ns_add_u32 s{sT}, s{sT}, s2\ns_lshl_b32 s{sT2}, s{sPi}, 2\ns_add_u32 s{sT}, s{sT}, s{sT2}\ns_and_b32 s{sT}, s{sT}, 7")
    elif KROT == 2: p(f"s_lshr_b32 s{sT}, s2, 3\ns_and_b32 s{sT}, s{sT}, 7")
    else: p(f"s_mov_b32 s{sT}, 0")
    p(f"s_lshl_b32 s{sT}, s{sT}, 14\nv_mov_b32 v{vRx}, s{sT}")
    def kv_ops(isk, tile4):
        base, vo, sr = (sMK, vDk, sK) if isk else (sMV, vDv, sV)
        slot = tile4 & 3 if isk else (tile4 + 2) & 3
        o = [f"s_add_u32 m0, s{base}, {slot*SLOT+32*j}\ns_nop 0\nbuffer_load_dwordx4 v{vo}, {srd(sr)}, 0 offen offset:{1024*j} nt lds" for j in range(4)]
        o[-1] += "\n" + adv(vo, vo, sSt)
        return o

    stamp(p, 3, 4)
    if PST == 4:
        p("s_waitcnt vmcnt(26)"); stamp(p, 4, 4); p("s_waitcnt vmcnt(17)"); stamp(p, 5, 4); p("s_waitcnt vmcnt(9)"); stamp(p, 6, 4); p("s_waitcnt vmcnt(0)"); stamp(p, 7, 4)
    p("L_round:")
    kvinit = f"s_and_b32 s{sT}, s{sWave}, 1\ns_lshl_b32 s{sT}, s{sT}, 12\nv_add3_u32 v{vDv}, s{sT}, v{vLin}, v{vRx}\nv_bfe_u32 v{t0}, v{vLin}, 8, 1\nv_lshlrev_b32 v{t0}, 4, v{t0}\nv_xor_b32 v{vDk}, v{t0}, v{vDv}"
    kvadv = "\n".join(f"s_add_u32 s{s_}, s{s_}, 262144\ns_addc_u32 s{s_+1}, s{s_+1}, 0" for s_ in (sK, sV))
    p(kvinit)
    p(f"s_mul_i32 s{sT}, s{sPi}, {2*SLOT}\nv_add_u32 v{tA}, s{sT}, v{vTl}\nv_add_u32 v{tB}, {K1}, v{tA}\nv_add_u32 v{tC}, {V0}, v{tA}")
    p(f"s_add_u32 s{sRa}, s{sHS}, {K0}\ns_add_u32 s{sRb}, s{sHS}, {K1}\ns_add_u32 s{sRc}, s{sHS}, {V0}\ns_mov_b32 s{sIt}, 0")
    p(f"v_mov_b64 {vr(TT,2)}, 0\nv_mov_b64 {vr(TT+2,2)}, 0")
    for z in zacc: p(z)
    xb = lambda t, j: 16 * t + 4 * j
    xt = lambda t, j: 80 + 8 * t + 4 * (j - 2)
    qacc = lambda nt, t: 32 * t + 4 * nt
    for r in range(8): p(f"v_accvgpr_write_b32 a{aF+r}, 0")
    for t in range(5):
        for r in range(4): p(f"v_accvgpr_write_b32 a{xb(t,3)+r}, 0")
    def xread(t, j): return f"ds_read_b128 {ar(xb(t,j) if j < 2 else xt(t,j),4)}, v{[vXa0,vXa1][t&1]} offset:{(t>>1)*SLOT+64*j}"
    p(f"s_cmp_eq_u32 s{sRnd}, 1\ns_cbranch_scc1 L_rw2")
    p(wpre(K0, 0))
    for o in wops()[opts.get('iw', 4):]: p(o)
    p("s_waitcnt vmcnt(0)\ns_barrier")
    for j in range(4):
        for t in range(5): p(xread(t, j))
        if j == 1: p("s_waitcnt lgkmcnt(0)")
    for o in wops(sRb, 64 * 8192): p(o)
    p("L_rw2:")
    p("s_waitcnt lgkmcnt(0)\ns_barrier")
    stamp_r(p, 1, 4, "q"); stamp(p, 1, 1)
    HQ = 2
    NS = opts.get('ns', 3)
    GO = opts.get('go', 1); GP = opts.get('gp', 1); GS = opts.get('gs', 1)
    def gunit(rdtxt, mf, streams, vm=None, T=None):
        lg = Q(p, "lgkmcnt", 15); tok = {0: 0, 1: 0}
        G = Gaps()
        for m in range(14):
            for e in range(2): G.pin(5 * m + 4 + GO + e, ("RD", m + 4, e))
        for m in range(2, 16):
            if not (GP and m % 2 and m > 4): G.reserve(5 * m - 1)
        for m in (2, 3):
            for e in range(2): G.pin(m - 2, ("RD", m, e))
        for seq, gaps in streams: G.stream(seq, gaps)
        def rd(m, e): lg.room(1); p(rdtxt(m, e)); tok[m] = lg.issue()
        isv = lambda o: isinstance(o, str) and o.startswith('v_')
        for m in range(16):
            lg.wait(max(tok[m], tok.get(m + 1, 0)) if GP and m % 2 == 0 and m >= 4 else tok[m])
            for t in range(5):
                p(mf(m, t))
                its = G.items[5 * m + t]
                if GS:
                    k = next((i for i, o in enumerate(its) if (isinstance(o, str) and o.startswith('s_')) or (isinstance(o, tuple) and o[0] == 'VM')), None)
                    if k and isinstance(its[k], str): its = [its[k]] + its[:k] + its[k+1:]
                for o in its:
                    if isinstance(o, str): p(o)
                    elif o[0] == "RD": rd(o[1], o[2])
                    elif o[0] == "DS": lg.room(1); p(o[1]); lg.issue()
                    elif o[0] == "W": vm.wait(T.get(o[1], 0))
                    else:
                        p(o[1])
                        if vm:
                            tk = vm.issue()
                            if o[2]: T[o[2]] = tk
    def qunit(u, dm, fill, endw, span=76):
        def rdtxt(m, e):
            f = m - HQ; ks = f >> 3; nt = f & 7
            return f"ds_read_b64_tr_b16 {ar(FB(m)+2*e,2)}, v{[tA,tB][u]} offset:{ks*SLOT+e*256+(nt>>1)*64+(nt&1)*8}"
        def mf(m, t):
            f = m - HQ
            j = (2 * u + (f >> 3)) & 3 if f >= 0 else (2 * u - 1) & 3
            return m16(vr(qacc(f & 7, t), 4), ar(FB(m), 4), ar(xb(t, j), 4))
        gunit(rdtxt, mf, [(split(dm), list(range(0, span)))] + fill)
        p(endw)
    movs = [([(f"v_accvgpr_mov_b32 a{xb(t,j)+r}, a{xt(t,j)+r}", 1) for j in (2, 3) for t in range(5) for r in range(4)], list(range(0, 79)))]
    xrd = [([(("DS", xread(t, j)), 1) for j in (2, 3, 0, 1) for t in range(5)], list(range(1, 70)))]
    rot = (f"v_mov_b32 v{t0}, v{tC}\nv_mov_b32 v{tC}, v{tB}\nv_mov_b32 v{tB}, v{tA}\nv_mov_b32 v{tA}, v{t0}\n"
           f"s_mov_b32 s{sT}, s{sRc}\ns_mov_b32 s{sRc}, s{sRb}\ns_mov_b32 s{sRb}, s{sRa}\ns_mov_b32 s{sRa}, s{sT}")
    WQ = 0
    vPv, vPk, vWv, vWk = 221, 247, 218, 220
    LR = 160; aSR = 120
    kvs = []
    for i in range(10):
        kvs += [(f"v_accvgpr_write_b32 a{aSR+4*i+r}, v{LR+4*i+r}", 1) for r in range(4)]
        if i < 8: kvs.append((("VM", f"buffer_load_dwordx4 {vr(LR+4*i,4)}, v{vPv}, {srd(sV)}, {'s%d' % sSt if i >= 4 else '0'} offen offset:{1024*(i&3)} nt", None), 1.5))
        else: kvs.append((("VM", f"buffer_load_dwordx4 {vr(LR+4*i,4)}, v{vPk}, {srd(sK)}, 0 offen offset:{1024*(i&1)} nt", None), 1.5))
    kvs += [(f"v_xor_b32 v{vPv}, 0x4000, v{vPv}", 1), (f"v_add_u32 v{vPk}, 0x800, v{vPk}", 1)]
    p(f"v_mov_b32 v{vPv}, {OOB}\nv_mov_b32 v{vPk}, {OOB}\ns_movk_i32 s{sSt}, 0x2000")
    p("L_Q_loop:")
    stamp_it(p, 1, "q", [(0, 2), (2, 3)])
    p(f"s_add_u32 s{sCur}, s{sCur}, 1\ns_cmp_ge_u32 s{sCur}, 5\ns_cselect_b32 s{sCur}, 0, s{sCur}")
    p(xpre); p(f"s_lshl_b32 s{sPb}, s{sCur}, 20\ns_add_u32 s{sPb}, s{sPb}, s{sGB}")
    p(f"s_cmp_eq_u32 s{sIt}, 3\ns_cselect_b32 s{sPa}, 0x30000, s{sRa}")
    p(f"s_cmp_eq_u32 s{sIt}, 2\ns_cbranch_scc1 L_Q_en")
    p("L_Q_enb:")
    side("L_Q_en:"); side(f"v_mov_b32 v{vPv}, v{vDv}\nv_xor_b32 v{vPk}, 0x6000, v{vDk}\ns_branch L_Q_enb")
    qunit(0, xops() + wops(sRc), movs, f"s_waitcnt vmcnt(8) lgkmcnt(0)\ns_barrier", span=76)
    qunit(1, wops(sPa, 64 * 8192), xrd + [(kvs, list(range(0, opts.get('kvspan', 60))))], rot + f"\ns_add_u32 s{sIt}, s{sIt}, 1\ns_cmp_lt_u32 s{sIt}, 4\ns_waitcnt vmcnt(18) lgkmcnt(0)\ns_barrier")
    p("s_cbranch_scc1 L_Q_loop")
    stamp(p, 4, 1)
    p(f"s_add_u32 s{sPa}, s{sHS}, {XR}\ns_mul_i32 s{sT}, s{sPi}, {2*SLOT}\ns_add_u32 s{sT}, s{sT}, {XR}\nv_add_u32 v{tB}, s{sT}, v{vTl}")
    p(f"v_add_u32 v{vWv}, s{sMV}, v{vLin}\nv_add_u32 v{vWk}, s{sMK}, v{vLin}\nv_xor_b32 v{vDv}, 0x8000, v{vDv}")
    kpre = kv_ops(True, 0) + kv_ops(True, 1) + kv_ops(True, 2) + [adv(vDk, vDk, sSt)]
    def kvw(st, i):
        src = ar(aSR + 4 * i, 4) if st == 0 else vr(LR + 4 * i, 4)
        if i < 8: return f"ds_write_b128 v{vWv}, {src} offset:{((2*st+(i>>2)+2)&3)*SLOT+(i&3)*PCS}"
        return f"ds_write_b128 v{vWk}, {src} offset:{3*SLOT+(2*st+(i&1))*PCS}"
    NPF = opts.get('npf', 0); pfm = " nt" if opts.get('pfnt', 1) else ""
    pf = []
    for k in range(NPF):
        for isk in (True, False):
            for jj in range(4):
                pf.append((f"s_mov_b32 s{sT3}, {(3+k if False else 4+k)*8192}\n" if jj == 0 and isk else "") + f"buffer_load_dwordx4 {vr(WD,4)}, v{vPv}, {srd(sK if isk else sV)}, s{sT3} offen offset:{1024*jj}{pfm}")
    q4 = len(pf) // 4
    p(f"v_mov_b32 v{vPv}, {OOB}")
    kw = [(("DS", kvw(st, i)), 2) for st in range(2) for i in (8, 9)]
    qunit(0, wops(sPa, 64 * 8192) + kpre[:8], movs, "s_waitcnt vmcnt(8) lgkmcnt(0)\ns_barrier")
    qunit(1, kpre[8:] + pf[:q4], [(kw, list(range(0, 60)))], f"s_waitcnt vmcnt({8+q4}) lgkmcnt(0)\ns_barrier")
    stamp(p, 5, 1)
    vw = [kvw(st, i) for st in range(2) for i in range(8)]
    for m in range(HQ):
        for t in range(5): p(m16(vr(qacc(6 + m, t), 4), ar(FB(m), 4), ar(xb(t, 3), 4)))
    for i in range(80):
        p(f"v_pk_mul_f32 {vr(2*i,2)}, {vr(2*i,2)}, s[{sC}:{sC+1}] op_sel_hi:[1,0]")
        if i >= 2: p(f"v_cvt_pk_bf16_f32 v{i-2}, v{2*i-4}, v{2*i-3}")
        if i % 5 == 0:
            if i == 40: p("s_waitcnt lgkmcnt(0)")
            p(vw[i // 5])
        if i % 10 == 3 and i // 10 < q4: p(pf[q4 + i // 10])
    p("v_cvt_pk_bf16_f32 v78, v156, v157\nv_cvt_pk_bf16_f32 v79, v158, v159\ns_waitcnt lgkmcnt(0)")
    for r in range(0, 20, 2): p(f"v_mov_b64 {vr(NM+r,2)}, 0")
    stamp(p, 6, 1); stamp(p, 7, 1)
    stamp_r(p, 2, 5, "a")

    HB = 2
    DRYN = {"m2": "L_A_m1", "m1": "L_A_z0", "z0": "L_dry_done", "l1": "L_A_l2", "l2": "L_dry_done", "l3": "L_A_l0", "l0": "L_dry_done", "e13": "L_A_e14", "e15": "L_dry_done"}
    def sm_ops(b):
        seq = []
        for k in range(43):
            if k < 40: seq.append((f"v_exp_f32 v{b+k}, v{b+k}", 2))
            if k >= 4 and k % 2 == 0:
                i = (k - 4) // 2
                seq.append((f"v_cvt_pk_bf16_f32 v{b+8*(i>>2)+(i&3)}, v{b+2*i}, v{b+2*i+1}", 1))
        return seq
    W1 = list(range(24, 80)) + list(range(0, 9))
    def oops(vo): return [f"s_add_u32 m0, s{sPa}, {pc*PCS}\ns_add_u32 s{sT}, s{sPb}, {(PR*(pc&1)+(pc>>1))*1280}\nbuffer_load_dwordx4 v{vo}, {srd(sWO)}, s{sT} offen lds" for pc in range(8)]
    r0 = xops() + wops(sPa) + wops(sRa, 64 * 8192)
    r0[0] = f"s_add_u32 s{sGB}, s{sGB}, 512\ns_mov_b32 s{sCur}, s{sR0}\n{xpre}\n{wpre(K0, 0)}\ns_add_u32 s{sRa}, s{sHS}, {K1}\n" + r0[0]
    r0s = [r0[4*i:4*i+4] for i in range(6)] + [r0[24:26], [], []]
    wm = [f"s_mov_b32 s{sT}, {(k>>2)*256+(k&3)*128*1280}\nbuffer_load_dwordx4 {vr(WD,4)}, v{vWarm}, {srd(sWO)}, s{sT} offen" for k in range(20)]
    o0 = oops(vWoA); o1 = oops(vWoA)
    o0[0] = f"s_mul_i32 s{sGB}, s{sWave}, {32*1280}\ns_add_u32 s{sPa}, s{sHS}, {K0}\ns_mov_b32 s{sPb}, s{sGB}\n" + o0[0]
    o1[0] = f"s_add_u32 s{sPa}, s{sHS}, {K1}\ns_add_u32 s{sPb}, s{sGB}, {256*1280}\n" + o1[0]
    r1s = [wm[0:4], wm[4:7], wm[7:10], wm[10:13], wm[13:16], wm[16:20], [], o0, o1]
    def site(k):
        p(f"s_cmp_eq_u32 s{sRnd}, 0\ns_cbranch_scc0 L_s{k}a")
        for o in r0s[k]: p(o)
        p(f"L_s{k}b:")
        side(f"L_s{k}a:")
        for o in r1s[k]: side(o)
        side(f"s_branch L_s{k}b")
    POS = []
    for m in range(16):
        POS += [(m, t) for t in range(5)]
        if 3 <= m < 8: POS.append(('L', m - 3))
    NPOS = len(POS); first_of = {m: POS.index((m, 0)) for m in range(16)}
    PW = 1
    cap = {x: 2 for x in range(NPOS)}; pins = {x: [] for x in range(NPOS)}
    for m in range(2, 16):
        if m < 4 or m % 2 == 0: cap[first_of[m] - 1] -= 1
    if opts.get('hd', 1):
        for m in (2, 3):
            for e in range(2): pins[m - 2].append(('RD', m, e)); cap[m - 2] -= 1
    for m in range(14):
        x = POS.index((m, 4))
        if x + 1 < NPOS and POS[x + 1][0] == 'L' and cap[x + 1] == 1 and m + 4 >= 10: x += 1
        for e in range(2 if m + 4 < 10 else 1):
            while cap[x] < 1: x += 1
            pins[x].append(('RD', m + 4, e)); cap[x] -= 1
    XC = opts.get('xc', 20); XP = first_of[11] - 1
    while cap[XC] < 2: XC += 1
    cap[XC] = 0
    while cap[XP] < 1: XP += 1
    cap[XP] -= 1
    cap[NPOS - 1] -= 1
    order = list(range(XC + 1, NPOS)) + list(range(0, XC)); n1 = NPOS - XC - 1
    EH = opts.get('eh', 8)
    cand = [g for g in order[:n1 + EH] if cap[g] == 2]
    assert len(cand) >= 40, len(cand)
    skip = len(cand) - 40
    drop = {cand[min(len(cand) - 1, int((i + 0.75) * len(cand) / max(skip, 1)))] for i in range(skip)}
    eg = [g for g in cand if g not in drop][:40]
    assert len(eg) == 40
    tmpl = {x: [] for x in range(NPOS)}; pos = {g: i for i, g in enumerate(order)}
    for k, g in enumerate(eg): tmpl[g].append(('EX', k)); cap[g] = 0
    def place(it, lo, hi):
        g = next((g for g in order[lo:hi + 1] if cap[g] >= 1), None)
        if g is None:
            g = order[hi]; print("overflow", it, file=sys.stderr)
        tmpl[g].append(it); cap[g] -= 1
        return pos[g]
    last = 0
    for i in range(20): last = place(('CV', i), max(last, pos[eg[2 * i + 1]] + 1), n1 + 8 + (i >> 2))
    mreg = [8 * t + r for t in range(5) for r in range(4)] + [8 * t + 4 + r for t in range(5) for r in range(4)]
    mx = [('MX', TT, None, mreg[0:3]), ('MX', TT + 1, None, mreg[3:6])] + [('MX', TT + ((i >> 1) & 1), 1, mreg[i:i+2]) for i in range(6, 40, 2)] + [('MF',)]
    last = pos[first_of[14] + 3]; MXW = set()
    for i, o in enumerate(mx):
        last = place(o, max(last, n1 + 8 + ((i - 9) >> 1) if i >= 9 else 0), len(order) - 1)
    free = [g for g in range(1, NPOS - 1) for _ in range(max(cap[g], 0))]
    fg = sorted(set(free)); assert len(fg) >= 8, fg
    sel = [fg[int((i + 0.3) * len(fg) / 8)] for i in range(8)]
    for i, g in enumerate(sel):
        assert i == 0 or g - 1 >= sel[i - 1] + 1 or True
        pins[g - 1 if (i == 0 or g - 1 > sel[i - 1]) else g].insert(0, ('DM', 2 * i)); tmpl[g].append(('DM', 2 * i + 1)); cap[g] -= 1
    tmpl[XC] = ['CHECK']; tmpl[XP].append('PT2')
    print("A template: XC", XC, "left", sum(max(c, 0) for c in cap.values()), "over", sum(-min(c, 0) for c in cap.values()), file=sys.stderr)
    def abody(tag, nm, held=True, pv=True, qk=True, zc=False, first=False, dma=True, smt=True, smh=True, endw=f"vmcnt({opts.get('endn', 6)})", bar=True, sites={}, fill={}):
        Sn = SS[nm & 1]; Sn1 = SS[(nm + 1) & 1]
        lg = Q(p, "lgkmcnt", 15); tok = {0: 0, 1: 0}
        p(f"L_A_{tag}:")
        slot = (nm + 2) & 3
        ms = ([0, 1] if held else []) + (list(range(2, 10)) + ['L'] if pv else []) + (list(range(10, 16)) if qk else [])
        done = set()
        def rd(m, e):
            if (m, e) in done or (m < 10 and not pv) or (m >= 10 and not qk): return
            done.add((m, e)); lg.room(1)
            if m < 10:
                dt = m - 2
                p(f"ds_read_b64_tr_b16 {ar(FB(m)+2*e,2)}, v{vVa} offset:{slot*SLOT+e*256+(dt>>1)*64+(dt&1)*HS}")
            else:
                k = m - 10
                p(f"ds_read_b128 {ar(FB(m),4)}, v{[vKa0,vKa1][k>>2]} offset:{slot*SLOT+64*(k&3)}")
            tok[m] = lg.issue()
        dm = []
        if dma:
            for o in kv_ops(True, nm + 1) + (kv_ops(False, nm + 3) if dma != 'k' else []):
                l = o.replace("s_nop 0\n", "").split("\n"); dm += [l[0], "\n".join(l[1:])]
        for m in (() if pv and opts.get('hd', 1) else (2, 3) if pv else (10, 11)):
            for e in range(2 if pv else 1): rd(m, e)
        for x, (m, t) in enumerate(POS):
            if m in ms:
                if m == 'L': p(m16(vr(LL + 4 * t, 4), vr(ONE, 4), vr(Sn + 8 * t, 4), '0' if zc else None))
                else:
                    if t == 0: lg.wait(max(tok[m], tok.get(m + 1, 0)) if PW and m % 2 == 0 and m >= 4 else tok[m])
                    if m < 2: p(m16(vr(Sn1 + 8 * t + 4, 4), ar(FB(m), 4), vr(QR + 16 * t + 4 * (2 + m), 4)))
                    elif m < 10: p(m16(ar(oacc(m - 2, t), 4), ar(FB(m), 4), vr(Sn + 8 * t, 4), '0' if zc else None))
                    else:
                        k = m - 10
                        p(m16(vr(Sn + 8 * t + 4 * (k >> 2), 4), ar(FB(m), 4), vr(QR + 16 * t + 4 * (k & 3), 4), vr(NM + 4 * t, 4) if k & 3 == 0 else None))
            b = Sn1 if x > XC else Sn; on = smh if x > XC else smt
            for o in pins[x] + tmpl[x]:
                if o == 'CHECK':
                    if first: call(p, "S_first")
                    elif smh:
                        p(f"v_cmp_lt_f32 vcc, 0x41000000, v{TT+2}\ns_cbranch_vccnz L_rr{tag}")
                        p(f"L_rb{tag}:")
                        side(f"L_rr{tag}:"); call(side, f"S_rare{(nm+1)&1}"); side(f"s_branch L_rb{tag}")
                elif o == 'PT2':
                    if smh and not first:
                        p(f"s_cbranch_vccnz L_p2{tag}")
                        p(f"L_pb{tag}:")
                        side(f"L_p2{tag}:"); call(side, "S_scale"); side(f"s_branch L_pb{tag}")
                elif o[0] == 'RD': rd(o[1], o[2])
                elif o[0] == 'EX':
                    if on: p(f"v_exp_f32 v{b+o[1]}, v{b+o[1]}")
                elif o[0] == 'CV':
                    i = o[1]
                    if on: p(f"v_cvt_pk_bf16_f32 v{b+8*(i>>2)+(i&3)}, v{b+2*i}, v{b+2*i+1}")
                elif o[0] == 'MX':
                    if (qk if x > XC else (smh and not first)): p(f"v_max3_f32 v{o[1]+2}, " + ", ".join(([f"v{o[1]+2}"] if o[2] else []) + [f"v{(Sn if x > XC else Sn1)+r}" for r in o[3]]))
                elif o[0] == 'MF':
                    if smh and not first: p(f"v_max_f32 v{TT+2}, v{TT+2}, v{TT+3}")
                elif o[0] == 'DM':
                    if o[1] < len(dm):
                        if opts.get('midn') and o[1] % 2 == 1 and tag[0] == 'l' and (o[1] >> 1) % opts.get('mids', 4) == 0: p(f"s_waitcnt vmcnt({opts['midn']})")
                        p(dm[o[1]])
            if x in sites: site(sites[x])
            for o in fill.get(x, []): p(o)
        if bar and tag[0] == 'l' and opts.get('end0', 4) < opts.get('endn', 6):
            p(f"s_cmp_eq_u32 s{sRnd}, 1\ns_cbranch_scc1 L_ew{tag}\ns_waitcnt vmcnt({opts.get('end0', 4)})")
            p(f"L_ew{tag}:")
        if bar: p(f"s_waitcnt {endw} lgkmcnt(0)")
    def xl(op, a, b):
        return (f"v_mov_b32 v{b}, v{a}\nv_permlane16_swap_b32 v{a}, v{b}\n{op} v{a}, v{a}, v{b}\n"
                f"v_mov_b32 v{b}, v{a}\nv_permlane32_swap_b32 v{a}, v{b}\n{op} v{a}, v{a}, v{b}")
    def shiftsub(name, n, first):
        q(f"{name}:")
        for t in range(5):
            b = n + 8 * t
            q(f"v_max3_f32 v{TT}, v{b}, v{b+1}, v{b+2}\nv_max3_f32 v{TT}, v{TT}, v{b+3}, v{b+4}\nv_max3_f32 v{TT}, v{TT}, v{b+5}, v{b+6}\nv_max_f32 v{TT}, v{TT}, v{b+7}")
            q(xl("v_max_f32", TT, TT + 1))
            if not first: q(f"v_max_f32 v{TT}, 0, v{TT}\nv_exp_f32 v{FACS[t]}, -v{TT}")
            for r in range(8): q(f"v_sub_f32 v{b+r}, v{b+r}, v{TT}")
            for r in range(4): q(f"v_sub_f32 v{NM+4*t+r}, v{NM+4*t+r}, v{TT}")
        ret(q, name)
    shiftsub("S_rare0", SS[0], False); shiftsub("S_rare1", SS[1], False); shiftsub("S_first", SS[0], True)
    q("S_scale:")
    for dt in range(8):
        for t in range(5):
            a = oacc(dt, t)
            for r in range(4): q(f"v_accvgpr_read_b32 v{TT+4+r}, a{a+r}")
            for r in (0, 2): q(f"v_pk_mul_f32 {vr(TT+4+r,2)}, {vr(TT+4+r,2)}, {vr(FACS[t],2)} op_sel_hi:[1,0]")
            for r in range(4): q(f"v_accvgpr_write_b32 a{a+r}, v{TT+4+r}")
    for t in range(5):
        for r in (0, 2): q(f"v_pk_mul_f32 {vr(LL+4*t+r,2)}, {vr(LL+4*t+r,2)}, {vr(FACS[t],2)} op_sel_hi:[1,0]")
    ret(q, "S_scale")
    stamp(p, 1, 3); stamp(p, 1, 5)
    abody("m2", 2, held=False, pv=False, smt=False, smh=False, dma=False, endw=f"vmcnt({4+2*q4})"); p("s_barrier")
    abody("m1", 3, pv=False, smt=False, first=True, dma='k', endw=f"vmcnt({4+3*q4})", fill=spread([(o, 1) for o in pf[2*q4:3*q4]], list(range(45, 84))) if q4 else {}); p("s_barrier")
    abody("z0", 0, zc=True, dma='k', endw="vmcnt(63)", fill=spread([(o, 1) for o in (pf[3*q4:] if q4 >= 4 else pf[3*q4:] + [f"buffer_load_dword v{WD}, v{vPv}, {srd(sV)}, 0 offen"] * 4)], list(range(45, 84)))); p(f"s_mov_b32 s{sIt}, 0\ns_barrier"); stamp(p, 2, 3); stamp(p, 2, 5)
    for nm in (1, 2, 3, 0):
        abody(f"l{nm}", nm)
        if nm == 0: p(f"s_add_u32 s{sIt}, s{sIt}, 1\ns_cmp_lt_u32 s{sIt}, 3")
        p("s_barrier")
    if PST == 5: stamp_it(p, 5, "a", [(1, 3), (2, 4), (3, 5)])
    p("s_cbranch_scc1 L_A_l1")
    stamp(p, 3, 3)
    abody("e13", 1, dma=False, endw="vmcnt(0)"); p("s_barrier")
    stamp(p, 4, 3); stamp(p, 6, 5)
    abody("e14", 2, qk=False, dma=False, bar=False, sites={1: 0, 20: 1, 40: 2, 65: 3})
    def prd(J, t):
        tm = PT[(J, t)]
        return [f"v_accvgpr_read_b32 v{tm+4*h+r}, a{oacc(2*J+h,t)+r}" for h in range(2) for r in range(4)]
    PT = {}
    for t in range(5): PT[(0, t)] = SS[0] + 8 * t; PT[(1, t)] = QR + 16 * t + 8
    early = [o for J in range(2) for t in range(5) for o in prd(J, t)]
    xa = first_of[4] + 2; xb_ = first_of[6] + 2; xe = first_of[10]
    fl = spread([(o, 1) for o in early[:40]], list(range(xa, xb_ + 8)))
    for g, l in spread([(o, 1) for o in early[40:]], list(range(xb_ + 8, xe))).items(): fl.setdefault(g, []).extend(l)
    abody("e15", 3, held=False, qk=False, dma=False, smh=False, bar=False, sites={12: 4, 35: 5}, fill=fl)
    stamp(p, 5, 3)
    for t in range(5): p(f"v_rcp_f32 v{FACS[t]}, v{LL+4*t}")
    for J in range(4):
        if J < 3: site(6 + J)
        for t in range(5):
            if J >= 2:
                PT[(J, t)] = SS[1] + 8 * t if J == 2 else SS[0] + 8 * t
                for o in prd(J, t): p(o)
            tm = PT[(J, t)]
            for r in range(0, 8, 2): p(f"v_pk_mul_f32 {vr(tm+r,2)}, {vr(tm+r,2)}, {vr(FACS[t],2)} op_sel_hi:[1,0]")
            for r in range(4): p(f"v_cvt_pk_bf16_f32 v{QR+16*t+4*J+r}, v{tm+2*r}, v{tm+2*r+1}")
    stamp_r(p, 3, 6, "e"); stamp(p, 6, 3); stamp(p, 7, 3); stamp(p, 7, 5)
    p(f"s_cmp_eq_u32 s{sRnd}, 1\ns_cbranch_scc1 L_T")
    p(f"s_mov_b32 s{sRnd}, 1\ns_waitcnt vmcnt(0)\ns_barrier")
    p(kvadv)
    xr = [xread(t, j) for j in range(4) for t in range(5)]
    for r in range(80):
        if r % 4 == 0:
            if r == 48: p("s_waitcnt lgkmcnt(4)")
            p(xr[r // 4])
        p(f"v_accvgpr_write_b32 a{aSV+r}, v{QR+r}")
    p("s_branch L_round")

    q("S_odmb:")
    for o in oops(vWoB): q(o)
    ret(q, "S_odmb")
    SLP = opts.get('slp', 4)
    q("S_spin:")
    q(f"buffer_load_dword v{vPol}, v{vZ}, {srd(sFL)}, s{sFo} offen sc1\ns_waitcnt vmcnt(0)")
    q("S_spinc:")
    q(f"v_readfirstlane_b32 s{sT}, v{vPol}\ns_cmp_eq_u32 s{sT}, 8\ns_cbranch_scc1 L_spr\ns_sleep {SLP}\ns_branch S_spin")
    q("L_spr:"); ret(q, "S_spin|S_spinc")
    q("S_post:")
    q(f"s_cmp_lg_u32 s{sWave}, 0\ns_cbranch_scc1 L_pr\nv_mov_b32 v{t0}, 1\ns_mov_b64 exec, 1")
    q(f"buffer_atomic_add v{t0}, v{vZ}, {srd(sFL)}, s{sT2} offen sc1\ns_mov_b64 exec, -1")
    q("L_pr:"); ret(q, "S_post")
    def ld_op(li):
        sg = li >> 1; h = li & 1
        return f"s_add_u32 s{sT}, s{sPc}, {sg*4096+h*4*SLAB}\nbuffer_load_dwordx4 {vr(RB+4*li,4)}, v{vOs2}, {srd(sPA)}, s{sT} offen sc1"
    LSET = [range(0, 4), range(4, 8), range(8, 10)]
    def red_ops(k):
        d = RD + 4 * k
        o = [m16(vr(d, 4), vr(SEL + 4 * ((li >> 1) & 1), 4), vr(RB + 4 * li, 4), '0' if li % 4 == 0 else None) for li in LSET[k]]
        o2 = [f"v_cvt_pk_bf16_f32 v{d}, v{d}, v{d+1}", f"v_cvt_pk_bf16_f32 v{d+1}, v{d+2}, v{d+3}",
              ("VM", f"s_add_u32 s{sT2}, s{sPd}, {k*32*1280}\nbuffer_store_dwordx2 {vr(d,2)}, v{vOo3 if k == 2 else vOo2}, {srd(sOUT)}, s{sT2} offen", None)]
        return o, o2
    q("S_ld:")
    for li in range(10): q(ld_op(li))
    q("s_waitcnt vmcnt(0)")
    q("S_reda:")
    for o in red_ops(0)[0]: q(o)
    q("S_redb:")
    for k in (1, 2):
        for o in red_ops(k)[0]: q(o)
    for k in range(3):
        for o in red_ops(k)[1]: q(o if isinstance(o, str) else o[1])
    ret(q, "S_ld|S_reda|S_redb")
    def reduce_group(g):
        p(f"s_mov_b32 s{sPc}, {g*40960}\ns_movk_i32 s{sPd}, {g*256}"); call(p, "S_ld")

    p("L_T:")
    stamp(p, 1, 2)
    p("s_waitcnt vmcnt(16)")
    p(f"s_mov_b32 s{sT}, {EXA[0]}\ns_mul_i32 s{sT2}, s{sWave}, 20480\ns_add_u32 s{sT2}, s{sT2}, {V1-20480}\ns_cmp_eq_u32 s{sWave}, 0\ns_cselect_b32 s{sT2}, s{sT}, s{sT2}")
    p(f"v_add_u32 v{vR0}, s{sT2}, v{vLin}")
    p(f"s_xor_b32 s{sT3}, s{sWave}, 2\ns_mul_i32 s{sT2}, s{sT3}, 20480\ns_add_u32 s{sT2}, s{sT2}, {V1-20480}\ns_cmp_eq_u32 s{sT3}, 0\ns_cselect_b32 s{sT2}, s{sT}, s{sT2}")
    p(f"v_add_u32 v{vR1}, s{sT2}, v{vLin}")
    p(f"s_lshl_b32 s{sT}, s{sB}, 3\nv_mov_b32 v{t0}, s{sT}")
    p("L_isp:")
    p(f"buffer_load_dword v{vPol}, v{t0}, {srd(sDBG)}, 0 offen sc1")
    p("s_barrier")
    for step in range(2):
        for i in range(20):
            p(f"ds_write_b128 v{vR0}, {ar(aSV+4*i,4) if step == 0 else vr(QR+4*i,4)} offset:{1024*i}")
            if i % 10 == 9: p("s_waitcnt lgkmcnt(0)")
        p("s_barrier")
        for i in range(20):
            p(f"ds_read_b128 {ar(80*step+4*i,4)}, v{vR1} offset:{1024*i}")
            if i % 10 == 9: p("s_waitcnt lgkmcnt(0)")
        if step == 1:
            p("s_waitcnt vmcnt(0)")
            p("L_ick:")
            p(f"v_readfirstlane_b32 s{sT}, v{vPol}\ns_cmp_eq_u32 s{sT}, 1\ns_cbranch_scc1 L_iok")
            p(f"s_sleep 8\nbuffer_load_dword v{vPol}, v{t0}, {srd(sDBG)}, 0 offen sc1\ns_waitcnt vmcnt(0)\ns_branch L_ick")
            p("L_iok:")
        p("s_barrier")
    REG = [K0, K1, V0, V1]; TBr = [vR0, vR1, vR2, vR3]
    p(f"s_lshl_b32 s{sT}, s{sPi}, 7\nv_add_u32 v{vR0}, s{sT}, v{vTn}\nv_add_u32 v{vR1}, {K1}, v{vR0}\nv_add_u32 v{vR2}, {V0}, v{vR0}\nv_add_u32 v{vR3}, {V1}, v{vR0}")
    p(f"s_add_u32 s{sPa}, s{sHS}, {V0}\ns_mov_b32 s{sPb}, s{sGB}"); call(p, "S_odmb")
    p(f"v_mov_b32 v{vSt2}, {OOB}\nv_mov_b32 v{vOs2}, {OOB}\nv_mov_b32 v{vOo2}, {OOB}\nv_mov_b32 v{vOo3}, {OOB}")
    p(f"s_mov_b32 s{sIt}, 0\ns_mov_b32 s{sSt}, 0\ns_mov_b32 s{sPc}, 0\ns_mov_b32 s{sPd}, 0\ns_mov_b32 s{sFo}, 0\ns_mov_b32 s{sCol}, s{sGB}\ns_mov_b32 s{sRa}, s{sHS}")
    Bop = lambda qd, t, ts: [ar(aSV + 16 * t + 4 * ts, 4), vr(QR + 16 * t + 4 * ts, 4), ar(16 * t + 4 * ts, 4), ar(80 + 16 * t + 4 * ts, 4)][qd]
    tacc = lambda Jp, t, h: TA + 40 * Jp + 8 * t + 4 * h
    def st_ops(Jp, vo, back):
        o = []
        for t in range(5):
            tm = TMP + 4 * (t & 1); a = tacc(Jp, t, 0)
            o += [f"v_cvt_pk_bf16_f32 v{tm+i}, v{a+2*i}, v{a+2*i+1}" for i in range(4)]
            o.append(("VM", f"s_add_u32 s{sT3}, s{sSt}, {t*4096}\nbuffer_store_dwordx4 {vr(tm,4)}, v{vo}, {srd(sPO)}, s{sT3} offen offset:{1024*Jp} sc1", 'ps'))
        return o
    vm = Q(p, "vmcnt", 63); T = {}
    def tmf(qd, f, m):
        Jp = f >> 3; ts = (f >> 1) & 3; h = f & 1
        return [m16(vr(tacc(Jp, t, h), 4), ar(FB(m), 4), Bop(qd, t, ts), '0' if qd == 0 and ts == 0 else None) for t in range(5)]
    LAG = opts.get('lag', 2); PQ = opts.get('pq', 2)
    def period():
        for qd in range(4):
            D = (qd + 3) & 3
            if qd == 0:
                p(f"buffer_load_dword v{vPol}, v{vZ}, {srd(sFL)}, s{sFo} offen sc1"); T['poll'] = vm.issue()
            if qd == 1:
                p(f"s_add_u32 s{sCol}, s{sCol}, 256\ns_cmp_ge_u32 s{sIt}, {LAG}\ns_cbranch_scc1 L_T_ck")
                p("L_T_ckb:")
                T['pollw'] = vm.n - T['poll']
            if qd == PQ:
                p(f"s_lshl_b32 s{sT2}, s{sIt}, 7\ns_sub_u32 s{sT2}, s{sT2}, 128\ns_cbranch_scc1 L_T_np"); call(p, "S_post"); p("L_T_np:")
            if qd == 3:
                p(f"s_lshl_b32 s{sPd}, s{sIt}, 8\ns_sub_u32 s{sPd}, s{sPd}, {256*LAG}\ns_cselect_b32 s{sPd}, 0, s{sPd}\ns_cbranch_scc1 L_T_no\nv_mov_b32 v{vOo2}, v{vOfo}\nv_mov_b32 v{vOo3}, v{vOf3}")
                p("L_T_no:")
            p(f"s_add_u32 s{sPa}, s{sRa}, {REG[D]}\ns_add_u32 s{sPb}, s{sCol}, {(D&1)*256*1280}\ns_add_u32 s{sRb}, s{sPb}, {PR*1280}")
            vmo = []
            lds_ = list(LSET[qd - 1]) if qd >= 1 else []
            BU = opts.get('burst', 2)
            if BU:
                lds_ = []
                if qd == 1 and BU == 1: vmo += [("VM", ld_op(li), 'lb') for li in range(10)]
            for i in range(8):
                im = (i >> 1) * 1280
                vmo.append(("VM", f"s_add_u32 m0, s{sPa}, {i*PCS-im}\nbuffer_load_dwordx4 v{vWoA if D < 2 else vWoB}, {srd(sWO)}, s{sRb if i & 1 else sPb} offen offset:{im} lds", ('d', D)))
                if i % 2 and lds_: vmo.append(("VM", ld_op(lds_.pop(0)), ('l', qd - 1)))
            if WQ == 3:
                vmo.append(("VM", f"s_add_u32 s{sT}, s{sRc}, {qd*128*1280}\nbuffer_load_dwordx4 {vr(212,4)}, v{vWarm}, {srd(sWO)}, s{sT} offen", None))
                if qd == 0: p(f"s_add_u32 s{sRc}, s{sIt}, 2\ns_min_u32 s{sRc}, s{sRc}, 4\ns_lshl_b32 s{sRc}, s{sRc}, 8")
            if BU == 2 and qd == 1: vmo += [("VM", ld_op(li), 'lb') for li in range(10)]
            streams = []
            if qd == 0: streams.append((split(st_ops(1, vSt2, True) + [f"v_mov_b32 v{vSt2}, v{vSt}\ns_mul_i32 s{sSt}, s{sIt}, 40960"]), list(range(13, 49))))
            if qd == 3: streams.append((split(st_ops(0, vSt, False)), list(range(53, 80))))
            streams.append((split(vmo), list(range(0, 78))))
            rk = (qd + 1) & 3
            if BU:
                if qd == 0: streams.append(([(("W", 'lb'), 1)] + [(o, 1) for k in range(3) for o in red_ops(k)[0]], list(range(50, 78))))
                if rk == 3: streams.append((split([o for k in range(3) for o in red_ops(k)[1]]), list(range(0, 78))))
            elif rk < 3: streams.append(([(("W", ('l', rk)), 1)] + [(o, 1) for o in red_ops(rk)[0]], list(range(30, 50))))
            else: streams.append((split([o for k in range(3) for o in red_ops(k)[1]]), list(range(0, 78))))
            def rdtxt(m, e):
                f = m - 2; Jp = f >> 3; ts = (f >> 1) & 3; h = f & 1
                return f"ds_read_b64_tr_b16 {ar(FB(m)+2*e,2)}, v{TBr[qd]} offset:{ts*SLOT+e*256+Jp*64+h*HS}"
            gunit(rdtxt, lambda m, t: (tmf(qd, m - 2, m) if m >= 2 else tmf((qd - 1) & 3, 14 + m, m))[t], streams, vm, T)
            need = T.get(('d', (qd + 1) & 3), 0)
            if qd == PQ - 1: need = max(need, T['ps'])
            if qd == 1: need = max(need, T['poll'])
            vm.wait(need)
            if qd == 3: p(f"s_add_u32 s{sIt}, s{sIt}, 1\ns_cmp_lt_u32 s{sIt}, 5")
            p("s_waitcnt lgkmcnt(0)\ns_barrier")
    mark = len(p.ins)
    period()
    del p.ins[mark:]
    p("L_T_loop:")
    stamp_it(p, 2, "t", [(0, 2), (1, 3), (2, 4), (3, 5), (4, 6)])
    period()
    p("s_cbranch_scc1 L_T_loop")
    side("L_T_ck:")
    side(f"s_waitcnt vmcnt({min(63, T['pollw'])})"); call(side, "S_spinc")
    side(f"s_sub_u32 s{sPc}, s{sIt}, {LAG}\ns_mul_i32 s{sPc}, s{sPc}, 40960\ns_add_u32 s{sFo}, s{sFo}, 128\nv_mov_b32 v{vOs2}, v{vOfs}")
    side(f"s_cmp_lg_u32 s{sIt}, 4\ns_cbranch_scc1 L_T_ckb")
    side(f"v_mov_b32 v{vWoA}, {OOB}\nv_mov_b32 v{vWoB}, {OOB}\ns_mov_b32 s{sRa}, 0x28000\ns_branch L_T_ckb")
    for m in range(2):
        for o in tmf(3, 14 + m, m): p(o)
    p(f"s_movk_i32 s{sFo}, 384\nbuffer_load_dword v{vPol}, v{vZ}, {srd(sFL)}, s{sFo} offen sc1")
    for o in st_ops(1, vSt, True): p(o if isinstance(o, str) else o[1])
    stamp(p, 7); stamp(p, 7, 2)
    p("s_waitcnt vmcnt(5)"); call(p, "S_reda" if opts.get('burst', 2) else "S_redb")
    rest = list(range(5 - LAG, 4))
    p("s_waitcnt vmcnt(3)\ns_barrier")
    p(f"s_movk_i32 s{sT2}, 512"); call(p, "S_post")
    call(p, "S_spinc")
    for i, g in enumerate(rest[1:]):
        p(f"s_mov_b32 s{sPc}, {g*40960}")
        for li in range(10): p(ld_op(li).replace(vr(RB + 4 * li, 4), vr(40 * i + 4 * li, 4)))
    reduce_group(rest[0])
    for i, g in enumerate(rest[1:]):
        for r in range(0, 40, 2): p(f"v_mov_b64 {vr(RB+r,2)}, {vr(40*i+r,2)}")
        p(f"s_movk_i32 s{sPd}, {g*256}"); call(p, "S_reda")
    p(f"s_movk_i32 s{sFo}, 512"); call(p, "S_spin")
    reduce_group(4)
    if PROF:
        p("s_waitcnt vmcnt(0)\ns_mov_b32 s96, s65")
        stamp(p, 9)
        p("s_memrealtime s[100:101]\ns_waitcnt lgkmcnt(0)")
        if opts.get('dbg'):
            p(f"s_lshl_b32 s{sT}, s2, 3\ns_add_u32 s{sT}, s{sT}, s{sWave}\ns_cmp_lg_u32 s{sT}, {8*opts['dbg']+1}\ns_cbranch_scc1 L_exit")
            for i, k in enumerate((1, 2, 3, 4, 5, 6, 7, 9)):
                p(f"s_sub_u32 s{sT}, s{80+2*k}, s80\nv_mov_b32 v1, s{sT}\nbuffer_store_dword v1, v{vZ}, {srd(sDBG)}, 0 offen offset:{8*i+4}")
            p("s_endpgm")
        p(f"s_lshl_b32 s{sT}, s2, 3\ns_add_u32 s{sT}, s{sT}, s{sWave}\ns_lshl_b32 s{sT}, s{sT}, 6")
        p(f"s_add_u32 s4, s66, 0x4000000\ns_addc_u32 s5, s67, 0\ns_mov_b32 s6, 0x100000\ns_mov_b32 s7, 0x20000\nv_mov_b32 v0, s{sT}")
        for i in range(11):
            p(f"v_mov_b32 v1, s{80+2*i}\nbuffer_store_dword v1, v0, s[4:7], 0 offen offset:{4*i}\nbuffer_store_dword v1, v0, s[4:7], 0 offen offset:{256+4*i}")
    p("L_exit:")
    p("s_endpgm")
    if opts.get('nodma'): p.ins = [x for x in p.ins if not (x.kind == 'dma' and (srd(sK) in x.text or srd(sV) in x.text))]
    def strip(a, b, pred):
        i0 = [i for i, x in enumerate(p.ins) if x.label == a][0]; i1 = [i for i, x in enumerate(p.ins) if x.text.startswith(b) and i > i0][0]
        p.ins = [x for i, x in enumerate(p.ins) if not (i0 < i < i1 and pred(x))]
    ab = opts.get('abl', 0)
    for a, b in (('L_Q_loop', 's_cbranch_scc1 L_Q_loop'), ('L_T_loop', 's_cbranch_scc1 L_T_loop')):
        if ab & 1: strip(a, b, lambda x: x.op == 'v_accvgpr_mov_b32' or x.op == 'v_cvt_pk_bf16_f32')
        if ab & 2: strip(a, b, lambda x: x.kind == 'dma' or x.op.startswith('buffer_store') or x.op == 'buffer_load_dwordx4')
        if ab & 4: strip(a, b, lambda x: x.op == 's_barrier')
        if ab & 8: strip(a, b, lambda x: x.op == 's_waitcnt' and ('lgkmcnt(0)' not in x.text))
        if ab & 16: strip(a, b, lambda x: x.text.startswith('s_add_u32 m0') or x.text.startswith(f's_add_u32 s{sT},') or x.text.startswith(f's_add_u32 s{sT3},'))
        if ab & 32: strip(a, b, lambda x: x.kind == 'ds')
    if opts.get('bprof'):
        a, b = {1: ('L_Q_loop', 'L_A_m2'), 2: ('L_T_loop', 'L_exit'), 3: ('L_A_l1', 'L_A_e13')}[opts['bprof']]
        new = []; on = False; k = 0
        def wrap(x, acc):
            for t in ["s_cselect_b32 s99, 1, 0", "s_memtime s[78:79]".replace("78:79", "2:3") if False else "s_memtime s[100:101]", "s_waitcnt lgkmcnt(0)", f"s_sub_u32 s{acc}, s{acc}, s100"]: new.append(Ins(t))
            new.append(x)
            for t in ["s_memtime s[100:101]", "s_waitcnt lgkmcnt(0)", f"s_add_u32 s{acc}, s{acc}, s100", "s_cmp_lg_u32 s99, 0"]: new.append(Ins(t))
        for x in p.ins:
            if x.label == b or (on and x.text.startswith('s_cbranch_scc1 L_T_loop')): on = False
            if on and x.op == 's_barrier': wrap(x, 82)
            elif on and x.op == 's_waitcnt' and 'vmcnt' in x.text:
                wrap(x, 84 + 2 * min(k, 5)); print("site", min(k, 5), x.text, file=sys.stderr); k += 1
            else: new.append(x)
            if x.label == a: on = True
        p.ins = new
    p.ins += q.ins + side.ins
    p("L_code_end:")
    p("s_endpgm")
    n = p.fix_hazards(verbose=opts.get('verbose', False))
    print("hazard nops inserted:", n, "instrs:", len(p.ins), file=sys.stderr)
    hdr = open('standalone__mha_block_cached__near_ridge.s.ref').read().split('\n')
    hdr = [l for l in hdr if l.startswith(';') and '@launch' not in l and not l.startswith('; Override') and not l.startswith('; grid=ceil')]
    out = "\n".join(hdr) + "\n"
    out += f"; @launch grid=(256,1,1) block=(256,1,1) lds={LDS_BYTES}\n"
    out += '.amdgcn_target "amdgcn-amd-amdhsa--gfx950"\n.text\n'
    out += f".globl {KN}\n.p2align 8\n.type {KN},@function\n" + p.text()
    out += f""".section .rodata,"a"
.p2align 6
.amdhsa_kernel {KN}
  .amdhsa_next_free_vgpr 512
  .amdhsa_next_free_sgpr {102 if PROF else 80}
  .amdhsa_accum_offset 256
  .amdhsa_group_segment_fixed_size 0
  .amdhsa_kernarg_size 64
  .amdhsa_user_sgpr_count 2
  .amdhsa_user_sgpr_kernarg_segment_ptr 1
  .amdhsa_system_sgpr_workgroup_id_x 1
.end_amdhsa_kernel
"""
    return out

if __name__ == "__main__":
    opts = {}
    for a in sys.argv[2:]:
        k, v = a.split('='); opts[k] = int(v)
    open(sys.argv[1], 'w').write(gen(opts))
```
